```python
import torch

def _softmax(x, axis=-1):
    return torch.softmax(x, dim=axis)
def _gelu(x):
    return torch.nn.functional.gelu(x, approximate="tanh")
def _silu(x):
    return torch.nn.functional.silu(x)
def _sigmoid(x):
    return torch.sigmoid(x)
def _layernorm(x, axis=-1, eps=1e-5):
    m = x.mean(dim=axis, keepdim=True)
    v = x.var(dim=axis, keepdim=True, unbiased=False)
    return (x - m) / torch.sqrt(v + eps)
def _scatter_add(tgt, idx, src, axis=0):
    return tgt.clone().index_add_(axis, idx, src)
def _segment_sum(src, seg, n):
    out = torch.zeros((n,) + src.shape[1:], dtype=src.dtype)
    return out.index_add_(0, seg, src)
def _pad(x, pw):
    flat = tuple(v for pair in reversed(pw) for v in pair)
    return torch.nn.functional.pad(x, flat)

kernel_name = 'standalone__mpnn_edge_mlp__graph'

def setup_inputs():

    _w = (lambda a: (lambda t: t.to(torch.bfloat16) if t.is_floating_point() else t)(torch.as_tensor(a)))
    N, deg, D, De = 12500, 64, 64, max(0, 1)
    E = N * deg
    return {
        "x": _w((lambda *s: torch.randn(*s, dtype=torch.bfloat16) * 0.05)(N, D)),
        "e_attr": _w((lambda *s: torch.randn(*s, dtype=torch.bfloat16) * 0.4)(E, De)),
        "src": _w((lambda lo, hi, *s: torch.randint(lo, hi, s))(0, N, E).to(torch.int64)),
        "dst": _w((lambda lo, hi, *s: torch.randint(lo, hi, s))(0, N, E).to(torch.int64)),
        "w_msg": _w((lambda *s: torch.randn(*s, dtype=torch.bfloat16) * 0.4)(2 * D + De, D)),
        "w_upd": _w((lambda *s: torch.randn(*s, dtype=torch.bfloat16) * 0.05)(2 * D, D)),
    }

def reference(x, e_attr, src, dst, w_msg, w_upd):
    N, D = x.shape
    m_in = torch.concatenate([x[src], x[dst], e_attr], axis=-1)
    msg = _silu(m_in @ w_msg)
    agg = _segment_sum(msg, dst, N)
    return _silu(torch.concatenate([x, agg], axis=-1) @ w_upd)
```

```python
class Asm:
    def __init__(self):
        self.lines = []
    def __call__(self, s):
        for l in s.split("\n"):
            l = l.strip()
            if l:
                if l.endswith(":") or l.startswith("."):
                    self.lines.append(l)
                else:
                    self.lines.append("    " + l)
    def c(self, s):
        self.lines.append("    ; " + s)
    def label(self, s):
        self.lines.append(s + ":")
    def text(self):
        return "\n".join(self.lines) + "\n"

def v(r, n=1):
    return f"v{r}" if n == 1 else f"v[{r}:{r+n-1}]"
def s(r, n=1):
    return f"s{r}" if n == 1 else f"s[{r}:{r+n-1}]"

def srd(a, d, lo, hi, nbytes, add=0):
    if add:
        a(f"s_add_u32 s{d}, s{lo}, {add}")
        a(f"s_addc_u32 s{d+1}, s{hi}, 0")
    else:
        a(f"s_mov_b32 s{d}, s{lo}")
        a(f"s_mov_b32 s{d+1}, s{hi}")
    a(f"s_mov_b32 s{d+2}, {nbytes}")
    a(f"s_mov_b32 s{d+3}, 0x00020000")

def scan64(a, r):
    for m in ("row_shr:1 row_mask:0xf", "row_shr:2 row_mask:0xf", "row_shr:4 row_mask:0xf", "row_shr:8 row_mask:0xf",
              "row_bcast:15 row_mask:0xa", "row_bcast:31 row_mask:0xc"):
        a(f"v_add_u32_dpp v{r}, v{r}, v{r} {m} bank_mask:0xf")
        a("s_nop 1")

def desc(name, vgpr, sgpr):
    return f""".amdhsa_kernel {name}
  .amdhsa_next_free_vgpr {vgpr}
  .amdhsa_next_free_sgpr {sgpr}
  .amdhsa_accum_offset {(vgpr+3)//4*4}
  .amdhsa_group_segment_fixed_size 0
  .amdhsa_kernarg_size 72
  .amdhsa_user_sgpr_count 2
  .amdhsa_user_sgpr_kernarg_segment_ptr 1
  .amdhsa_system_sgpr_workgroup_id_x 1
.end_amdhsa_kernel
"""
```

```python
import sys, os
sys.path.insert(0, os.path.dirname(__file__))
from asmlib import *

STAMP = int(os.environ.get("STAMP", "0"))

N = 12500; E = 800000
NP = 250; CH = 3200
NPB = 49; NB = 256
TROWS = 50
WS_TAB = 0; WS_OFF = 0x200000; WS_REC = 0x400000
WS_STAMP = 0x1000000
NLOG2E = 0xbfb8aa3b
NLN2 = 0xbf317218

def stamp(a, idx, kern):
    if not STAMP: return
    a(f"s_memtime s[96:97]")
    a(f"s_waitcnt lgkmcnt(0)")
    a(f"s_mov_b32 s{80+idx}, s96")

def stamp_flush(a, nst, kern, wsl, wsh, wave):
    if not STAMP: return
    a(f"s_memrealtime s[96:97]")
    a(f"s_waitcnt lgkmcnt(0)")
    a(f"s_mov_b32 s95, s96")
    a(f"s_lshl_b32 s98, s2, 4")
    a(f"s_add_u32 s98, s98, s{wave}")
    a(f"s_lshl_b32 s98, s98, 6")
    a(f"s_add_u32 s98, s98, {WS_STAMP + kern*0x100000}")
    a(f"s_mov_b64 exec, 1")
    a(f"v_mov_b32 v2, s98")
    for i in range(16):
        a(f"v_mov_b32 v3, s{80+i}")
        a(f"global_store_dword v2, v3, s[{wsl}:{wsh}] offset:{4*i}")
    a("s_waitcnt vmcnt(0)")

def gen_k1(a):
    HIST = 0; OFFS = 1024; W1L = 2048; RECS = 10240
    a.label("k1_kernel")
    a(f"s_cmp_ge_u32 s2, {NP}")
    a("s_cbranch_scc1 K1_END")
    a("s_load_dwordx8 s[4:11], s[0:1], 0")
    a("s_load_dwordx2 s[12:13], s[0:1], 32")
    a("s_load_dwordx2 s[14:15], s[0:1], 64")
    if STAMP:
        a("s_memrealtime s[94:95]")
    stamp(a, 0, 0)
    a("v_lshrrev_b32 v2, 6, v0")
    a("v_and_b32 v1, 63, v0")
    a("v_readfirstlane_b32 s16, v2")
    a(f"v_cmp_gt_u32 vcc, {CH//4}, v0")
    a("s_mov_b64 s[20:21], vcc")
    a(f"s_mul_i32 s17, s2, {CH*4}")
    a("v_lshlrev_b32 v3, 4, v0")
    a("v_add_u32 v2, s17, v3")
    a("v_lshrrev_b32 v34, 1, v2")
    a("s_cmp_ge_u32 s16, 4")
    a("s_cbranch_scc1 K1_NOZ")
    a("v_lshlrev_b32 v35, 2, v0")
    a("v_mov_b32 v36, 0")
    a(f"ds_write_b32 v35, v36 offset:{HIST}")
    a.label("K1_NOZ")
    a("s_waitcnt lgkmcnt(0)")
    if STAMP:
        a("s_mov_b32 s94, s94")
    a("s_cmp_ge_u32 s16, 13")
    a("s_cbranch_scc1 K1_NOLD")
    a("s_mov_b64 exec, s[20:21]")
    a("global_load_dwordx4 v[4:7], v2, s[10:11]")
    a("global_load_dwordx4 v[8:11], v2, s[8:9]")
    a("global_load_dwordx2 v[12:13], v34, s[6:7]")
    a("s_mov_b64 exec, -1")
    a.label("K1_NOLD")
    srd(a, 24, 4, 5, N*128)
    srd(a, 28, 12, 13, 129*128)
    srd(a, 32, 14, 15, N*128)
    a("s_lshr_b32 s18, s16, 2")
    a("s_and_b32 s19, s16, 3")
    a("s_lshl_b32 s3, s18, 4")
    a("v_and_b32 v60, 15, v1")
    a("v_add_u32 v60, s3, v60")
    a(f"s_mul_i32 s3, s2, {TROWS}")
    a("v_add_u32 v61, s3, v60")
    a("v_lshrrev_b32 v62, 4, v1")
    a("v_lshlrev_b32 v63, 7, v61")
    a("v_lshl_add_u32 v35, v62, 4, v63")
    a("buffer_load_dwordx4 v[36:39], v35, s[24:27], 0 offen")
    a("buffer_load_dwordx4 v[40:43], v35, s[24:27], 0 offen offset:64")
    a("s_cmp_ge_u32 s16, 8")
    a("s_cbranch_scc1 K1_NOW")
    a("s_lshl_b32 s3, s16, 10")
    a(f"s_add_u32 m0, s3, {W1L}")
    a("v_lshlrev_b32 v35, 4, v1")
    a("buffer_load_dwordx4 v35, s[28:31], s3 offen lds")
    a.label("K1_NOW")
    a("s_barrier")
    stamp(a, 1, 0)
    a("s_cmp_ge_u32 s16, 13")
    a("s_cbranch_scc1 K1_NORANK")
    a("s_mov_b64 exec, s[20:21]")
    a("s_waitcnt vmcnt(4)")
    stamp(a, 2, 0)
    a("v_mov_b32 v35, 1")
    a(f"s_movk_i32 s3, {-NPB}")
    for j in range(4):
        a(f"v_mul_u32_u24 v{14+j}, 5350, v{4+j}")
        a(f"v_lshrrev_b32 v{14+j}, 18, v{14+j}")
        a(f"v_mad_i32_i24 v{27+2*j}, v{14+j}, s3, v{4+j}")
        a(f"v_lshlrev_b32 v{14+j}, 2, v{14+j}")
        a(f"ds_add_rtn_u32 v{22+j}, v{14+j}, v35 offset:{HIST}")
    a("s_waitcnt vmcnt(2)")
    a("s_mov_b32 s3, 0xffff0000")
    a("v_lshl_or_b32 v26, v12, 16, v8")
    a("v_and_or_b32 v28, v12, s3, v9")
    a("v_lshl_or_b32 v30, v13, 16, v10")
    a("v_and_or_b32 v32, v13, s3, v11")
    a("s_mov_b64 exec, -1")
    a.label("K1_NORANK")
    a("s_waitcnt vmcnt(0) lgkmcnt(0)")
    a("s_barrier")
    stamp(a, 3, 0)
    a("v_lshlrev_b32 v3, 4, v1")
    a(f"ds_read_b128 v[56:59], v3 offset:{HIST}")
    a("v_and_b32 v64, 15, v1")
    a("v_lshrrev_b32 v65, 2, v64")
    a("v_and_b32 v64, 3, v64")
    a("v_lshl_add_u32 v65, v62, 3, v65")
    a("v_lshlrev_b32 v65, 7, v65")
    a("v_lshl_add_u32 v65, v64, 3, v65")
    a("s_lshl_b32 s3, s19, 5")
    a("v_add_u32 v65, s3, v65")
    for ks in range(2):
        for h in range(2):
            a(f"ds_read_b64_tr_b16 v[{44+4*ks+2*h}:{45+4*ks+2*h}], v65 offset:{W1L + (32*ks+4*h)*128}")
    a("s_waitcnt lgkmcnt(4)")
    a("v_add_u32 v66, v56, v57")
    a("v_add_u32 v67, v66, v58")
    a("v_add_u32 v68, v67, v59")
    a("v_mov_b32 v69, v68")
    a("s_nop 1")
    scan64(a, 69)
    a("v_sub_u32 v72, v69, v68")
    a("v_add_u32 v73, v72, v56")
    a("v_add_u32 v74, v72, v66")
    a("v_add_u32 v75, v72, v67")
    a(f"ds_write_b128 v3, v[72:75] offset:{OFFS}")
    a("s_cmp_lg_u32 s16, 15")
    a("s_cbranch_scc1 K1_NOOFF")
    for j in range(4):
        a(f"v_lshl_or_b32 v{76+j}, v{56+j}, 16, v{72+j}")
    a("s_lshl_b32 s3, s2, 10")
    a(f"s_add_u32 s3, s3, {WS_OFF}")
    a("v_add_u32 v3, s3, v3")
    a("global_store_dwordx4 v3, v[76:79], s[14:15]")
    a.label("K1_NOOFF")
    a("s_cmp_ge_u32 s16, 13")
    a("s_cbranch_scc1 K1_NOPLACE")
    a("s_mov_b64 exec, s[20:21]")
    for j in range(4):
        a(f"ds_read_b32 v{4+j}, v{14+j} offset:{OFFS}")
    for j in range(4):
        a(f"s_waitcnt lgkmcnt({3-j})" if j == 0 else f"s_waitcnt lgkmcnt(3)")
        a(f"v_add_lshl_u32 v{4+j}, v{4+j}, v{22+j}, 3")
        a(f"ds_write_b64 v{4+j}, v[{26+2*j}:{27+2*j}] offset:{RECS}")
    a("s_mov_b64 exec, -1")
    a.label("K1_NOPLACE")
    a("s_waitcnt lgkmcnt(0)")
    a("v_mfma_f32_16x16x32_bf16 v[52:55], v[44:47], v[36:39], 0")
    a("v_mfma_f32_16x16x32_bf16 v[52:55], v[48:51], v[40:43], v[52:55]")
    a("s_barrier")
    stamp(a, 4, 0)
    a("s_cmp_ge_u32 s16, 13")
    a("s_cbranch_scc1 K1_NOCOPY")
    a("s_mov_b64 exec, s[20:21]")
    a("v_lshlrev_b32 v3, 4, v0")
    a(f"ds_read_b128 v[4:7], v3 offset:{RECS}")
    a(f"ds_read_b128 v[8:11], v3 offset:{RECS + CH*4}")
    a(f"s_mul_i32 s3, s2, {CH*8}")
    a(f"s_add_u32 s3, s3, {WS_REC}")
    a("v_add_u32 v3, s3, v3")
    a(f"v_add_u32 v12, {CH*4}, v3")
    a("s_waitcnt lgkmcnt(1)")
    a("global_store_dwordx4 v3, v[4:7], s[14:15]")
    a("s_waitcnt lgkmcnt(0)")
    a("global_store_dwordx4 v12, v[8:11], s[14:15]")
    a("s_mov_b64 exec, -1")
    a.label("K1_NOCOPY")
    a(f"s_mov_b32 s3, {NLOG2E:#x}")
    a("s_nop 4")
    for r in range(4):
        a(f"v_mul_f32 v{52+r}, s3, v{52+r}")
    a("v_cvt_pk_bf16_f32 v56, v52, v53")
    a("v_cvt_pk_bf16_f32 v57, v54, v55")
    a("s_lshl_b32 s3, s19, 5")
    a("v_lshl_add_u32 v63, v62, 3, v63")
    a("v_add_u32 v63, s3, v63")
    a(f"v_cmp_gt_u32 vcc, {TROWS}, v60")
    a("s_and_saveexec_b64 s[22:23], vcc")
    a("buffer_store_dwordx2 v[56:57], v63, s[32:35], 0 offen")
    stamp(a, 5, 0)
    if STAMP:
        a("s_waitcnt vmcnt(0)")
        stamp(a, 6, 0)
        a("s_mov_b32 s87, s94")
        stamp_flush(a, 8, 0, 14, 15, 16)
    a.label("K1_END")
    a("s_endpgm")

AGG = 0; BP = 16384; FT = 32768; REC = 49152; CAP = 4096; CAPG = CAP // 8
CNT = 65536; FLG = CNT + 256; GN = CNT + 512; WU2 = 68608; STG = WU2 + 8192
K2_LDS = STG + 65536
D0 = 16; D1 = 32; X = 48; A = 64; AEXT = 80; BX0 = 84; BX1 = 88; I0 = 92; I1 = 96
RA = 100; R4 = 104; U = 108; VR4 = 112; VE = 113; VG = 114; CD0 = 115; CD1 = 116; L4 = 117
FA = 118; FAN = 120; GNR = 122; PM = 124; OFFW = 126; SB = 125;
NN = 2; PA = 4; PB = 6; RR = 8; OUT = 10; VO = 12
S_X = 16; S_WM = 20; S_WU = 24; S_OUT = 28; S_TAB = 32; S_OFF = 36; S_REC = 40
sB = 44; sNODE0 = 45; sW = 46; sSLOT = 47; sT = 48; st = 49; sCHUNK = 50; sMODE = 51; sG = 52; sNT = 53; sFT = 54; s128 = 55
sTN = 56; sTMP = 57; sONE = 58
sVAL = 60

def P(r): return f"v[{r}:{r+1}]"

def mfma3(Dn, j):
    bx = BX0 if j == 0 else BX1
    return [f"v_mfma_f32_32x32x16_bf16 {v(Dn,16)}, {v(AEXT,4)}, {v(bx,4)}, 0",
            f"v_mfma_f32_32x32x16_bf16 {v(Dn,16)}, {v(A+8*j,4)}, {v(I0,4)}, {v(Dn,16)}",
            f"v_mfma_f32_32x32x16_bf16 {v(Dn,16)}, {v(A+8*j+4,4)}, {v(I1,4)}, {v(Dn,16)}"]

def xphase(a, Dc, mf):
    ex = [f"v_exp_f32 v{X+r}, v{Dc+r}" for r in range(16)]
    if mf:
        seq = [mf[0]] + ex[0:4] + [mf[1]] + ex[4:8] + [mf[2]] + ex[8:16]
    else:
        seq = ex
    for l in seq: a(l)

def fphase(a, Dc, off, slow, mid=None):
    if not slow:
        a(f"v_pk_add_f32 {P(PA)}, {P(X)}, s[{sONE}:{sONE+1}]")
        cur, nxt = PA, PB
        for q in range(1, 8):
            src = Dc if q == 1 else NN
            a(f"v_pk_fma_f32 {P(NN)}, {P(src)}, {P(X+2*q)}, {P(src)}")
            a(f"v_pk_fma_f32 {P(nxt)}, {P(cur)}, {P(X+2*q)}, {P(cur)}")
            a(f"v_pk_fma_f32 {P(NN)}, {P(Dc+2*q)}, {P(cur)}, {P(NN)}")
            cur, nxt = nxt, cur
            if q == 3 and mid: mid()
        a(f"v_rcp_f32 v{RR}, v{cur}")
        a(f"v_rcp_f32 v{RR+1}, v{cur+1}")
        a(f"v_max3_f32 v{PM}, v{cur}, v{cur+1}, v{PM}")
        a(f"v_pk_mul_f32 {P(OUT)}, {P(NN)}, {P(RR)}")
    else:
        for q in range(8):
            a(f"v_pk_add_f32 {P(X+2*q)}, {P(X+2*q)}, s[{sONE}:{sONE+1}]")
        if mid: mid()
        for r in range(16):
            a(f"v_rcp_f32 v{X+r}, v{X+r}")
        a("s_nop 0")
        a(f"v_pk_mul_f32 {P(OUT)}, {P(Dc)}, {P(X)}")
        for q in range(1, 8):
            a(f"v_pk_fma_f32 {P(OUT)}, {P(Dc+2*q)}, {P(X+2*q)}, {P(OUT)}")
    a(f"ds_add_f32 v{FA}, v{OUT} offset:{AGG+off}")
    a(f"ds_add_f32 v{FA+1}, v{OUT+1} offset:{AGG+off}")

def dma4(a):
    for i in range(4):
        a(f"s_add_u32 m0, s{sSLOT}, {i*1024}")
        a(f"v_mad_u32_u16 v{VO+(i&1)}, v{R4+i}, s{s128}, v{CD0+(i&1)}")
        a(f"buffer_load_dwordx4 v{VO+(i&1)}, s[{S_TAB}:{S_TAB+3}], 0 offen lds")

def aread(a):
    for k in range(4):
        a(f"ds_read_b128 {v(A+4*k,4)}, v{RA+k}")

def bext(a, fa):
    a(f"ds_read_b32 v{BX0}, v{fa} offset:{BP}")
    a(f"ds_read_b32 v{BX0+1}, v{fa+1} offset:{BP}")
    a(f"ds_read_b32 v{BX1}, v{fa} offset:{BP+128}")
    a(f"ds_read_b32 v{BX1+1}, v{fa+1} offset:{BP+128}")

def mainloop(a, tag, slow):
    L = lambda x: f"K2_{tag}_{x}"
    a(f"s_cmp_ge_u32 s{st}, s{sT}")
    a(f"s_cbranch_scc1 {L('DONE')}")
    a(f"ds_read_b128 {v(R4,4)}, v{VR4}")
    a(f"ds_read_b64 {P(GNR)}, v{VG}")
    a(f"ds_read_u16 v{AEXT+2}, v{VE}")
    a("s_waitcnt lgkmcnt(2)")
    dma4(a)
    a(f"ds_read_b128 {v(R4,4)}, v{VR4} offset:2048")
    a("s_waitcnt lgkmcnt(2)")
    a(f"v_add_u32 v{FA}, v{GNR}, v{L4}")
    a(f"v_add_u32 v{FA+1}, v{GNR+1}, v{L4}")
    bext(a, FA)
    a("s_waitcnt vmcnt(0)")
    aread(a)
    a("s_waitcnt lgkmcnt(0)")
    a(f"s_add_u32 s{sTN}, s{st}, 16")
    a(f"s_cmp_ge_u32 s{sTN}, s{sT}")
    a(f"s_cbranch_scc1 {L('P1')}")
    dma4(a)
    a.label(L('P1'))
    for m in mfma3(D0, 0): a(m)
    a("s_nop 7")
    a("s_nop 3")
    a.label(L('LOOP'))
    a(f"s_add_u32 s{sTN}, s{st}, 16")
    a(f"s_cmp_ge_u32 s{sTN}, s{sT}")
    a(f"s_cbranch_scc1 {L('TAIL')}")
    xphase(a, D0, mfma3(D1, 1))
    a("s_waitcnt vmcnt(0)")
    aread(a)
    a(f"ds_read_b64 {P(GNR)}, v{VG} offset:256")
    a(f"ds_read_u16 v{AEXT+2}, v{VE} offset:2048")
    a(f"ds_read_b128 {v(R4,4)}, v{VR4} offset:4096")
    def mid():
        a("s_waitcnt lgkmcnt(0)")
        a(f"v_add_u32 v{FAN}, v{GNR}, v{L4}")
        a(f"v_add_u32 v{FAN+1}, v{GNR+1}, v{L4}")
        bext(a, FAN)
        a(f"s_add_u32 s{sTMP}, s{st}, 32")
        a(f"s_cmp_ge_u32 s{sTMP}, s{sT}")
        a(f"s_cbranch_scc1 {L('NOD')}")
        dma4(a)
        a.label(L('NOD'))
    fphase(a, D0, 0, slow, mid)
    a("s_waitcnt lgkmcnt(2)")
    xphase(a, D1, mfma3(D0, 0))
    a(f"v_add_u32 v{VR4}, 2048, v{VR4}")
    a(f"v_add_u32 v{VE}, 2048, v{VE}")
    a(f"v_add_u32 v{VG}, 256, v{VG}")
    fphase(a, D1, 128, slow)
    a(f"v_mov_b32 v{FA}, v{FAN}")
    a(f"v_mov_b32 v{FA+1}, v{FAN+1}")
    a(f"s_mov_b32 s{st}, s{sTN}")
    a(f"s_branch {L('LOOP')}")
    a.label(L('TAIL'))
    xphase(a, D0, mfma3(D1, 1))
    fphase(a, D0, 0, slow)
    xphase(a, D1, None)
    fphase(a, D1, 128, slow)
    a.label(L('DONE'))

def gen_k2(a):
    a.label("k2_kernel")
    a(f"s_cmp_ge_u32 s2, {NB}")
    a("s_cbranch_scc1 K2_END")
    a("s_load_dwordx2 s[14:15], s[0:1], 64")
    a("s_load_dwordx2 s[4:5], s[0:1], 0")
    a("s_load_dwordx4 s[8:11], s[0:1], 32")
    a("s_load_dwordx2 s[12:13], s[0:1], 48")
    if STAMP:
        a("s_memrealtime s[94:95]")
    stamp(a, 0, 1)
    a("v_lshrrev_b32 v2, 6, v0")
    a("v_and_b32 v1, 63, v0")
    a(f"v_readfirstlane_b32 s{sW}, v2")
    a("s_and_b32 s3, s2, 7")
    a("s_lshl_b32 s3, s3, 5")
    a(f"s_lshr_b32 s{sB}, s2, 3")
    a(f"s_add_u32 s{sB}, s{sB}, s3")
    a(f"s_mul_i32 s{sNODE0}, s{sB}, {NPB}")
    a("v_lshrrev_b32 v2, 2, v0")
    a("v_lshlrev_b32 v3, 10, v2")
    a(f"s_lshl_b32 s3, s{sB}, 2")
    a("s_waitcnt lgkmcnt(0)")
    srd(a, S_OFF, 14, 15, NP*1024, WS_OFF)
    a(f"buffer_load_dword v{OFFW}, v3, s[{S_OFF}:{S_OFF+3}], s3 offen")
    srd(a, S_TAB, 14, 15, N*128, WS_TAB)
    a("s_lshr_b32 s3, s2, 3")
    a("s_mul_i32 s3, s3, 50048")
    a("v_min_u32 v4, 781, v0")
    a("v_lshlrev_b32 v4, 6, v4")
    a(f"buffer_load_dword v127, v4, s[{S_TAB}:{S_TAB+3}], s3 offen")
    srd(a, S_WM, 8, 9, 129*128)
    srd(a, S_WU, 10, 11, 128*128)
    srd(a, S_X, 4, 5, N*128)
    a("v_lshlrev_b32 v4, 4, v1")
    a(f"s_lshl_b32 s3, s{sW}, 10")
    a(f"s_add_u32 m0, s3, {STG}")
    a(f"s_cmp_ge_u32 s{sW}, 8")
    a("s_cbranch_scc1 K2_W1")
    a("s_add_u32 s3, s3, 8192")
    a(f"buffer_load_dwordx4 v4, s[{S_WM}:{S_WM+3}], s3 offen lds")
    a(f"s_add_u32 m0, s3, {WU2 - 8192}")
    a("s_nop 0")
    a(f"buffer_load_dwordx4 v4, s[{S_WU}:{S_WU+3}], s3 offen lds")
    a("s_branch K2_W2")
    a.label("K2_W1")
    a("s_sub_u32 s3, s3, 8192")
    a(f"buffer_load_dwordx4 v4, s[{S_WU}:{S_WU+3}], s3 offen lds")
    a(f"buffer_load_dword v127, v4, s[{S_WU}:{S_WU+3}], s3 offen")
    a.label("K2_W2")
    a(f"s_lshr_b32 s{sNT}, s{sW}, 2")
    a(f"s_and_b32 s{sFT}, s{sW}, 3")
    a(f"s_lshl_b32 s3, s{sNT}, 4")
    a("v_and_b32 v5, 15, v1")
    a("v_add_u32 v5, s3, v5")
    a(f"v_add_u32 v6, s{sNODE0}, v5")
    a("v_lshrrev_b32 v7, 4, v1")
    a("v_lshlrev_b32 v6, 7, v6")
    a("v_lshl_add_u32 v6, v7, 4, v6")
    a(f"buffer_load_dwordx4 v[16:19], v6, s[{S_X}:{S_X+3}], 0 offen")
    a(f"buffer_load_dwordx4 v[20:23], v6, s[{S_X}:{S_X+3}], 0 offen offset:64")
    a("v_and_b32 v8, 31, v1")
    a("v_lshlrev_b32 v9, 1, v8")
    a("s_movk_i32 s3, 0x4000")
    a(f"buffer_load_ushort v24, v9, s[{S_WM}:{S_WM+3}], s3 offen")
    a(f"buffer_load_ushort v25, v9, s[{S_WM}:{S_WM+3}], s3 offen offset:64")
    srd(a, S_REC, 14, 15, NP*CH*8, WS_REC)
    srd(a, S_OUT, 12, 13, N*128)
    a(f"s_mov_b32 s{sMODE}, 0")
    a(f"s_mov_b32 s{sCHUNK}, 0")
    a(f"s_movk_i32 s{s128}, 128")
    a(f"s_mov_b32 s{sONE}, 1.0")
    a(f"s_mov_b32 s{sONE+1}, 1.0")
    a(f"s_lshl_b32 s{sSLOT}, s{sW}, 12")
    a(f"s_add_u32 s{sSLOT}, s{sSLOT}, {STG}")
    for r in range(4): a(f"v_mov_b32 v{28+r}, 0")
    a("v_lshlrev_b32 v10, 4, v0")
    a(f"ds_write_b128 v10, v[28:31] offset:{AGG}")
    a("v_lshlrev_b32 v10, 3, v1")
    a(f"v_add_u32 v10, {CNT}, v10")
    a("ds_write_b64 v10, v[28:29]")
    a("v_lshrrev_b32 v11, 5, v1")
    a(f"v_lshlrev_b32 v{L4}, 2, v8")
    a("v_lshlrev_b32 v12, 3, v11")
    a("v_sub_u32 v12, v8, v12")
    a("v_and_b32 v13, 1, v12")
    a("v_lshlrev_b32 v13, 4, v13")
    a("v_mov_b32 v14, 0x3f80")
    a("v_lshlrev_b32 v13, v13, v14")
    a("v_ashrrev_i32 v12, 1, v12")
    for i in range(4):
        a(f"v_cmp_eq_u32 vcc, {i}, v12")
        a(f"v_cmp_eq_u32 s[76:77], {8+i}, v12")
        a("s_nop 1")
        a(f"v_cndmask_b32 v{I0+i}, 0, v13, vcc")
        a(f"v_cndmask_b32 v{I1+i}, 0, v13, s[76:77]")
    a("v_bfe_u32 v12, v8, 2, 1")
    a("v_and_b32 v13, 1, v8")
    a("v_lshl_or_b32 v14, v12, 1, v13")
    a("v_lshlrev_b32 v15, 1, v11")
    a("v_sub_u32 v15, v14, v15")
    a("v_mov_b32 v26, 0x3f803f80")
    a("v_cmp_eq_u32 vcc, 0, v15")
    a("v_cmp_eq_u32 s[76:77], 1, v15")
    a("s_nop 1")
    a(f"v_cndmask_b32 v{AEXT}, 0, v26, vcc")
    a(f"v_cndmask_b32 v{AEXT+1}, 0, v26, s[76:77]")
    a(f"v_mov_b32 v{AEXT+3}, 0")
    a(f"v_mov_b32 v{BX0+3}, 0")
    a(f"v_mov_b32 v{BX1+3}, 0")
    a("v_bfe_u32 v15, v8, 1, 1")
    a("v_lshrrev_b32 v26, 3, v8")
    a("v_lshl_or_b32 v27, v26, 1, v15")
    a("v_lshl_or_b32 v27, v14, 3, v27")
    a(f"s_lshl_b32 s3, s{sW}, 7")
    a(f"s_add_u32 s3, s3, {REC+2}")
    a(f"v_lshl_add_u32 v{VE}, v27, 2, s3")
    a("v_and_b32 v28, 3, v27")
    a("v_lshrrev_b32 v27, 2, v27")
    a("v_lshl_or_b32 v27, v28, 3, v27")
    a("v_and_b32 v28, 7, v8")
    a("v_xor_b32 v28, v28, v11")
    a("v_lshlrev_b32 v28, 4, v28")
    a("v_lshl_add_u32 v27, v27, 7, v28")
    a(f"v_add_u32 v{RA}, s{sSLOT}, v27")
    for k in range(1, 4):
        a(f"v_xor_b32 v{RA+k}, {32*k}, v{RA}")
    a("v_bfe_u32 v27, v1, 4, 1")
    a("v_lshl_or_b32 v27, v11, 2, v27")
    a("v_and_b32 v28, 7, v1")
    a("v_xor_b32 v27, v27, v28")
    a(f"v_lshlrev_b32 v{CD0}, 4, v27")
    a(f"v_xor_b32 v{CD1}, 32, v{CD0}")
    a("v_lshrrev_b32 v27, 3, v1")
    a(f"s_sub_u32 s3, s3, 2")
    a(f"v_lshl_add_u32 v{VR4}, v27, 4, s3")
    a(f"s_lshl_b32 s3, s{sW}, 4")
    a(f"s_add_u32 s3, s3, {GN}")
    a(f"v_lshl_add_u32 v{VG}, v11, 3, s3")
    a(f"v_mov_b32 v{PM}, 0")
    a("s_waitcnt vmcnt(7)")
    stamp(a, 1, 1)
    def rec_masks():
        a(f"v_lshrrev_b32 v2, 16, v{OFFW}")
        a("v_and_b32 v3, 3, v0")
        a("v_lshlrev_b32 v3, 1, v3")
        a(f"v_add_u32 v3, s{sCHUNK}, v3")
        a("v_sub_u32 v2, v2, v3")
        for j in range(8):
            a(f"v_cmp_lt_i32 s[{sVAL+2*j}:{sVAL+2*j+1}], {8*(j>>1)+(j&1)}, v2")
    def rec_loads():
        a(f"v_and_b32 v4, 0xffff, v{OFFW}")
        a("v_and_b32 v3, 3, v0")
        a("v_lshlrev_b32 v3, 1, v3")
        a(f"v_add3_u32 v4, v4, v3, s{sCHUNK}")
        a("v_lshrrev_b32 v3, 2, v0")
        a(f"v_mul_u32_u24 v3, {CH}, v3")
        a("v_add_lshl_u32 v4, v4, v3, 3")
        a("v_bfrev_b32 v3, 1")
        for r in range(4):
            a(f"s_or_b64 vcc, s[{sVAL+4*r}:{sVAL+4*r+1}], s[{sVAL+4*r+2}:{sVAL+4*r+3}]")
            a(f"v_cndmask_b32 v{48+r}, v3, v4, vcc")
            a(f"buffer_load_dwordx4 v[{32+4*r}:{35+4*r}], v{48+r}, s[{S_REC}:{S_REC+3}], 0 offen offset:{64*r}")
    rec_masks()
    rec_loads()
    a("s_waitcnt vmcnt(4) lgkmcnt(0)")
    a("s_barrier")
    stamp(a, 2, 1)
    a(f"v_lshrrev_b32 v2, 16, v{OFFW}")
    a("v_cmp_lt_u32 vcc, 32, v2")
    a("s_and_saveexec_b64 s[76:77], vcc")
    a("s_cbranch_execz K2_NOMAX")
    a(f"v_mov_b32 v3, {FLG}")
    a("ds_max_u32 v3, v2")
    a.label("K2_NOMAX")
    a("s_mov_b64 exec, -1")
    a("v_and_b32 v2, 15, v1")
    a("v_lshrrev_b32 v3, 2, v2")
    a("v_and_b32 v2, 3, v2")
    a("v_lshl_add_u32 v3, v7, 3, v3")
    a("v_lshlrev_b32 v3, 7, v3")
    a("v_lshl_add_u32 v3, v2, 3, v3")
    a(f"s_lshl_b32 s3, s{sFT}, 5")
    a(f"s_add_u32 s3, s3, {WU2}")
    a("v_add_u32 v3, s3, v3")
    for mtx in range(2):
        for ks in range(2):
            for h in range(2):
                r = 52 + 8*mtx + 4*ks + 2*h
                a(f"ds_read_b64_tr_b16 v[{r}:{r+1}], v3 offset:{8192 + 8192*mtx + (32*ks+4*h)*128}")
    a(f"s_mov_b32 s3, {NLOG2E:#x}")
    a("v_cmp_gt_u32 vcc, 32, v1")
    for j, bx in ((0, BX0), (1, BX1)):
        a(f"v_lshlrev_b32 v{24+j}, 16, v{24+j}")
        a(f"v_mul_f32 v{24+j}, s3, v{24+j}")
        a(f"v_cvt_pk_bf16_f32 v26, v{24+j}, v{24+j}")
        a("v_and_b32 v27, 0xffff0000, v26")
        a(f"v_sub_f32 v27, v{24+j}, v27")
        a("v_cvt_pk_bf16_f32 v27, v27, v27")
        a(f"v_cndmask_b32 v26, v27, v26, vcc")
        a(f"v_and_b32 v{bx+2}, 0xffff, v26")
    a("s_waitcnt lgkmcnt(0)")
    a("v_mfma_f32_16x16x32_bf16 v[68:71], v[52:55], v[16:19], 0")
    a(f"v_mfma_f32_16x16x32_bf16 {v(U,4)}, v[60:63], v[16:19], 0")
    a("v_mfma_f32_16x16x32_bf16 v[68:71], v[56:59], v[20:23], v[68:71]")
    a(f"v_mfma_f32_16x16x32_bf16 {v(U,4)}, v[64:67], v[20:23], {v(U,4)}")
    a(f"s_lshl_b32 s76, s{sFT}, 6")
    a("v_lshlrev_b32 v6, 8, v5")
    a("v_lshl_add_u32 v6, v7, 4, v6")
    a("v_add_u32 v6, s76, v6")
    a("s_nop 4")
    for r in range(4):
        a(f"v_mul_f32 v{68+r}, s3, v{68+r}")
    for r in range(4):
        a(f"v_cvt_pk_bf16_f32 v{72+r}, v{68+r}, v{68+r}")
        a(f"v_and_b32 v{72+r}, 0xffff0000, v{72+r}")
        a(f"v_sub_f32 v{76+r}, v{68+r}, v{72+r}")
        a(f"v_cvt_pk_bf16_f32 v{68+r}, v{68+r}, v{76+r}")
        a(f"v_and_b32 v{76+r}, 0xffff0000, v{68+r}")
        a(f"v_add_f32 v{72+r}, v{72+r}, v{76+r}")
    a(f"ds_write_b128 v6, v[68:71] offset:{BP}")
    for r in range(4):
        a(f"v_exp_f32 v{76+r}, v{72+r}")
    a("s_nop 0")
    for r in range(4):
        a(f"v_add_f32 v{76+r}, 1.0, v{76+r}")
    for r in range(4):
        a(f"v_rcp_f32 v{76+r}, v{76+r}")
    a("s_nop 0")
    for r in range(4):
        a(f"v_mul_f32 v{72+r}, v{72+r}, v{76+r}")
    a(f"ds_write_b128 v6, v[72:75] offset:{FT}")
    a.label("K2_PASS")
    a("s_waitcnt vmcnt(0)")
    stamp(a, 3, 1)
    a("v_mov_b32 v2, 1")
    for j in range(8):
        w1 = 32 + 2*j + 1
        a(f"s_mov_b64 exec, s[{sVAL+2*j}:{sVAL+2*j+1}]")
        a(f"v_lshlrev_b32 v{w1}, 2, v{w1}")
        a(f"v_add_u32 v3, {CNT}, v{w1}")
        a(f"ds_add_rtn_u32 v{52+j}, v3, v2")
    a("s_mov_b64 exec, -1")
    a("v_lshlrev_b32 v4, 2, v1")
    a(f"v_add_u32 v3, {CNT}, v4")
    a("s_waitcnt lgkmcnt(0)")
    a("s_barrier")
    stamp(a, 4, 1)
    a("ds_read_b32 v8, v3")
    a("s_waitcnt lgkmcnt(0)")
    a("v_add_u32 v9, 7, v8")
    a("v_lshrrev_b32 v9, 3, v9")
    a("v_mov_b32 v10, v9")
    a("s_nop 1")
    scan64(a, 10)
    a(f"v_readlane_b32 s{sG}, v10, 63")
    a("v_sub_u32 v11, v10, v9")
    a(f"v_lshlrev_b32 v{SB}, 5, v11")
    a(f"v_add_u32 v{SB}, {REC}, v{SB}")
    for j in range(8):
        a(f"ds_bpermute_b32 v{60+j}, v{32+2*j+1}, v{SB}")
    a("v_lshlrev_b32 v12, 3, v9")
    a("v_sub_u32 v13, v12, v8")
    a(f"v_cmp_ge_u32 vcc, {CAPG}, v10")
    a("v_lshlrev_b32 v14, 2, v5")
    a("s_nop 0")
    a("v_cndmask_b32 v13, 0, v13, vcc")
    a("v_cvt_f32_u32 v15, v13")
    a("ds_bpermute_b32 v15, v14, v15")
    a(f"ds_read_b128 v[72:75], v6 offset:{FT}")
    a(f"s_mov_b32 s3, {REC + CAP*4}")
    a("s_waitcnt lgkmcnt(2)")
    for j in range(8):
        a(f"v_lshl_add_u32 v{60+j}, v{52+j}, 2, v{60+j}")
        a(f"v_cmp_gt_u32 vcc, s3, v{60+j}")
        a(f"s_and_b64 exec, vcc, s[{sVAL+2*j}:{sVAL+2*j+1}]")
        a(f"s_andn2_b64 s[{sVAL+2*j}:{sVAL+2*j+1}], s[{sVAL+2*j}:{sVAL+2*j+1}], vcc")
        a(f"ds_write_b32 v{60+j}, v{32+2*j}")
        a("s_mov_b64 exec, -1")
    a("v_mov_b32 v16, 0xffff")
    a(f"v_cmp_lt_u32 vcc, s{sW}, v13")
    a(f"v_add_u32 v17, s{sW}, v8")
    a(f"v_lshl_add_u32 v17, v17, 2, v{SB}")
    a("s_mov_b64 exec, vcc")
    a("ds_write_b32 v17, v16")
    a("s_mov_b64 exec, -1")
    a(f"s_mov_b32 s3, s{sW}")
    a("v_lshlrev_b32 v18, 8, v1")
    a.label("K2_GNL")
    a("v_add_u32 v17, s3, v11")
    a("v_cmp_lt_u32 vcc, s3, v9")
    a(f"v_mov_b32 v19, {CAPG}")
    a("v_cmp_lt_u32 s[76:77], v17, v19")
    a("s_cbranch_vccz K2_GND")
    a("s_and_b64 exec, vcc, s[76:77]")
    a("v_lshlrev_b32 v17, 2, v17")
    a(f"v_add_u32 v17, {GN}, v17")
    a("ds_write_b32 v17, v18")
    a("s_mov_b64 exec, -1")
    a("s_add_u32 s3, s3, 16")
    a("s_branch K2_GNL")
    a.label("K2_GND")
    a(f"s_min_u32 s76, s{sG}, {CAPG}")
    a(f"s_add_u32 s{sT}, s76, 3")
    a(f"s_lshr_b32 s{sT}, s{sT}, 2")
    a(f"s_cmp_lg_u32 s{sW}, 15")
    a("s_cbranch_scc1 K2_NOPAD")
    a(f"s_lshl_b32 s77, s{sT}, 5")
    a("s_lshl_b32 s78, s76, 3")
    a("v_add_u32 v17, s78, v1")
    a("v_cmp_gt_u32 vcc, s77, v17")
    a("v_lshlrev_b32 v17, 2, v17")
    a(f"v_add_u32 v17, {REC}, v17")
    a("s_mov_b64 exec, vcc")
    a("ds_write_b32 v17, v16")
    a("s_mov_b64 exec, -1")
    a(f"s_lshl_b32 s77, s{sT}, 2")
    a("v_add_u32 v17, s76, v1")
    a("v_cmp_gt_u32 vcc, s77, v17")
    a("v_lshlrev_b32 v17, 2, v17")
    a(f"v_add_u32 v17, {GN}, v17")
    a(f"v_mov_b32 v18, {63*256}")
    a("s_mov_b64 exec, vcc")
    a("ds_write_b32 v17, v18")
    a("s_mov_b64 exec, -1")
    a.label("K2_NOPAD")
    a("s_waitcnt lgkmcnt(0)")
    for r in range(4):
        a(f"v_mul_f32 v{72+r}, -v15, v{72+r}")
    for r in range(4):
        a(f"ds_add_f32 v6, v{72+r} offset:{AGG+4*r}")
    a(f"s_mov_b32 s{st}, s{sW}")
    a("s_waitcnt lgkmcnt(0)")
    a("s_barrier")
    stamp(a, 5, 1)
    a(f"s_cmp_lg_u32 s{sMODE}, 0")
    a("s_cbranch_scc1 K2_SLOWLOOP")
    mainloop(a, "F", False)
    a("v_mov_b32 v2, 0x5f800000")
    a(f"v_cmp_nlt_f32 vcc, v{PM}, v2")
    a("s_and_saveexec_b64 s[76:77], vcc")
    a("s_cbranch_execz K2_NOOVF")
    a(f"v_mov_b32 v3, {FLG+4}")
    a("v_mov_b32 v2, 1")
    a("ds_write_b32 v3, v2")
    a.label("K2_NOOVF")
    a("s_mov_b64 exec, -1")
    a.label("K2_AFTER")
    stamp(a, 6, 1)
    a(f"s_lshl_b32 s3, s{sNT}, 4")
    a("v_and_b32 v5, 15, v1")
    a("v_add_u32 v5, s3, v5")
    a("v_lshrrev_b32 v7, 4, v1")
    a(f"v_mov_b32 v3, {FLG}")
    a("v_lshlrev_b32 v8, 8, v5")
    a("v_lshl_add_u32 v8, v7, 5, v8")
    a("v_and_b32 v2, 15, v1")
    a("v_lshrrev_b32 v4, 2, v2")
    a("v_and_b32 v2, 3, v2")
    a("v_lshl_add_u32 v4, v7, 3, v4")
    a("v_lshlrev_b32 v4, 7, v4")
    a("v_lshl_add_u32 v4, v2, 3, v4")
    a(f"s_lshl_b32 s3, s{sFT}, 5")
    a(f"s_add_u32 s3, s3, {WU2}")
    a("v_add_u32 v4, s3, v4")
    for ks in range(2):
        for h in range(2):
            r = 52 + 4*ks + 2*h
            a(f"ds_read_b64_tr_b16 v[{r}:{r+1}], v4 offset:{(32*ks+4*h)*128}")
    a("s_waitcnt lgkmcnt(0)")
    a("s_barrier")
    stamp(a, 7, 1)
    a("ds_read_b64 v[10:11], v3")
    for ks in range(2):
        for h in range(2):
            r = 16 + 8*ks + 4*h
            a(f"ds_read_b128 v[{r}:{r+3}], v8 offset:{AGG + 128*ks + 16*h}")
    a("s_waitcnt lgkmcnt(4)")
    a("v_readfirstlane_b32 s76, v10")
    a("v_readfirstlane_b32 s77, v11")
    a(f"s_cmp_gt_u32 s{sG}, {CAPG}")
    a("s_cbranch_scc1 K2_RETRY")
    a(f"s_add_u32 s3, s{sCHUNK}, 32")
    a("s_cmp_gt_u32 s76, s3")
    a("s_cbranch_scc1 K2_NEXTCHUNK")
    a(f"s_andn2_b32 s77, s77, s{sMODE}")
    a("s_cbranch_scc1 K2_GOSLOW")
    a(f"s_mov_b32 s3, {NLN2:#x}")
    a("s_waitcnt lgkmcnt(0)")
    for r in range(16):
        a(f"v_mul_f32 v{16+r}, s3, v{16+r}")
    for r in range(8):
        a(f"v_cvt_pk_bf16_f32 v{32+r}, v{16+2*r}, v{17+2*r}")
    a("s_nop 1")
    a(f"v_mfma_f32_16x16x32_bf16 {v(U,4)}, v[52:55], v[32:35], {v(U,4)}")
    a(f"v_mfma_f32_16x16x32_bf16 {v(U,4)}, v[56:59], v[36:39], {v(U,4)}")
    a(f"v_add_u32 v6, s{sNODE0}, v5")
    a("v_lshlrev_b32 v6, 7, v6")
    a("v_lshl_add_u32 v6, v7, 3, v6")
    a(f"s_lshl_b32 s76, s{sFT}, 5")
    a(f"v_cmp_gt_u32 vcc, {NPB}, v5")
    a(f"s_mov_b32 s3, {NLOG2E:#x}")
    a("s_nop 3")
    for r in range(4):
        a(f"v_mul_f32 v{16+r}, s3, v{U+r}")
    for r in range(4):
        a(f"v_exp_f32 v{16+r}, v{16+r}")
    a("s_nop 0")
    for r in range(4):
        a(f"v_add_f32 v{16+r}, 1.0, v{16+r}")
    for r in range(4):
        a(f"v_rcp_f32 v{16+r}, v{16+r}")
    a("s_nop 0")
    for r in range(4):
        a(f"v_mul_f32 v{16+r}, v{U+r}, v{16+r}")
    a("v_cvt_pk_bf16_f32 v20, v16, v17")
    a("v_cvt_pk_bf16_f32 v21, v18, v19")
    a("s_mov_b64 exec, vcc")
    a(f"buffer_store_dwordx2 v[20:21], v6, s[{S_OUT}:{S_OUT+3}], s76 offen")
    stamp(a, 8, 1)
    if STAMP:
        a("s_waitcnt vmcnt(0)")
        stamp(a, 9, 1)
        a("s_mov_b32 s90, s94")
        a(f"s_mov_b32 s91, s{sT}")
        stamp_flush(a, 12, 1, 14, 15, sW)
    a.label("K2_END")
    a("s_endpgm")
    a.label("K2_SLOWLOOP")
    mainloop(a, "S", True)
    a("s_branch K2_AFTER")
    a.label("K2_GOSLOW")
    a(f"s_mov_b32 s{sMODE}, 1")
    a(f"s_mov_b32 s{sCHUNK}, -32")
    a("s_waitcnt lgkmcnt(0)")
    a("s_barrier")
    for r in range(4): a(f"v_mov_b32 v{28+r}, 0")
    a("v_lshlrev_b32 v10, 4, v0")
    a(f"ds_write_b128 v10, v[28:31] offset:{AGG}")
    a.label("K2_NEXTCHUNK")
    a(f"s_add_u32 s{sCHUNK}, s{sCHUNK}, 32")
    rec_masks()
    a.label("K2_RETRY")
    a("s_waitcnt lgkmcnt(0)")
    rec_loads()
    a("v_mov_b32 v2, 0")
    a("v_lshlrev_b32 v3, 2, v1")
    a(f"v_add_u32 v3, {CNT}, v3")
    a("ds_write_b32 v3, v2")
    a("v_and_b32 v8, 31, v1")
    a("v_lshrrev_b32 v11, 5, v1")
    a("v_bfe_u32 v12, v8, 2, 1")
    a("v_and_b32 v13, 1, v8")
    a("v_lshl_or_b32 v14, v12, 1, v13")
    a("v_bfe_u32 v15, v8, 1, 1")
    a("v_lshrrev_b32 v26, 3, v8")
    a("v_lshl_or_b32 v27, v26, 1, v15")
    a("v_lshl_or_b32 v27, v14, 3, v27")
    a(f"s_lshl_b32 s3, s{sW}, 7")
    a(f"s_add_u32 s3, s3, {REC+2}")
    a(f"v_lshl_add_u32 v{VE}, v27, 2, s3")
    a("v_lshrrev_b32 v27, 3, v1")
    a(f"s_sub_u32 s3, s3, 2")
    a(f"v_lshl_add_u32 v{VR4}, v27, 4, s3")
    a(f"s_lshl_b32 s3, s{sW}, 4")
    a(f"s_add_u32 s3, s3, {GN}")
    a(f"v_lshl_add_u32 v{VG}, v11, 3, s3")
    a(f"s_lshl_b32 s76, s{sFT}, 6")
    a("v_lshlrev_b32 v6, 8, v5")
    a("v_lshl_add_u32 v6, v7, 4, v6")
    a("v_add_u32 v6, s76, v6")
    a("s_waitcnt lgkmcnt(0)")
    a("s_barrier")
    a("s_branch K2_PASS")

HEAD = open("standalone__mpnn_edge_mlp__graph.s.ref").read().split("; Override launch")[0]

def main(out):
    a = Asm()
    a.lines.append(HEAD.rstrip())
    a.lines.append(f"; @launch kernel=k1_kernel grid=({NP},1,1) block=(1024,1,1) lds=90112")
    a.lines.append(f"; @launch kernel=k2_kernel grid=({NB},1,1) block=(1024,1,1) lds={K2_LDS}")
    a('.amdgcn_target "amdgcn-amd-amdhsa--gfx950"')
    a(".text")
    for k, g in (("k1_kernel", gen_k1), ("k2_kernel", gen_k2)):
        a(f".globl {k}")
        a(".p2align 8")
        a(f".type {k},@function")
        g(a)
    a('.section .rodata,"a"')
    a(".p2align 6")
    a.lines.append(desc("k1_kernel", 80, 100).rstrip())
    a(".p2align 6")
    a.lines.append(desc("k2_kernel", 128, 100).rstrip())
    open(out, "w").write(a.text())

if __name__ == "__main__":
    main(sys.argv[1] if len(sys.argv) > 1 else "standalone__mpnn_edge_mlp__graph.s")
```

```python
import sys, os
sys.path.insert(0, os.path.dirname(__file__))
from asmlib import *

STAMP = int(os.environ.get("STAMP", "0"))

N = 12500; E = 800000
NP = 250; CH = 3200
NPB = 49; NB = 256
TROWS = 50
WS_TAB = 0; WS_OFF = 0x200000; WS_REC = 0x400000
WS_STAMP = 0x1000000
NLOG2E = 0xbfb8aa3b
NLN2 = 0xbf317218

def stamp(a, idx, kern):
    if not STAMP: return
    a(f"s_memtime s[96:97]")
    a(f"s_waitcnt lgkmcnt(0)")
    a(f"s_mov_b32 s{80+idx}, s96")

def stamp_flush(a, nst, kern, wsl, wsh, wave):
    if not STAMP: return
    a(f"s_memrealtime s[96:97]")
    a(f"s_waitcnt lgkmcnt(0)")
    a(f"s_mov_b32 s95, s96")
    a(f"s_lshl_b32 s98, s2, 4")
    a(f"s_add_u32 s98, s98, s{wave}")
    a(f"s_lshl_b32 s98, s98, 6")
    a(f"s_add_u32 s98, s98, {WS_STAMP + kern*0x100000}")
    a(f"s_mov_b64 exec, 1")
    a(f"v_mov_b32 v2, s98")
    for i in range(16):
        a(f"v_mov_b32 v3, s{80+i}")
        a(f"global_store_dword v2, v3, s[{wsl}:{wsh}] offset:{4*i}")
    a("s_waitcnt vmcnt(0)")

def gen_k1(a):
    HIST = 0; OFFS = 1024; W1L = 2048; RECS = 10240
    a.label("k1_kernel")
    a(f"s_cmp_ge_u32 s2, {NP}")
    a("s_cbranch_scc1 K1_END")
    a("s_load_dwordx8 s[4:11], s[0:1], 0")
    a("s_load_dwordx2 s[12:13], s[0:1], 32")
    a("s_load_dwordx2 s[14:15], s[0:1], 64")
    if STAMP:
        a("s_memrealtime s[94:95]")
    stamp(a, 0, 0)
    a("v_lshrrev_b32 v2, 6, v0")
    a("v_and_b32 v1, 63, v0")
    a("v_readfirstlane_b32 s16, v2")
    a(f"v_cmp_gt_u32 vcc, {CH//4}, v0")
    a("s_mov_b64 s[20:21], vcc")
    a(f"s_mul_i32 s17, s2, {CH*4}")
    a("v_lshlrev_b32 v3, 4, v0")
    a("v_add_u32 v2, s17, v3")
    a("v_lshrrev_b32 v34, 1, v2")
    a("s_cmp_ge_u32 s16, 4")
    a("s_cbranch_scc1 K1_NOZ")
    a("v_lshlrev_b32 v35, 2, v0")
    a("v_mov_b32 v36, 0")
    a(f"ds_write_b32 v35, v36 offset:{HIST}")
    a.label("K1_NOZ")
    a("s_waitcnt lgkmcnt(0)")
    if STAMP:
        a("s_mov_b32 s94, s94")
    a("s_cmp_ge_u32 s16, 13")
    a("s_cbranch_scc1 K1_NOLD")
    a("s_mov_b64 exec, s[20:21]")
    a("global_load_dwordx4 v[4:7], v2, s[10:11]")
    a("global_load_dwordx4 v[8:11], v2, s[8:9]")
    a("global_load_dwordx2 v[12:13], v34, s[6:7]")
    a("s_mov_b64 exec, -1")
    a.label("K1_NOLD")
    srd(a, 24, 4, 5, N*128)
    srd(a, 28, 12, 13, 129*128)
    srd(a, 32, 14, 15, N*128)
    a("s_lshr_b32 s18, s16, 2")
    a("s_and_b32 s19, s16, 3")
    a("s_lshl_b32 s3, s18, 4")
    a("v_and_b32 v60, 15, v1")
    a("v_add_u32 v60, s3, v60")
    a(f"s_mul_i32 s3, s2, {TROWS}")
    a("v_add_u32 v61, s3, v60")
    a("v_lshrrev_b32 v62, 4, v1")
    a("v_lshlrev_b32 v63, 7, v61")
    a("v_lshl_add_u32 v35, v62, 4, v63")
    a("buffer_load_dwordx4 v[36:39], v35, s[24:27], 0 offen")
    a("buffer_load_dwordx4 v[40:43], v35, s[24:27], 0 offen offset:64")
    a("s_cmp_ge_u32 s16, 8")
    a("s_cbranch_scc1 K1_NOW")
    a("s_lshl_b32 s3, s16, 10")
    a(f"s_add_u32 m0, s3, {W1L}")
    a("v_lshlrev_b32 v35, 4, v1")
    a("buffer_load_dwordx4 v35, s[28:31], s3 offen lds")
    a.label("K1_NOW")
    a("s_barrier")
    stamp(a, 1, 0)
    a("s_cmp_ge_u32 s16, 13")
    a("s_cbranch_scc1 K1_NORANK")
    a("s_mov_b64 exec, s[20:21]")
    a("s_waitcnt vmcnt(4)")
    stamp(a, 2, 0)
    a("v_mov_b32 v35, 1")
    a(f"s_movk_i32 s3, {-NPB}")
    for j in range(4):
        a(f"v_mul_u32_u24 v{14+j}, 5350, v{4+j}")
        a(f"v_lshrrev_b32 v{14+j}, 18, v{14+j}")
        a(f"v_mad_i32_i24 v{27+2*j}, v{14+j}, s3, v{4+j}")
        a(f"v_lshlrev_b32 v{14+j}, 2, v{14+j}")
        a(f"ds_add_rtn_u32 v{22+j}, v{14+j}, v35 offset:{HIST}")
    a("s_waitcnt vmcnt(2)")
    a("s_mov_b32 s3, 0xffff0000")
    a("v_lshl_or_b32 v26, v12, 16, v8")
    a("v_and_or_b32 v28, v12, s3, v9")
    a("v_lshl_or_b32 v30, v13, 16, v10")
    a("v_and_or_b32 v32, v13, s3, v11")
    a("s_mov_b64 exec, -1")
    a.label("K1_NORANK")
    a("s_waitcnt vmcnt(0) lgkmcnt(0)")
    a("s_barrier")
    stamp(a, 3, 0)
    a("v_lshlrev_b32 v3, 4, v1")
    a(f"ds_read_b128 v[56:59], v3 offset:{HIST}")
    a("v_and_b32 v64, 15, v1")
    a("v_lshrrev_b32 v65, 2, v64")
    a("v_and_b32 v64, 3, v64")
    a("v_lshl_add_u32 v65, v62, 3, v65")
    a("v_lshlrev_b32 v65, 7, v65")
    a("v_lshl_add_u32 v65, v64, 3, v65")
    a("s_lshl_b32 s3, s19, 5")
    a("v_add_u32 v65, s3, v65")
    for ks in range(2):
        for h in range(2):
            a(f"ds_read_b64_tr_b16 v[{44+4*ks+2*h}:{45+4*ks+2*h}], v65 offset:{W1L + (32*ks+4*h)*128}")
    a("s_waitcnt lgkmcnt(4)")
    a("v_add_u32 v66, v56, v57")
    a("v_add_u32 v67, v66, v58")
    a("v_add_u32 v68, v67, v59")
    a("v_mov_b32 v69, v68")
    a("s_nop 1")
    scan64(a, 69)
    a("v_sub_u32 v72, v69, v68")
    a("v_add_u32 v73, v72, v56")
    a("v_add_u32 v74, v72, v66")
    a("v_add_u32 v75, v72, v67")
    a(f"ds_write_b128 v3, v[72:75] offset:{OFFS}")
    a("s_cmp_lg_u32 s16, 15")
    a("s_cbranch_scc1 K1_NOOFF")
    for j in range(4):
        a(f"v_lshl_or_b32 v{76+j}, v{56+j}, 16, v{72+j}")
    a("s_lshl_b32 s3, s2, 10")
    a(f"s_add_u32 s3, s3, {WS_OFF}")
    a("v_add_u32 v3, s3, v3")
    a("global_store_dwordx4 v3, v[76:79], s[14:15]")
    a.label("K1_NOOFF")
    a("s_cmp_ge_u32 s16, 13")
    a("s_cbranch_scc1 K1_NOPLACE")
    a("s_mov_b64 exec, s[20:21]")
    for j in range(4):
        a(f"ds_read_b32 v{4+j}, v{14+j} offset:{OFFS}")
    for j in range(4):
        a(f"s_waitcnt lgkmcnt({3-j})" if j == 0 else f"s_waitcnt lgkmcnt(3)")
        a(f"v_add_lshl_u32 v{4+j}, v{4+j}, v{22+j}, 3")
        a(f"ds_write_b64 v{4+j}, v[{26+2*j}:{27+2*j}] offset:{RECS}")
    a("s_mov_b64 exec, -1")
    a.label("K1_NOPLACE")
    a("s_waitcnt lgkmcnt(0)")
    a("v_mfma_f32_16x16x32_bf16 v[52:55], v[44:47], v[36:39], 0")
    a("v_mfma_f32_16x16x32_bf16 v[52:55], v[48:51], v[40:43], v[52:55]")
    a("s_barrier")
    stamp(a, 4, 0)
    a("s_cmp_ge_u32 s16, 13")
    a("s_cbranch_scc1 K1_NOCOPY")
    a("s_mov_b64 exec, s[20:21]")
    a("v_lshlrev_b32 v3, 4, v0")
    a(f"ds_read_b128 v[4:7], v3 offset:{RECS}")
    a(f"ds_read_b128 v[8:11], v3 offset:{RECS + CH*4}")
    a(f"s_mul_i32 s3, s2, {CH*8}")
    a(f"s_add_u32 s3, s3, {WS_REC}")
    a("v_add_u32 v3, s3, v3")
    a(f"v_add_u32 v12, {CH*4}, v3")
    a("s_waitcnt lgkmcnt(1)")
    a("global_store_dwordx4 v3, v[4:7], s[14:15]")
    a("s_waitcnt lgkmcnt(0)")
    a("global_store_dwordx4 v12, v[8:11], s[14:15]")
    a("s_mov_b64 exec, -1")
    a.label("K1_NOCOPY")
    a(f"s_mov_b32 s3, {NLOG2E:#x}")
    a("s_nop 4")
    for r in range(4):
        a(f"v_mul_f32 v{52+r}, s3, v{52+r}")
    a("v_cvt_pk_bf16_f32 v56, v52, v53")
    a("v_cvt_pk_bf16_f32 v57, v54, v55")
    a("s_lshl_b32 s3, s19, 5")
    a("v_lshl_add_u32 v63, v62, 3, v63")
    a("v_add_u32 v63, s3, v63")
    a(f"v_cmp_gt_u32 vcc, {TROWS}, v60")
    a("s_and_saveexec_b64 s[22:23], vcc")
    a("buffer_store_dwordx2 v[56:57], v63, s[32:35], 0 offen")
    stamp(a, 5, 0)
    if STAMP:
        a("s_waitcnt vmcnt(0)")
        stamp(a, 6, 0)
        a("s_mov_b32 s87, s94")
        stamp_flush(a, 8, 0, 14, 15, 16)
    a.label("K1_END")
    a("s_endpgm")

RS = 528
AGG = 0; BP = 64*RS; REC = 128*RS; CAP = 4096; CAPG = CAP // 8
CNT = REC + CAP*4; FLG = CNT + 256; GN = CNT + 512; WU2 = GN + 2560; STG = WU2 + 8192
K2_LDS = STG + 65536
assert STG % 128 == 0 and K2_LDS <= 163840
D0 = 16; D1 = 32; X = 48; A = 64; AEXT = 80; BX0 = 84; BX1 = 88; I0 = 92; I1 = 96
RA = 100; R4 = 104; U = 108; VR4 = 112; VE = 113; VG = 114; CD0 = 115; CD1 = 116; L4 = 117
FA = 118; FAN = 120; GNR = 122; PM = 124; OFFW = 126; SB = 125;
NN = 2; PA = 4; PB = 6; RR = 8; OUT = 10; VO = 14
S_X = 16; S_WM = 20; S_WU = 24; S_OUT = 28; S_TAB = 32; S_OFF = 36; S_REC = 40
sB = 44; sNODE0 = 45; sW = 46; sSLOT = 47; sT = 48; st = 49; sCHUNK = 50; sMODE = 51; sG = 52; sNT = 53; sFT = 54; s128 = 55
sTN = 56; sTMP = 57; sONE = 58
sVAL = 60

def P(r): return f"v[{r}:{r+1}]"

def mfma3(Dn, j):
    bx = BX0 if j == 0 else BX1
    return [f"v_mfma_f32_32x32x16_bf16 {v(Dn,16)}, {v(AEXT,4)}, {v(bx,4)}, 0",
            f"v_mfma_f32_32x32x16_bf16 {v(Dn,16)}, {v(A+8*j,4)}, {v(I0,4)}, {v(Dn,16)}",
            f"v_mfma_f32_32x32x16_bf16 {v(Dn,16)}, {v(A+8*j+4,4)}, {v(I1,4)}, {v(Dn,16)}"]

def xphase(a, Dc, mf):
    ex = [f"v_exp_f32 v{X+r}, v{Dc+r}" for r in range(16)]
    if mf:
        seq = [mf[0]] + ex[0:4] + [mf[1]] + ex[4:8] + [mf[2]] + ex[8:16]
    else:
        seq = ex
    for l in seq: a(l)

def fphase(a, Dc, off, slow, mid=None):
    if not slow:
        a(f"v_pk_add_f32 {P(PA)}, {P(X)}, s[{sONE}:{sONE+1}]")
        cur, nxt = PA, PB
        for q in range(1, 8):
            src = Dc if q == 1 else NN
            a(f"v_pk_fma_f32 {P(NN)}, {P(src)}, {P(X+2*q)}, {P(src)}")
            a(f"v_pk_fma_f32 {P(nxt)}, {P(cur)}, {P(X+2*q)}, {P(cur)}")
            a(f"v_pk_fma_f32 {P(NN)}, {P(Dc+2*q)}, {P(cur)}, {P(NN)}")
            cur, nxt = nxt, cur
            if q == 3 and mid: mid()
        a(f"v_rcp_f32 v{RR}, v{cur}")
        a(f"v_rcp_f32 v{RR+1}, v{cur+1}")
        a(f"v_max3_f32 v{PM}, v{cur}, v{cur+1}, v{PM}")
        a(f"v_pk_mul_f32 {P(OUT)}, {P(NN)}, {P(RR)}")
    else:
        for q in range(8):
            a(f"v_pk_add_f32 {P(X+2*q)}, {P(X+2*q)}, s[{sONE}:{sONE+1}]")
        if mid: mid()
        for r in range(16):
            a(f"v_rcp_f32 v{X+r}, v{X+r}")
        a("s_nop 0")
        a(f"v_pk_mul_f32 {P(OUT)}, {P(Dc)}, {P(X)}")
        for q in range(1, 8):
            a(f"v_pk_fma_f32 {P(OUT)}, {P(Dc+2*q)}, {P(X+2*q)}, {P(OUT)}")
    a(f"v_cvt_f64_f32 {P(OUT+2)}, v{OUT+1}")
    a(f"v_cvt_f64_f32 {P(OUT)}, v{OUT}")
    a(f"ds_add_f64 v{FA+1}, {P(OUT+2)} offset:{AGG+off}")
    a(f"ds_add_f64 v{FA}, {P(OUT)} offset:{AGG+off}")

def dma4(a):
    for i in range(4):
        a(f"s_add_u32 m0, s{sSLOT}, {i*1024}")
        a(f"v_mad_u32_u16 v{VO+(i&1)}, v{R4+i}, s{s128}, v{CD0+(i&1)}")
        a(f"buffer_load_dwordx4 v{VO+(i&1)}, s[{S_TAB}:{S_TAB+3}], 0 offen lds")

def aread(a):
    for k in range(4):
        a(f"ds_read_b128 {v(A+4*k,4)}, v{RA+k}")

def bext(a, fa):
    a(f"ds_read_b32 v{BX0}, v{fa} offset:{BP}")
    a(f"ds_read_b32 v{BX0+1}, v{fa+1} offset:{BP}")
    a(f"ds_read_b32 v{BX1}, v{fa} offset:{BP+256}")
    a(f"ds_read_b32 v{BX1+1}, v{fa+1} offset:{BP+256}")

def mainloop(a, tag, slow):
    L = lambda x: f"K2_{tag}_{x}"
    a(f"s_cmp_ge_u32 s{st}, s{sT}")
    a(f"s_cbranch_scc1 {L('DONE')}")
    a(f"ds_read_b128 {v(R4,4)}, v{VR4}")
    a(f"ds_read_b64 {P(GNR)}, v{VG}")
    a(f"ds_read_u16 v{AEXT+2}, v{VE}")
    a("s_waitcnt lgkmcnt(2)")
    dma4(a)
    a(f"ds_read_b128 {v(R4,4)}, v{VR4} offset:2048")
    a("s_waitcnt lgkmcnt(2)")
    a(f"v_add_u32 v{FA}, v{GNR}, v{L4}")
    a(f"v_add_u32 v{FA+1}, v{GNR+1}, v{L4}")
    bext(a, FA)
    a("s_waitcnt vmcnt(0)")
    aread(a)
    a("s_waitcnt lgkmcnt(0)")
    a(f"s_add_u32 s{sTN}, s{st}, 16")
    a(f"s_cmp_ge_u32 s{sTN}, s{sT}")
    a(f"s_cbranch_scc1 {L('P1')}")
    dma4(a)
    a.label(L('P1'))
    for m in mfma3(D0, 0): a(m)
    a("s_nop 7")
    a("s_nop 3")
    a.label(L('LOOP'))
    a(f"s_add_u32 s{sTN}, s{st}, 16")
    a(f"s_cmp_ge_u32 s{sTN}, s{sT}")
    a(f"s_cbranch_scc1 {L('TAIL')}")
    xphase(a, D0, mfma3(D1, 1))
    a("s_waitcnt vmcnt(0)")
    aread(a)
    a(f"ds_read_b64 {P(GNR)}, v{VG} offset:256")
    a(f"ds_read_u16 v{AEXT+2}, v{VE} offset:2048")
    a(f"ds_read_b128 {v(R4,4)}, v{VR4} offset:4096")
    def mid():
        a("s_waitcnt lgkmcnt(0)")
        a(f"v_add_u32 v{FAN}, v{GNR}, v{L4}")
        a(f"v_add_u32 v{FAN+1}, v{GNR+1}, v{L4}")
        bext(a, FAN)
        a(f"s_add_u32 s{sTMP}, s{st}, 32")
        a(f"s_cmp_ge_u32 s{sTMP}, s{sT}")
        a(f"s_cbranch_scc1 {L('NOD')}")
        dma4(a)
        a.label(L('NOD'))
    fphase(a, D0, 0, slow, mid)
    a("s_waitcnt lgkmcnt(2)")
    xphase(a, D1, mfma3(D0, 0))
    a(f"v_add_u32 v{VR4}, 2048, v{VR4}")
    a(f"v_add_u32 v{VE}, 2048, v{VE}")
    a(f"v_add_u32 v{VG}, 256, v{VG}")
    fphase(a, D1, 256, slow)
    a(f"v_mov_b32 v{FA}, v{FAN}")
    a(f"v_mov_b32 v{FA+1}, v{FAN+1}")
    a(f"s_mov_b32 s{st}, s{sTN}")
    a(f"s_branch {L('LOOP')}")
    a.label(L('TAIL'))
    xphase(a, D0, mfma3(D1, 1))
    fphase(a, D0, 0, slow)
    xphase(a, D1, None)
    fphase(a, D1, 256, slow)
    a.label(L('DONE'))

def gen_k2(a):
    a.label("k2_kernel")
    a(f"s_cmp_ge_u32 s2, {NB}")
    a("s_cbranch_scc1 K2_END")
    a("s_load_dwordx2 s[14:15], s[0:1], 64")
    a("s_load_dwordx2 s[4:5], s[0:1], 0")
    a("s_load_dwordx4 s[8:11], s[0:1], 32")
    a("s_load_dwordx2 s[12:13], s[0:1], 48")
    if STAMP:
        a("s_memrealtime s[94:95]")
    stamp(a, 0, 1)
    a("v_lshrrev_b32 v2, 6, v0")
    a("v_and_b32 v1, 63, v0")
    a(f"v_readfirstlane_b32 s{sW}, v2")
    a("s_and_b32 s3, s2, 7")
    a("s_lshl_b32 s3, s3, 5")
    a(f"s_lshr_b32 s{sB}, s2, 3")
    a(f"s_add_u32 s{sB}, s{sB}, s3")
    a(f"s_mul_i32 s{sNODE0}, s{sB}, {NPB}")
    a("v_lshrrev_b32 v2, 2, v0")
    a("v_lshlrev_b32 v3, 10, v2")
    a(f"s_lshl_b32 s3, s{sB}, 2")
    a("s_waitcnt lgkmcnt(0)")
    srd(a, S_OFF, 14, 15, NP*1024, WS_OFF)
    a(f"buffer_load_dword v{OFFW}, v3, s[{S_OFF}:{S_OFF+3}], s3 offen")
    srd(a, S_TAB, 14, 15, N*128, WS_TAB)
    a("s_lshr_b32 s3, s2, 3")
    a("s_mul_i32 s3, s3, 50048")
    a("v_min_u32 v4, 781, v0")
    a("v_lshlrev_b32 v4, 6, v4")
    a(f"buffer_load_dword v127, v4, s[{S_TAB}:{S_TAB+3}], s3 offen")
    srd(a, S_WM, 8, 9, 129*128)
    srd(a, S_WU, 10, 11, 128*128)
    srd(a, S_X, 4, 5, N*128)
    a("v_lshlrev_b32 v4, 4, v1")
    a(f"s_lshl_b32 s3, s{sW}, 10")
    a(f"s_add_u32 m0, s3, {STG}")
    a(f"s_cmp_ge_u32 s{sW}, 8")
    a("s_cbranch_scc1 K2_W1")
    a("s_add_u32 s3, s3, 8192")
    a(f"buffer_load_dwordx4 v4, s[{S_WM}:{S_WM+3}], s3 offen lds")
    a(f"s_add_u32 m0, s3, {WU2 - 8192}")
    a("s_nop 0")
    a(f"buffer_load_dwordx4 v4, s[{S_WU}:{S_WU+3}], s3 offen lds")
    a("s_branch K2_W2")
    a.label("K2_W1")
    a("s_sub_u32 s3, s3, 8192")
    a(f"buffer_load_dwordx4 v4, s[{S_WU}:{S_WU+3}], s3 offen lds")
    a(f"buffer_load_dword v127, v4, s[{S_WU}:{S_WU+3}], s3 offen")
    a.label("K2_W2")
    a(f"s_lshr_b32 s{sNT}, s{sW}, 2")
    a(f"s_and_b32 s{sFT}, s{sW}, 3")
    a(f"s_lshl_b32 s3, s{sNT}, 4")
    a("v_and_b32 v5, 15, v1")
    a("v_add_u32 v5, s3, v5")
    a(f"v_add_u32 v6, s{sNODE0}, v5")
    a("v_lshrrev_b32 v7, 4, v1")
    a("v_lshlrev_b32 v6, 7, v6")
    a("v_lshl_add_u32 v6, v7, 4, v6")
    a(f"buffer_load_dwordx4 v[16:19], v6, s[{S_X}:{S_X+3}], 0 offen")
    a(f"buffer_load_dwordx4 v[20:23], v6, s[{S_X}:{S_X+3}], 0 offen offset:64")
    a("v_and_b32 v8, 31, v1")
    a("v_lshlrev_b32 v9, 1, v8")
    a("s_movk_i32 s3, 0x4000")
    a(f"buffer_load_ushort v24, v9, s[{S_WM}:{S_WM+3}], s3 offen")
    a(f"buffer_load_ushort v25, v9, s[{S_WM}:{S_WM+3}], s3 offen offset:64")
    srd(a, S_REC, 14, 15, NP*CH*8, WS_REC)
    srd(a, S_OUT, 12, 13, N*128)
    a(f"s_mov_b32 s{sMODE}, 0")
    a(f"s_mov_b32 s{sCHUNK}, 0")
    a(f"s_movk_i32 s{s128}, 128")
    a(f"s_mov_b32 s{sONE}, 1.0")
    a(f"s_mov_b32 s{sONE+1}, 1.0")
    a(f"s_lshl_b32 s{sSLOT}, s{sW}, 12")
    a(f"s_add_u32 s{sSLOT}, s{sSLOT}, {STG}")
    for r in range(4): a(f"v_mov_b32 v{28+r}, 0")
    a("v_lshlrev_b32 v10, 4, v0")
    a(f"ds_write_b128 v10, v[28:31] offset:{AGG}")
    a(f"ds_write_b128 v10, v[28:31] offset:{AGG+16384}")
    a("v_lshlrev_b32 v10, 3, v1")
    a(f"v_add_u32 v10, {CNT}, v10")
    a("ds_write_b64 v10, v[28:29]")
    a("v_lshrrev_b32 v11, 5, v1")
    a(f"v_lshlrev_b32 v{L4}, 3, v8")
    a("v_lshlrev_b32 v12, 3, v11")
    a("v_sub_u32 v12, v8, v12")
    a("v_and_b32 v13, 1, v12")
    a("v_lshlrev_b32 v13, 4, v13")
    a("v_mov_b32 v14, 0x3f80")
    a("v_lshlrev_b32 v13, v13, v14")
    a("v_ashrrev_i32 v12, 1, v12")
    for i in range(4):
        a(f"v_cmp_eq_u32 vcc, {i}, v12")
        a(f"v_cmp_eq_u32 s[76:77], {8+i}, v12")
        a("s_nop 1")
        a(f"v_cndmask_b32_e64 v{I0+i}, 0, v13, vcc")
        a(f"v_cndmask_b32 v{I1+i}, 0, v13, s[76:77]")
    a("v_bfe_u32 v12, v8, 2, 1")
    a("v_and_b32 v13, 1, v8")
    a("v_lshl_or_b32 v14, v12, 1, v13")
    a("v_lshlrev_b32 v15, 1, v11")
    a("v_sub_u32 v15, v14, v15")
    a("v_mov_b32 v26, 0x3f803f80")
    a("v_cmp_eq_u32 vcc, 0, v15")
    a("v_cmp_eq_u32 s[76:77], 1, v15")
    a("s_nop 1")
    a(f"v_cndmask_b32_e64 v{AEXT}, 0, v26, vcc")
    a(f"v_cndmask_b32 v{AEXT+1}, 0, v26, s[76:77]")
    a(f"v_mov_b32 v{AEXT+3}, 0")
    a(f"v_mov_b32 v{BX0+3}, 0")
    a(f"v_mov_b32 v{BX1+3}, 0")
    a("v_bfe_u32 v15, v8, 1, 1")
    a("v_lshrrev_b32 v26, 3, v8")
    a("v_lshl_or_b32 v27, v26, 1, v15")
    a("v_lshl_or_b32 v27, v14, 3, v27")
    a(f"s_lshl_b32 s3, s{sW}, 7")
    a(f"s_add_u32 s3, s3, {REC+2}")
    a(f"v_lshl_add_u32 v{VE}, v27, 2, s3")
    a("v_and_b32 v28, 3, v27")
    a("v_lshrrev_b32 v27, 2, v27")
    a("v_lshl_or_b32 v27, v28, 3, v27")
    a("v_and_b32 v28, 7, v8")
    a("v_xor_b32 v28, v28, v11")
    a("v_lshlrev_b32 v28, 4, v28")
    a("v_lshl_add_u32 v27, v27, 7, v28")
    a(f"v_add_u32 v{RA}, s{sSLOT}, v27")
    for k in range(1, 4):
        a(f"v_xor_b32 v{RA+k}, {32*k}, v{RA}")
    a("v_bfe_u32 v27, v1, 4, 1")
    a("v_lshl_or_b32 v27, v11, 2, v27")
    a("v_and_b32 v28, 7, v1")
    a("v_xor_b32 v27, v27, v28")
    a(f"v_lshlrev_b32 v{CD0}, 4, v27")
    a(f"v_xor_b32 v{CD1}, 32, v{CD0}")
    a("v_lshrrev_b32 v27, 3, v1")
    a(f"s_sub_u32 s3, s3, 2")
    a(f"v_lshl_add_u32 v{VR4}, v27, 4, s3")
    a(f"s_lshl_b32 s3, s{sW}, 4")
    a(f"s_add_u32 s3, s3, {GN}")
    a(f"v_lshl_add_u32 v{VG}, v11, 3, s3")
    a(f"v_mov_b32 v{PM}, 0")
    a("s_waitcnt vmcnt(7)")
    stamp(a, 1, 1)
    def rec_masks():
        a(f"v_lshrrev_b32 v2, 16, v{OFFW}")
        a("v_and_b32 v3, 3, v0")
        a("v_lshlrev_b32 v3, 1, v3")
        a(f"v_add_u32 v3, s{sCHUNK}, v3")
        a("v_sub_u32 v2, v2, v3")
        for j in range(8):
            a(f"v_cmp_lt_i32 s[{sVAL+2*j}:{sVAL+2*j+1}], {8*(j>>1)+(j&1)}, v2")
    def rec_loads():
        a(f"v_and_b32 v4, 0xffff, v{OFFW}")
        a("v_and_b32 v3, 3, v0")
        a("v_lshlrev_b32 v3, 1, v3")
        a(f"v_add3_u32 v4, v4, v3, s{sCHUNK}")
        a("v_lshrrev_b32 v3, 2, v0")
        a(f"v_mul_u32_u24 v3, {CH}, v3")
        a("v_add_lshl_u32 v4, v4, v3, 3")
        a("v_bfrev_b32 v3, 1")
        for r in range(4):
            a(f"s_or_b64 s[76:77], s[{sVAL+4*r}:{sVAL+4*r+1}], s[{sVAL+4*r+2}:{sVAL+4*r+3}]")
            a(f"v_cndmask_b32 v{48+r}, v3, v4, s[76:77]")
            a(f"buffer_load_dwordx4 v[{32+4*r}:{35+4*r}], v{48+r}, s[{S_REC}:{S_REC+3}], 0 offen offset:{64*r}")
    rec_masks()
    rec_loads()
    a("s_waitcnt vmcnt(4) lgkmcnt(0)")
    a("s_barrier")
    stamp(a, 2, 1)
    a(f"v_lshrrev_b32 v2, 16, v{OFFW}")
    a("v_cmp_lt_u32 vcc, 32, v2")
    a("s_and_saveexec_b64 s[76:77], vcc")
    a("s_cbranch_execz K2_NOMAX")
    a(f"v_mov_b32 v3, {FLG}")
    a("ds_max_u32 v3, v2")
    a.label("K2_NOMAX")
    a("s_mov_b64 exec, -1")
    a("v_and_b32 v2, 15, v1")
    a("v_lshrrev_b32 v3, 2, v2")
    a("v_and_b32 v2, 3, v2")
    a("v_lshl_add_u32 v3, v7, 3, v3")
    a("v_lshlrev_b32 v3, 7, v3")
    a("v_lshl_add_u32 v3, v2, 3, v3")
    a(f"s_lshl_b32 s3, s{sFT}, 5")
    a(f"s_add_u32 s3, s3, {WU2}")
    a("v_add_u32 v3, s3, v3")
    for mtx in range(2):
        for ks in range(2):
            for h in range(2):
                r = 52 + 8*mtx + 4*ks + 2*h
                a(f"ds_read_b64_tr_b16 v[{r}:{r+1}], v3 offset:{8192 + 8192*mtx + (32*ks+4*h)*128}")
    a(f"s_mov_b32 s3, {NLOG2E:#x}")
    a("v_cmp_gt_u32 s[78:79], 32, v1")
    for j, bx in ((0, BX0), (1, BX1)):
        a(f"v_lshlrev_b32 v{24+j}, 16, v{24+j}")
        a(f"v_mul_f32 v{24+j}, s3, v{24+j}")
        a(f"v_cvt_pk_bf16_f32 v26, v{24+j}, v{24+j}")
        a("v_and_b32 v27, 0xffff0000, v26")
        a(f"v_sub_f32 v27, v{24+j}, v27")
        a("v_cvt_pk_bf16_f32 v27, v27, v27")
        a(f"v_cndmask_b32 v26, v27, v26, s[78:79]")
        a(f"v_and_b32 v{bx+2}, 0xffff, v26")
    a("s_waitcnt lgkmcnt(0)")
    a("v_mfma_f32_16x16x32_bf16 v[68:71], v[52:55], v[16:19], 0")
    a(f"v_mfma_f32_16x16x32_bf16 {v(U,4)}, v[60:63], v[16:19], 0")
    a("v_mfma_f32_16x16x32_bf16 v[68:71], v[56:59], v[20:23], v[68:71]")
    a(f"v_mfma_f32_16x16x32_bf16 {v(U,4)}, v[64:67], v[20:23], {v(U,4)}")
    a(f"s_lshl_b32 s76, s{sFT}, 7")
    a(f"v_mul_u32_u24 v6, {RS}, v5")
    a("v_lshl_add_u32 v6, v7, 5, v6")
    a("v_add_u32 v6, s76, v6")
    a("s_nop 4")
    for r in range(4):
        a(f"v_mul_f32 v{68+r}, s3, v{68+r}")
    for r in range(4):
        a(f"v_cvt_pk_bf16_f32 v{72+r}, v{68+r}, v{68+r}")
        a(f"v_and_b32 v{72+r}, 0xffff0000, v{72+r}")
        a(f"v_sub_f32 v{76+r}, v{68+r}, v{72+r}")
        a(f"v_cvt_pk_bf16_f32 v{52+2*r}, v{68+r}, v{76+r}")
        a(f"v_and_b32 v{76+r}, 0xffff0000, v{52+2*r}")
        a(f"v_add_f32 v{72+r}, v{72+r}, v{76+r}")
    for r in range(4):
        a(f"v_exp_f32 v{76+r}, v{72+r}")
    a("s_nop 0")
    for r in range(4):
        a(f"v_add_f32 v{76+r}, 1.0, v{76+r}")
    for r in range(4):
        a(f"v_rcp_f32 v{76+r}, v{76+r}")
    a("s_nop 0")
    for r in range(4):
        a(f"v_mul_f32 v{53+2*r}, v{72+r}, v{76+r}")
    a(f"ds_write_b128 v6, v[52:55] offset:{BP}")
    a(f"ds_write_b128 v6, v[56:59] offset:{BP+16}")
    a.label("K2_PASS")
    a("s_waitcnt vmcnt(0)")
    stamp(a, 3, 1)
    a("v_mov_b32 v2, 1")
    for j in range(8):
        w1 = 32 + 2*j + 1
        a(f"s_mov_b64 exec, s[{sVAL+2*j}:{sVAL+2*j+1}]")
        a(f"v_lshlrev_b32 v{w1}, 2, v{w1}")
        a(f"v_add_u32 v3, {CNT}, v{w1}")
        a(f"ds_add_rtn_u32 v{68+j}, v3, v2")
    a("s_mov_b64 exec, -1")
    a("v_lshlrev_b32 v4, 2, v1")
    a(f"v_add_u32 v3, {CNT}, v4")
    a("s_waitcnt lgkmcnt(0)")
    a("s_barrier")
    stamp(a, 4, 1)
    a("ds_read_b32 v8, v3")
    a("s_waitcnt lgkmcnt(0)")
    a("v_add_u32 v9, 7, v8")
    a("v_lshrrev_b32 v9, 3, v9")
    a("v_mov_b32 v10, v9")
    a("s_nop 1")
    scan64(a, 10)
    a(f"v_readlane_b32 s{sG}, v10, 63")
    a("v_sub_u32 v11, v10, v9")
    a(f"v_lshlrev_b32 v{SB}, 5, v11")
    a(f"v_add_u32 v{SB}, {REC}, v{SB}")
    for j in range(8):
        a(f"ds_bpermute_b32 v{60+j}, v{32+2*j+1}, v{SB}")
    a("v_lshlrev_b32 v12, 3, v9")
    a("v_sub_u32 v13, v12, v8")
    a(f"v_cmp_ge_u32 vcc, {CAPG}, v10")
    a(f"s_mul_i32 s3, s{sW}, {RS}")
    a("v_lshl_add_u32 v14, v1, 3, s3")
    a("v_cndmask_b32_e64 v13, 0, v13, vcc")
    a("v_cvt_f32_u32 v15, v13")
    for r in range(4):
        a(f"ds_read_b32 v{20+r}, v14 offset:{BP + 4 + 16*RS*r}")
    a(f"s_mov_b32 s3, {REC + CAP*4}")
    a("s_waitcnt lgkmcnt(4)")
    for j in range(8):
        a(f"v_lshl_add_u32 v{60+j}, v{68+j}, 2, v{60+j}")
        a(f"v_cmp_gt_u32 vcc, s3, v{60+j}")
        a(f"s_and_b64 exec, vcc, s[{sVAL+2*j}:{sVAL+2*j+1}]")
        a(f"s_andn2_b64 s[{sVAL+2*j}:{sVAL+2*j+1}], s[{sVAL+2*j}:{sVAL+2*j+1}], vcc")
        a(f"ds_write_b32 v{60+j}, v{32+2*j}")
        a("s_mov_b64 exec, -1")
    a("v_mov_b32 v16, 0xffff")
    a(f"v_cmp_lt_u32 vcc, s{sW}, v13")
    a(f"v_add_u32 v17, s{sW}, v8")
    a(f"v_lshl_add_u32 v17, v17, 2, v{SB}")
    a("s_mov_b64 exec, vcc")
    a("ds_write_b32 v17, v16")
    a("s_mov_b64 exec, -1")
    a(f"s_mov_b32 s3, s{sW}")
    a(f"v_mul_u32_u24 v18, {RS}, v1")
    a.label("K2_GNL")
    a("v_add_u32 v17, s3, v11")
    a("v_cmp_lt_u32 vcc, s3, v9")
    a(f"v_mov_b32 v19, {CAPG}")
    a("v_cmp_lt_u32 s[76:77], v17, v19")
    a("s_cbranch_vccz K2_GND")
    a("s_and_b64 exec, vcc, s[76:77]")
    a("v_lshlrev_b32 v17, 2, v17")
    a(f"v_add_u32 v17, {GN}, v17")
    a("ds_write_b32 v17, v18")
    a("s_mov_b64 exec, -1")
    a("s_add_u32 s3, s3, 16")
    a("s_branch K2_GNL")
    a.label("K2_GND")
    a(f"s_min_u32 s76, s{sG}, {CAPG}")
    a(f"s_add_u32 s{sT}, s76, 3")
    a(f"s_lshr_b32 s{sT}, s{sT}, 2")
    a(f"s_cmp_lg_u32 s{sW}, 15")
    a("s_cbranch_scc1 K2_NOPAD")
    a(f"s_lshl_b32 s77, s{sT}, 5")
    a("s_lshl_b32 s78, s76, 3")
    a("v_add_u32 v17, s78, v1")
    a("v_cmp_gt_u32 vcc, s77, v17")
    a("v_lshlrev_b32 v17, 2, v17")
    a(f"v_add_u32 v17, {REC}, v17")
    a("s_mov_b64 exec, vcc")
    a("ds_write_b32 v17, v16")
    a("s_mov_b64 exec, -1")
    a(f"s_lshl_b32 s77, s{sT}, 2")
    a("v_add_u32 v17, s76, v1")
    a("v_cmp_gt_u32 vcc, s77, v17")
    a("v_lshlrev_b32 v17, 2, v17")
    a(f"v_add_u32 v17, {GN}, v17")
    a(f"v_mov_b32 v18, {NPB*RS}")
    a("s_mov_b64 exec, vcc")
    a("ds_write_b32 v17, v18")
    a("s_mov_b64 exec, -1")
    a.label("K2_NOPAD")
    for r in range(4):
        a(f"s_add_u32 s3, s{sW}, {16*r}")
        a(f"v_readlane_b32 s{76+r}, v15, s3")
    a("s_waitcnt lgkmcnt(0)")
    for r in range(4):
        a(f"v_mul_f32 v{20+r}, -s{76+r}, v{20+r}")
        a(f"v_cvt_f64_f32 v[{24+2*r}:{25+2*r}], v{20+r}")
        a(f"ds_add_f64 v14, v[{24+2*r}:{25+2*r}] offset:{AGG + 16*RS*r}")
    a(f"s_mov_b32 s{st}, s{sW}")
    a("s_waitcnt lgkmcnt(0)")
    a("s_barrier")
    stamp(a, 5, 1)
    a(f"s_cmp_lg_u32 s{sMODE}, 0")
    a("s_cbranch_scc1 K2_SLOWLOOP")
    mainloop(a, "F", False)
    a("v_mov_b32 v2, 0x5f800000")
    a(f"v_cmp_nlt_f32 vcc, v{PM}, v2")
    a("s_and_saveexec_b64 s[76:77], vcc")
    a("s_cbranch_execz K2_NOOVF")
    a(f"v_mov_b32 v3, {FLG+4}")
    a("v_mov_b32 v2, 1")
    a("ds_write_b32 v3, v2")
    a.label("K2_NOOVF")
    a("s_mov_b64 exec, -1")
    a.label("K2_AFTER")
    stamp(a, 6, 1)
    a(f"s_lshl_b32 s3, s{sNT}, 4")
    a("v_and_b32 v5, 15, v1")
    a("v_add_u32 v5, s3, v5")
    a("v_lshrrev_b32 v7, 4, v1")
    a(f"v_mov_b32 v3, {FLG}")
    a(f"v_mul_u32_u24 v8, {RS}, v5")
    a("v_lshl_add_u32 v8, v7, 6, v8")
    a("v_and_b32 v2, 15, v1")
    a("v_lshrrev_b32 v4, 2, v2")
    a("v_and_b32 v2, 3, v2")
    a("v_lshl_add_u32 v4, v7, 3, v4")
    a("v_lshlrev_b32 v4, 7, v4")
    a("v_lshl_add_u32 v4, v2, 3, v4")
    a(f"s_lshl_b32 s3, s{sFT}, 5")
    a(f"s_add_u32 s3, s3, {WU2}")
    a("v_add_u32 v4, s3, v4")
    for ks in range(2):
        for h in range(2):
            r = 52 + 4*ks + 2*h
            a(f"ds_read_b64_tr_b16 v[{r}:{r+1}], v4 offset:{(32*ks+4*h)*128}")
    a("s_waitcnt lgkmcnt(0)")
    a("s_barrier")
    stamp(a, 7, 1)
    a("ds_read_b64 v[10:11], v3")
    for ks in range(2):
        for h in range(4):
            r = 16 + 16*ks + 4*h
            a(f"ds_read_b128 v[{r}:{r+3}], v8 offset:{AGG + 256*ks + 16*h}")
    a("s_waitcnt lgkmcnt(8)")
    a("v_readfirstlane_b32 s76, v10")
    a("v_readfirstlane_b32 s77, v11")
    a(f"s_cmp_gt_u32 s{sG}, {CAPG}")
    a("s_cbranch_scc1 K2_RETRY")
    a(f"s_add_u32 s3, s{sCHUNK}, 32")
    a("s_cmp_gt_u32 s76, s3")
    a("s_cbranch_scc1 K2_NEXTCHUNK")
    a(f"s_andn2_b32 s77, s77, s{sMODE}")
    a("s_cbranch_scc1 K2_GOSLOW")
    a(f"s_mov_b32 s78, {NLN2:#x}")
    a(f"s_mov_b32 s79, {NLN2:#x}")
    for r in range(16):
        if r % 2 == 0: a(f"s_waitcnt lgkmcnt({7 - r//2})")
        a(f"v_cvt_f32_f64 v{64+r}, v[{16+2*r}:{17+2*r}]")
    for r in range(8):
        a(f"v_pk_mul_f32 {P(64+2*r)}, {P(64+2*r)}, s[78:79]")
    for r in range(8):
        a(f"v_cvt_pk_bf16_f32 v{32+r}, v{64+2*r}, v{65+2*r}")
    a("s_nop 1")
    a(f"v_mfma_f32_16x16x32_bf16 {v(U,4)}, v[52:55], v[32:35], {v(U,4)}")
    a(f"v_mfma_f32_16x16x32_bf16 {v(U,4)}, v[56:59], v[36:39], {v(U,4)}")
    a(f"v_add_u32 v6, s{sNODE0}, v5")
    a("v_lshlrev_b32 v6, 7, v6")
    a("v_lshl_add_u32 v6, v7, 3, v6")
    a(f"s_lshl_b32 s76, s{sFT}, 5")
    a(f"v_cmp_gt_u32 vcc, {NPB}, v5")
    a(f"s_mov_b32 s3, {NLOG2E:#x}")
    a("s_nop 3")
    for r in range(4):
        a(f"v_mul_f32 v{16+r}, s3, v{U+r}")
    for r in range(4):
        a(f"v_exp_f32 v{16+r}, v{16+r}")
    a("s_nop 0")
    for r in range(4):
        a(f"v_add_f32 v{16+r}, 1.0, v{16+r}")
    for r in range(4):
        a(f"v_rcp_f32 v{16+r}, v{16+r}")
    a("s_nop 0")
    for r in range(4):
        a(f"v_mul_f32 v{16+r}, v{U+r}, v{16+r}")
    a("v_cvt_pk_bf16_f32 v20, v16, v17")
    a("v_cvt_pk_bf16_f32 v21, v18, v19")
    a("s_mov_b64 exec, vcc")
    a(f"buffer_store_dwordx2 v[20:21], v6, s[{S_OUT}:{S_OUT+3}], s76 offen")
    stamp(a, 8, 1)
    if STAMP:
        a("s_waitcnt vmcnt(0)")
        stamp(a, 9, 1)
        a("s_mov_b32 s90, s94")
        a(f"s_mov_b32 s91, s{sT}")
        stamp_flush(a, 12, 1, 14, 15, sW)
    a.label("K2_END")
    a("s_endpgm")
    a.label("K2_SLOWLOOP")
    mainloop(a, "S", True)
    a("s_branch K2_AFTER")
    a.label("K2_GOSLOW")
    a(f"s_mov_b32 s{sMODE}, 1")
    a(f"s_mov_b32 s{sCHUNK}, -32")
    a("s_waitcnt lgkmcnt(0)")
    a("s_barrier")
    for r in range(4): a(f"v_mov_b32 v{28+r}, 0")
    a("v_lshlrev_b32 v10, 4, v0")
    a(f"ds_write_b128 v10, v[28:31] offset:{AGG}")
    a(f"ds_write_b128 v10, v[28:31] offset:{AGG+16384}")
    a.label("K2_NEXTCHUNK")
    a(f"s_add_u32 s{sCHUNK}, s{sCHUNK}, 32")
    rec_masks()
    a.label("K2_RETRY")
    a("s_waitcnt lgkmcnt(0)")
    rec_loads()
    a("v_mov_b32 v2, 0")
    a("v_lshlrev_b32 v3, 2, v1")
    a(f"v_add_u32 v3, {CNT}, v3")
    a("ds_write_b32 v3, v2")
    a("v_and_b32 v8, 31, v1")
    a("v_lshrrev_b32 v11, 5, v1")
    a("v_bfe_u32 v12, v8, 2, 1")
    a("v_and_b32 v13, 1, v8")
    a("v_lshl_or_b32 v14, v12, 1, v13")
    a("v_bfe_u32 v15, v8, 1, 1")
    a("v_lshrrev_b32 v26, 3, v8")
    a("v_lshl_or_b32 v27, v26, 1, v15")
    a("v_lshl_or_b32 v27, v14, 3, v27")
    a(f"s_lshl_b32 s3, s{sW}, 7")
    a(f"s_add_u32 s3, s3, {REC+2}")
    a(f"v_lshl_add_u32 v{VE}, v27, 2, s3")
    a("v_lshrrev_b32 v27, 3, v1")
    a(f"s_sub_u32 s3, s3, 2")
    a(f"v_lshl_add_u32 v{VR4}, v27, 4, s3")
    a(f"s_lshl_b32 s3, s{sW}, 4")
    a(f"s_add_u32 s3, s3, {GN}")
    a(f"v_lshl_add_u32 v{VG}, v11, 3, s3")
    a("s_waitcnt lgkmcnt(0)")
    a("s_barrier")
    a("s_branch K2_PASS")

HEAD = open("standalone__mpnn_edge_mlp__graph.s.ref").read().split("; Override launch")[0]

def main(out):
    a = Asm()
    a.lines.append(HEAD.rstrip())
    a.lines.append(f"; @launch kernel=k1_kernel grid=({NP},1,1) block=(1024,1,1) lds=90112")
    a.lines.append(f"; @launch kernel=k2_kernel grid=({NB},1,1) block=(1024,1,1) lds={K2_LDS}")
    a('.amdgcn_target "amdgcn-amd-amdhsa--gfx950"')
    a(".text")
    for k, g in (("k1_kernel", gen_k1), ("k2_kernel", gen_k2)):
        a(f".globl {k}")
        a(".p2align 8")
        a(f".type {k},@function")
        g(a)
    a('.section .rodata,"a"')
    a(".p2align 6")
    a.lines.append(desc("k1_kernel", 80, 100).rstrip())
    a(".p2align 6")
    a.lines.append(desc("k2_kernel", 128, 100).rstrip())
    open(out, "w").write(a.text())

if __name__ == "__main__":
    main(sys.argv[1] if len(sys.argv) > 1 else "standalone__mpnn_edge_mlp__graph.s")
```

```python
import sys, os
sys.path.insert(0, os.path.dirname(__file__))
from asmlib import *

STAMP = int(os.environ.get("STAMP", "0"))
OPT = dict(kv.split("=") for kv in os.environ.get("OPT", "").split(",") if kv)
def opt(k, d): return int(OPT.get(k, d))

N = 12500; E = 800000
NP = 250; CH = 3200
NPB = 49; NB = 256
TROWS = 50
WS_TAB = 0; WS_OFF = 0x200000; WS_REC = 0x400000
WS_STAMP = 0x1000000
NLOG2E = 0xbfb8aa3b
NLN2 = 0xbf317218

def stamp(a, idx):
    if not STAMP: return
    assert idx < 10
    a(f"s_memtime s[{80+2*idx}:{81+2*idx}]")
def stamp_start(a):
    if not STAMP: return
    a("s_memrealtime s[100:101]")
    for i in range(10): a(f"s_mov_b32 s{80+2*i}, 0") if False else None
def stamp_flush(a, kern, wsl, wsh, wave, extra=None):
    if not STAMP: return
    a("s_waitcnt vmcnt(0)")
    stamp(a, 9)
    a(f"s_memrealtime s[76:77]")
    if STAMP == 2:
        lab = f"DBG_{kern}_{len(a.lines)}"
        a("s_load_dwordx2 s[72:73], s[0:1], 56")
        a(f"s_waitcnt lgkmcnt(0)")
        a(f"s_mov_b64 exec, 1")
        if kern == 1:
            a("s_sub_u32 s72, s72, 512")
            a("s_subb_u32 s73, s73, 0")
        a("v_mov_b32 v2, 0")
        a("s_sub_u32 s3, 0, s100")
        a("v_mov_b32 v3, s3")
        a(f"global_atomic_umax v2, v3, s[72:73] offset:{32*kern}")
        a("v_mov_b32 v3, s76")
        a(f"global_atomic_umax v2, v3, s[72:73] offset:{32*kern+4}")
        a("s_cmp_lg_u32 s2, 5")
        a(f"s_cbranch_scc1 {lab}")
        a(f"s_cmp_lg_u32 s{wave}, 0")
        a(f"s_cbranch_scc1 {lab}")
        idx = (3, 4, 5, 6, 7, 9) if kern == 0 else (2, 4, 6, 7, 8, 9)
        for i, k in enumerate(idx):
            a(f"s_sub_u32 s3, s{80+2*k}, s80")
            a("v_mov_b32 v3, s3")
            a(f"global_store_dword v2, v3, s[72:73] offset:{32*kern+8+4*i}")
        a.label(lab)
        a("s_waitcnt vmcnt(0)")
        return
    a(f"s_lshl_b32 s78, s2, 4")
    a(f"s_add_u32 s78, s78, s{wave}")
    a(f"s_lshl_b32 s78, s78, 6")
    a(f"s_add_u32 s78, s78, {WS_STAMP + kern*0x100000}")
    a(f"s_waitcnt lgkmcnt(0)")
    a(f"s_mov_b64 exec, 1")
    a(f"v_mov_b32 v2, s78")
    srcs = [80+2*i for i in range(10)] + [100, extra if extra is not None else 100, 100, 100, 100, 76]
    for i in range(16):
        a(f"v_mov_b32 v3, s{srcs[i]}")
        a(f"global_store_dword v2, v3, s[{wsl}:{wsh}] offset:{4*i}")
    a("s_waitcnt vmcnt(0)")
def prio(a, p):
    if opt("prio", 1): a(f"s_setprio {p}")

def gen_k1(a):
    HIST = 0; OFFS = 1024; RECS = 2048; W1L = RECS + CH*8; XL = W1L + 3*8192
    st = ["", " sc1", " nt", " sc0 sc1", " sc1 nt"][opt("k1sc", 0)]
    a.label("k1_kernel")
    a(f"s_cmp_ge_u32 s2, {NP}")
    a("s_cbranch_scc1 K1_END")
    a("s_load_dwordx8 s[4:11], s[0:1], 0")
    a("s_load_dwordx2 s[12:13], s[0:1], 32")
    a("s_load_dwordx2 s[14:15], s[0:1], 64")
    stamp_start(a)
    stamp(a, 0)
    a("v_lshrrev_b32 v2, 6, v0")
    a("v_and_b32 v1, 63, v0")
    a("v_readfirstlane_b32 s16, v2")
    a(f"v_cmp_gt_u32 vcc, {CH//4}, v0")
    a("s_mov_b64 s[20:21], vcc")
    a(f"s_mul_i32 s17, s2, {CH*4}")
    a("v_lshlrev_b32 v3, 4, v0")
    a("v_add_u32 v2, s17, v3")
    a("v_lshrrev_b32 v34, 1, v2")
    a("s_cmp_ge_u32 s16, 13")
    a("s_cbranch_scc1 K1_TABLE")
    a("v_lshlrev_b32 v35, 4, v1")
    for r in range(4): a(f"v_mov_b32 v{36+r}, 0")
    a(f"ds_write_b128 v35, v[36:39] offset:{HIST}")
    a("s_mov_b64 exec, s[20:21]")
    a("s_waitcnt lgkmcnt(0)")
    stamp(a, 1)
    nt = " nt" if opt("k1nt", 1) else ""
    a("global_load_dwordx4 v[4:7], v2, s[10:11]" + nt)
    a("global_load_dwordx4 v[8:11], v2, s[8:9]" + nt)
    a("global_load_dwordx2 v[12:13], v34, s[6:7]" + nt)
    stamp(a, 2)
    a("s_barrier")
    stamp(a, 3)
    a("v_mov_b32 v35, 1")
    a(f"s_movk_i32 s3, {-NPB*4}")
    a("s_waitcnt vmcnt(2)")
    stamp(a, 4)
    for j in range(4):
        a(f"v_mul_u32_u24 v{14+j}, 5350, v{4+j}")
        a(f"v_lshrrev_b32 v{14+j}, 18, v{14+j}")
        a(f"v_lshlrev_b32 v{18+j}, 2, v{14+j}")
        a(f"ds_add_rtn_u32 v{22+j}, v{18+j}, v35 offset:{HIST}")
    for j in range(4):
        a(f"v_lshlrev_b32 v{4+j}, 2, v{4+j}")
        a(f"v_mad_i32_i24 v{27+2*j}, v{14+j}, s3, v{4+j}")
    a("s_mov_b32 s3, 0xffff0000")
    a("s_waitcnt vmcnt(0)")
    a("v_lshl_or_b32 v26, v12, 16, v8")
    a("v_and_or_b32 v28, v12, s3, v9")
    a("v_lshl_or_b32 v30, v13, 16, v10")
    a("v_and_or_b32 v32, v13, s3, v11")
    a("s_mov_b64 exec, -1")
    a("v_lshlrev_b32 v3, 4, v1")
    a("s_waitcnt lgkmcnt(0)")
    a("s_barrier")
    stamp(a, 5)
    a(f"ds_read_b128 v[56:59], v3 offset:{HIST}")
    a("s_waitcnt lgkmcnt(0)")
    a("v_add_u32 v66, v56, v57")
    a("v_add_u32 v67, v66, v58")
    a("v_add_u32 v68, v67, v59")
    a("v_mov_b32 v69, v68")
    a("s_nop 1")
    scan64(a, 69)
    a("v_sub_u32 v72, v69, v68")
    a("v_add_u32 v73, v72, v56")
    a("v_add_u32 v74, v72, v66")
    a("v_add_u32 v75, v72, v67")
    a(f"ds_write_b128 v3, v[72:75] offset:{OFFS}")
    a("s_mov_b64 exec, s[20:21]")
    for j in range(4):
        a(f"ds_read_b32 v{4+j}, v{18+j} offset:{OFFS}")
    for j in range(4):
        a(f"s_waitcnt lgkmcnt(3)")
        a(f"v_add_lshl_u32 v{4+j}, v{4+j}, v{22+j}, 3")
        a(f"ds_write_b64 v{4+j}, v[{26+2*j}:{27+2*j}] offset:{RECS}")
    a("s_mov_b64 exec, -1")
    a("s_cmp_lg_u32 s16, 12")
    a("s_cbranch_scc1 K1_NOOFF")
    for j in range(4):
        a(f"v_lshl_or_b32 v{76+j}, v{56+j}, 16, v{72+j}")
    a("s_lshl_b32 s3, s2, 10")
    a(f"s_add_u32 s3, s3, {WS_OFF}")
    a("v_add_u32 v3, s3, v3")
    a("global_store_dwordx4 v3, v[76:79], s[14:15]" + st)
    a.label("K1_NOOFF")
    a("s_mov_b64 exec, s[20:21]")
    a("v_lshlrev_b32 v3, 4, v0")
    a(f"s_mul_i32 s3, s2, {CH*8}")
    a(f"s_add_u32 s3, s3, {WS_REC}")
    a("v_add_u32 v13, s3, v3")
    a(f"v_add_u32 v12, {CH*4}, v13")
    a("s_waitcnt lgkmcnt(0)")
    a("s_barrier")
    stamp(a, 6)
    a(f"ds_read_b128 v[4:7], v3 offset:{RECS}")
    a(f"ds_read_b128 v[8:11], v3 offset:{RECS + CH*4}")
    a("s_waitcnt lgkmcnt(1)")
    a("global_store_dwordx4 v13, v[4:7], s[14:15]" + st)
    a("s_waitcnt lgkmcnt(0)")
    a("global_store_dwordx4 v12, v[8:11], s[14:15]" + st)
    stamp(a, 7); stamp(a, 8)
    stamp_flush(a, 0, 14, 15, 16)
    a("s_endpgm")
    a.label("K1_TABLE")
    a("s_sub_u32 s18, s16, 13")
    a("s_lshl_b32 s19, s18, 13")
    a(f"s_add_u32 s19, s19, {W1L}")
    a(f"s_mul_i32 s22, s18, 3072")
    a(f"s_add_u32 s22, s22, {XL}")
    a("v_lshlrev_b32 v4, 4, v1")
    a("v_lshrrev_b32 v5, 3, v1")
    a("v_and_b32 v6, 7, v1")
    a("v_xor_b32 v6, v6, v5")
    a("v_lshlrev_b32 v6, 4, v6")
    a("v_lshl_add_u32 v6, v5, 7, v6")
    a(f"s_mul_i32 s23, s2, {TROWS*128}")
    a("s_lshl_b32 s3, s18, 11")
    a("s_add_u32 s36, s23, s3")
    a("s_waitcnt lgkmcnt(0)")
    stamp(a, 1)
    srd(a, 24, 4, 5, N*128)
    srd(a, 28, 12, 13, 129*128)
    srd(a, 32, 14, 15, N*128)
    a("s_mov_b32 m0, s22")
    a("s_add_u32 s37, s36, 1024")
    a("buffer_load_dwordx4 v6, s[24:27], s36 offen lds")
    a("s_add_u32 m0, s22, 1024")
    a(f"s_add_u32 s38, s23, {48*128}")
    a("buffer_load_dwordx4 v6, s[24:27], s37 offen lds")
    a("s_add_u32 m0, s22, 2048")
    a("v_add_u32 v6, s38, v6")
    a("buffer_load_dwordx4 v6, s[24:27], 0 offen lds")
    a("s_mov_b32 m0, s19")
    a("s_movk_i32 s3, 0x1000")
    for i in range(4):
        a(f"buffer_load_dwordx4 v4, s[28:31], 0 offen offset:{1024*i} lds")
    a("s_add_u32 m0, s19, 4096")
    a("s_nop 0")
    for i in range(4):
        a(f"buffer_load_dwordx4 v4, s[28:31], s3 offen offset:{1024*i} lds")
    if opt("k1warm", 1):
        a("s_cmp_ge_u32 s2, 8")
        a("s_cbranch_scc1 K1_NOWARM")
        a("s_load_dwordx2 s[42:43], s[0:1], 40")
        a("v_lshlrev_b32 v14, 7, v1")
        a("s_lshl_b32 s3, s18, 13")
        a("v_add_u32 v14, s3, v14")
        a("buffer_load_dword v15, v14, s[28:31], 0 offen")
        a("s_waitcnt lgkmcnt(0)")
        srd(a, 44, 42, 43, 128*128)
        a("buffer_load_dword v15, v14, s[44:47], 0 offen")
        a.label("K1_NOWARM")
    stamp(a, 2)
    a("s_barrier")
    stamp(a, 3)
    a("v_lshrrev_b32 v7, 4, v1")
    a("v_bfe_u32 v8, v1, 2, 2")
    a("v_and_b32 v9, 3, v1")
    a("v_lshl_add_u32 v8, v7, 3, v8")
    a("v_lshlrev_b32 v8, 7, v8")
    a("v_lshl_add_u32 v8, v9, 5, v8")
    a("v_add_u32 v8, s19, v8")
    a("v_and_b32 v10, 15, v1")
    a("v_and_b32 v11, 7, v1")
    a("v_xor_b32 v11, v11, v7")
    a("v_lshlrev_b32 v11, 4, v11")
    a("v_lshl_add_u32 v11, v10, 7, v11")
    a("v_add_u32 v11, s22, v11")
    a("v_xor_b32 v12, 64, v11")
    a("v_lshlrev_b32 v13, 7, v10")
    a("v_lshl_add_u32 v13, v7, 5, v13")
    a(f"s_mov_b32 s40, {NLOG2E:#x}")
    a(f"s_mov_b32 s41, {NLOG2E:#x}")
    a("s_waitcnt vmcnt(0)")
    stamp(a, 4)
    a("ds_read_b128 v[16:19], v11")
    a("ds_read_b128 v[20:23], v12")
    for ft in range(4):
        for ks in range(2):
            for h in range(2):
                r = 32 + 8*ft + 4*ks + 2*h
                a(f"ds_read_b64_tr_b16 v[{r}:{r+1}], v8 offset:{(32*ks+4*h)*128 + 8*ft}")
    def tile(xa, soff, mask2):
        for ft in range(4):
            a(f"v_mfma_f32_16x16x32_bf16 v[{64+4*ft}:{67+4*ft}], v[{32+8*ft}:{35+8*ft}], v[{xa}:{xa+3}], 0")
        for ft in range(4):
            a(f"v_mfma_f32_16x16x32_bf16 v[{64+4*ft}:{67+4*ft}], v[{36+8*ft}:{39+8*ft}], v[{xa+4}:{xa+7}], v[{64+4*ft}:{67+4*ft}]")
        a("s_nop 4")
        for q in range(8):
            if q == 6: a("s_nop 0")
            a(f"v_pk_mul_f32 v[{64+2*q}:{65+2*q}], v[{64+2*q}:{65+2*q}], s[40:41]")
        for q in range(8):
            a(f"v_cvt_pk_bf16_f32 v{64+q}, v{64+2*q}, v{65+2*q}")
        if mask2:
            a("v_cmp_gt_u32 vcc, 2, v10")
            a("s_mov_b64 exec, vcc")
        a(f"buffer_store_dwordx4 v[64:67], v13, s[32:35], s{soff} offen" + st)
        a(f"buffer_store_dwordx4 v[68:71], v13, s[32:35], s{soff} offen offset:16" + st)
    a("s_waitcnt lgkmcnt(0)")
    tile(16, 36, False)
    a("s_cmp_lg_u32 s18, 0")
    a("s_cbranch_scc1 K1_TEND")
    a("ds_read_b128 v[16:19], v11 offset:2048")
    a("ds_read_b128 v[20:23], v12 offset:2048")
    a("s_waitcnt lgkmcnt(0)")
    tile(16, 38, True)
    a.label("K1_TEND")
    for i in (5, 6, 7, 8): stamp(a, i)
    stamp_flush(a, 0, 14, 15, 16)
    a.label("K1_END")
    a("s_endpgm")
    return XL + 3*3072

RS = 528; CAPN = 112; BLK = CAPN*4
CNT = 0; FLG = 256; AGG = 512; BP = AGG + 50*RS; RECS = BP + 50*RS; GT = RECS + 24576
WU2 = GT + 8192; STG = (WU2 + 8192 + 127)//128*128
K2_LDS = STG + 65536
assert K2_LDS <= 163840
D0 = 16; D1 = 32; X = 48; A = 64; AEXT = 80; BX0 = 84; BX1 = 88; I0 = 92; I1 = 96
RA = 100; R4 = 104; VA = 108; VE = 109; VG = 110; CD0 = 111; CD1 = 112; L8 = 113; CA = 114; CE = 115
FA = 116; FAN = 118; GNR = 120; GBA = 122; GBE = 123; PM = 124; OFFW = 125; J0 = 126
NN = 2; PA = 4; PB = 6; RR = 8; OUT = 10; VO = 14
S_X = 16; S_WM = 20; S_WU = 24; S_OUT = 28; S_TAB = 32; S_OFF = 36; S_REC = 40
sB = 44; sNODE0 = 45; sW = 46; sSLOT = 47; sT = 48; st = 49; sCHUNK = 50; sMODE = 51; sOVF = 52; sNT = 53; sFT = 54; s128 = 55
sTN = 56; sTMP = 57; sONE = 58
sVAL = 60
sCAPN = 6; sRECS = 7

def P(r): return f"v[{r}:{r+1}]"

def mfma3(Dn, j):
    bx = BX0 if j == 0 else BX1
    return [f"v_mfma_f32_32x32x16_bf16 {v(Dn,16)}, {v(AEXT,4)}, {v(bx,4)}, 0",
            f"v_mfma_f32_32x32x16_bf16 {v(Dn,16)}, {v(A+8*j,4)}, {v(I0,4)}, {v(Dn,16)}",
            f"v_mfma_f32_32x32x16_bf16 {v(Dn,16)}, {v(A+8*j+4,4)}, {v(I1,4)}, {v(Dn,16)}"]

def xphase(a, Dc, mf):
    ex = [f"v_exp_f32 v{X+r}, v{Dc+r}" for r in range(16)]
    seq = [mf[0]] + ex[0:4] + [mf[1]] + ex[4:8] + [mf[2]] + ex[8:16] if mf else ex
    for l in seq: a(l)

def fphase(a, Dc, off, slow, fa, mids=()):
    mids = dict(mids)
    if not slow:
        a(f"v_pk_add_f32 {P(PA)}, {P(X)}, s[{sONE}:{sONE+1}]")
        cur, nxt = PA, PB
        for q in range(1, 8):
            src = Dc if q == 1 else NN
            a(f"v_pk_fma_f32 {P(NN)}, {P(src)}, {P(X+2*q)}, {P(src)}")
            a(f"v_pk_fma_f32 {P(nxt)}, {P(cur)}, {P(X+2*q)}, {P(cur)}")
            a(f"v_pk_fma_f32 {P(NN)}, {P(Dc+2*q)}, {P(cur)}, {P(NN)}")
            cur, nxt = nxt, cur
            if q in mids: mids[q]()
        a(f"v_rcp_f32 v{RR}, v{cur}")
        a(f"v_rcp_f32 v{RR+1}, v{cur+1}")
        a(f"v_max3_f32 v{PM}, v{cur}, v{cur+1}, v{PM}")
        a(f"v_pk_mul_f32 {P(OUT)}, {P(NN)}, {P(RR)}")
    else:
        for q in range(8):
            a(f"v_pk_add_f32 {P(X+2*q)}, {P(X+2*q)}, s[{sONE}:{sONE+1}]")
        for q in sorted(mids): mids[q]()
        for r in range(16):
            a(f"v_rcp_f32 v{X+r}, v{X+r}")
        a("s_nop 0")
        a(f"v_pk_mul_f32 {P(OUT)}, {P(Dc)}, {P(X)}")
        for q in range(1, 8):
            a(f"v_pk_fma_f32 {P(OUT)}, {P(Dc+2*q)}, {P(X+2*q)}, {P(OUT)}")
    a(f"v_cvt_f64_f32 {P(OUT+2)}, v{OUT+1}")
    a(f"v_cvt_f64_f32 {P(OUT)}, v{OUT}")
    a(f"ds_add_f64 v{fa+1}, {P(OUT+2)} offset:{AGG+off}")
    a(f"ds_add_f64 v{fa}, {P(OUT)} offset:{AGG+off}")

def dma4(a):
    for i in range(4):
        a(f"s_add_u32 m0, s{sSLOT}, {i*1024}" if i else f"s_mov_b32 m0, s{sSLOT}")
        a(f"v_mad_u32_u16 v{VO+(i&1)}, v{R4+i}, s{s128}, v{CD0+(i&1)}")
        a(f"buffer_load_dwordx4 v{VO+(i&1)}, s[{S_TAB}:{S_TAB+3}], 0 offen lds")

def aread(a):
    for k in range(4):
        a(f"ds_read_b128 {v(A+4*k,4)}, v{RA+k}")

def bext(a, fa):
    a(f"ds_read_b32 v{BX0}, v{fa} offset:{BP}")
    a(f"ds_read_b32 v{BX0+1}, v{fa+1} offset:{BP}")
    a(f"ds_read_b32 v{BX1}, v{fa} offset:{BP+256}")
    a(f"ds_read_b32 v{BX1+1}, v{fa+1} offset:{BP+256}")

def loop_head1(a):
    a(f"ds_read_b32 v{GBA}, v{VA}")
    a(f"ds_read_b32 v{GBE}, v{VE}")
    a(f"ds_read2_b32 {P(GNR)}, v{VG} offset0:0 offset1:2")
    a("s_waitcnt lgkmcnt(2)")
    a(f"v_add_u32 v{GBA}, v{GBA}, v{CA}")
    a(f"ds_read_b128 {v(R4,4)}, v{GBA}")
    a("s_waitcnt lgkmcnt(2)")
    a(f"v_add_u32 v{GBE}, v{GBE}, v{CE}")
    a(f"ds_read_u16 v{AEXT+2}, v{GBE}")
    a("s_waitcnt lgkmcnt(1)")
    dma4(a)
    a(f"v_add_u32 v{FA}, v{GNR}, v{L8}")
    a(f"v_add_u32 v{FA+1}, v{GNR+1}, v{L8}")
    bext(a, FA)

def mainloop(a, tag, slow):
    L = lambda x: f"K2_{tag}_{x}"
    a(f"ds_read_b32 v{GBA}, v{VA} offset:512")
    a("s_waitcnt lgkmcnt(0)")
    a(f"v_add_u32 v{GBA}, v{GBA}, v{CA}")
    a(f"ds_read_b128 {v(R4,4)}, v{GBA}")
    a(f"ds_read_b32 v{GBA}, v{VA} offset:1024")
    a("s_waitcnt vmcnt(0)")
    aread(a)
    a("s_waitcnt lgkmcnt(0)")
    a(f"s_add_u32 s{sTN}, s{st}, 16")
    a(f"s_cmp_ge_u32 s{sTN}, s{sT}")
    a(f"s_cbranch_scc1 {L('P1')}")
    dma4(a)
    a.label(L('P1'))
    for m in mfma3(D0, 0): a(m)
    a(f"v_add_u32 v{GBA}, v{GBA}, v{CA}")
    a("s_nop 7")
    a("s_nop 2")
    a.label(L('LOOP'))
    a(f"s_add_u32 s{sTN}, s{st}, 16")
    a(f"s_cmp_ge_u32 s{sTN}, s{sT}")
    a(f"s_cbranch_scc1 {L('TAIL')}")
    a(f"ds_read_b32 v{GBE}, v{VE} offset:512")
    a(f"ds_read2_b32 {P(GNR)}, v{VG} offset0:128 offset1:130")
    a(f"ds_read_b128 {v(R4,4)}, v{GBA}")
    a(f"ds_read_b32 v{GBA}, v{VA} offset:1536")
    xphase(a, D0, mfma3(D1, 1))
    a("s_waitcnt vmcnt(0) lgkmcnt(0)")
    aread(a)
    a(f"v_add_u32 v{GBE}, v{GBE}, v{CE}")
    a(f"v_add_u32 v{FAN}, v{GNR}, v{L8}")
    a(f"v_add_u32 v{FAN+1}, v{GNR+1}, v{L8}")
    a(f"ds_read_u16 v{AEXT+2}, v{GBE}")
    bext(a, FAN)
    def mid():
        a(f"s_add_u32 s{sTMP}, s{st}, 32")
        a(f"s_cmp_ge_u32 s{sTMP}, s{sT}")
        a(f"s_cbranch_scc1 {L('NOD')}")
        a("s_waitcnt lgkmcnt(5)")
        dma4(a)
        a.label(L('NOD'))
    fphase(a, D0, 0, slow, FA, [(3, mid)])
    a("s_waitcnt lgkmcnt(2)")
    xphase(a, D1, mfma3(D0, 0))
    a(f"v_add_u32 v{GBA}, v{GBA}, v{CA}")
    a(f"v_add_u32 v{VA}, 512, v{VA}")
    a(f"v_add_u32 v{VE}, 512, v{VE}")
    a(f"v_add_u32 v{VG}, 512, v{VG}")
    fphase(a, D1, 256, slow, FA)
    a(f"v_mov_b32 v{FA}, v{FAN}")
    a(f"v_mov_b32 v{FA+1}, v{FAN+1}")
    a(f"s_mov_b32 s{st}, s{sTN}")
    if not slow and opt("lprio", 1):
        for thr, p in ((32, 2), (64, 1), (96, 0)):
            a(f"s_lshr_b32 s{sTMP}, s{st}, 4")
            a(f"s_cmp_lg_u32 s{sTMP}, {thr//16}")
            a(f"s_cbranch_scc1 {L('PR%d' % p)}")
            a(f"s_setprio {p}")
            a.label(L('PR%d' % p))
    a(f"s_branch {L('LOOP')}")
    a.label(L('TAIL'))
    xphase(a, D0, mfma3(D1, 1))
    fphase(a, D0, 0, slow, FA)
    xphase(a, D1, None)
    fphase(a, D1, 256, slow, FA)
    a.label(L('DONE'))

def prefill(a, first):
    for r in range(4): a(f"v_mov_b32 v{28+r}, 0xffff")
    a("v_lshlrev_b32 v10, 4, v0")
    a(f"ds_write_b128 v10, v[28:31] offset:{RECS}")
    lab = "K2_PF%d" % first
    a(f"s_cmp_ge_u32 s{sW}, 8")
    a(f"s_cbranch_scc1 {lab}a")
    a(f"v_add_u32 v26, {RECS+16384}, v10")
    a(f"ds_write_b128 v26, v[28:31]")
    a.label(lab + "a")
    a(f"v_mov_b32 v26, {RECS + NPB*BLK}")
    a(f"v_mov_b32 v27, {NPB*RS}")
    a(f"s_cmp_lg_u32 s{sW}, 0")
    a(f"s_cbranch_scc1 {lab}b")
    a(f"v_subrev_u32 v26, {NPB}, v1")
    a(f"v_cmp_gt_u32 s[76:77], {NPB}, v1")
    a("v_mov_b32 v27, 0")
    a("v_lshlrev_b32 v30, 2, v1")
    a(f"v_cndmask_b32 v29, v26, v1, s[76:77]")
    a(f"v_cndmask_b32 v28, 32, v27, s[76:77]")
    a(f"ds_write_b32 v30, v27 offset:{CNT}")
    if first:
        a(f"ds_write_b32 v30, v27 offset:{FLG}")
    a(f"v_mul_u32_u24 v27, {RS}, v29")
    a(f"v_mul_u32_u24 v26, {BLK}, v29")
    a(f"v_add3_u32 v26, v26, v28, s{sRECS}")
    a.label(lab + "b")
    a("v_lshlrev_b32 v10, 3, v0")
    a(f"v_add_u32 v10, {GT}, v10")
    a("ds_write_b64 v10, v[26:27]")

def stream_addrs(a):
    a(f"s_lshl_b32 s3, s{sW}, 5")
    a(f"s_add_u32 s3, s3, {GT}")
    a("v_lshrrev_b32 v27, 4, v1")
    a(f"v_lshl_add_u32 v{VA}, v27, 3, s3")
    a(f"v_lshl_add_u32 v{VE}, v14, 3, s3")
    a("s_add_u32 s3, s3, 4")
    a(f"v_lshl_add_u32 v{VG}, v11, 4, s3")

def gen_k2(a):
    a.label("k2_kernel")
    a(f"s_cmp_ge_u32 s2, {NB}")
    a("s_cbranch_scc1 K2_END")
    a("s_load_dwordx2 s[14:15], s[0:1], 64")
    a("s_load_dwordx2 s[4:5], s[0:1], 0")
    a("s_load_dwordx4 s[8:11], s[0:1], 32")
    a("s_load_dwordx2 s[12:13], s[0:1], 48")
    stamp_start(a)
    stamp(a, 0)
    prio(a, 3)
    a("v_lshrrev_b32 v2, 6, v0")
    a("v_and_b32 v1, 63, v0")
    a(f"v_readfirstlane_b32 s{sW}, v2")
    a("s_and_b32 s3, s2, 7")
    a("s_lshl_b32 s3, s3, 5")
    a(f"s_lshr_b32 s{sB}, s2, 3")
    a(f"s_add_u32 s{sB}, s{sB}, s3")
    a(f"s_mul_i32 s{sNODE0}, s{sB}, {NPB}")
    a("v_lshrrev_b32 v2, 2, v0")
    a("v_lshlrev_b32 v3, 10, v2")
    a(f"s_lshl_b32 s3, s{sB}, 2")
    a(f"s_mov_b32 s{S_OFF+2}, {NP*1024}")
    a(f"s_mov_b32 s{S_OFF+3}, 0x00020000")
    a("v_lshlrev_b32 v4, 4, v1")
    a("s_waitcnt lgkmcnt(0)")
    stamp(a, 1)
    a(f"s_add_u32 s{S_OFF}, s14, {WS_OFF}")
    a(f"s_addc_u32 s{S_OFF+1}, s15, 0")
    a(f"buffer_load_dword v{OFFW}, v3, s[{S_OFF}:{S_OFF+3}], s3 offen")
    wl = opt("warm", 7)
    def warm():
        a("s_lshr_b32 s3, s2, 3")
        a(f"s_mul_i32 s3, s3, 50048")
        a(f"v_lshlrev_b32 v13, {wl}, v0")
        a(f"v_add_u32 v13, s3, v13")
        a(f"v_cmp_gt_u32 vcc, {50048 >> wl}, v0")
        a("s_mov_b64 exec, vcc")
        a(f"buffer_load_dword v127, v13, s[{S_TAB}:{S_TAB+3}], 0 offen")
        a("s_mov_b64 exec, -1")
    WF = opt("warmfirst", 2)
    srd(a, S_TAB, 14, 15, N*128, WS_TAB)
    if WF == 1: warm()
    prio(a, 1)
    srd(a, S_WM, 8, 9, 129*128)
    srd(a, S_WU, 10, 11, 128*128)
    a(f"s_lshl_b32 s3, s{sW}, 10")
    a(f"s_add_u32 m0, s3, {STG}")
    a(f"s_cmp_ge_u32 s{sW}, 8")
    a("s_cbranch_scc1 K2_W1")
    a("s_add_u32 s3, s3, 8192")
    a(f"buffer_load_dwordx4 v4, s[{S_WM}:{S_WM+3}], s3 offen lds")
    a(f"s_add_u32 m0, s3, {WU2 - 8192}")
    a("s_nop 0")
    a(f"buffer_load_dwordx4 v4, s[{S_WU}:{S_WU+3}], s3 offen lds")
    a("s_branch K2_W2")
    a.label("K2_W1")
    a("s_sub_u32 s3, s3, 8192")
    a(f"buffer_load_dwordx4 v4, s[{S_WU}:{S_WU+3}], s3 offen lds")
    srd(a, S_X, 4, 5, N*128)
    a("v_lshrrev_b32 v5, 3, v1")
    a("v_and_b32 v6, 7, v1")
    a("v_xor_b32 v6, v6, v5")
    a("v_lshlrev_b32 v6, 4, v6")
    a("v_lshl_add_u32 v6, v5, 7, v6")
    a(f"s_add_u32 m0, s3, {STG + 16384}")
    a(f"s_lshl_b32 s76, s{sNODE0}, 7")
    a("s_add_u32 s3, s3, s76")
    a("v_add_u32 v6, s3, v6")
    a(f"buffer_load_dwordx4 v6, s[{S_X}:{S_X+3}], 0 offen lds")
    a.label("K2_W2")
    a("v_and_b32 v8, 31, v1")
    a("v_lshlrev_b32 v9, 1, v8")
    a("s_movk_i32 s3, 0x4000")
    a(f"buffer_load_ushort v24, v9, s[{S_WM}:{S_WM+3}], s3 offen")
    a(f"buffer_load_ushort v25, v9, s[{S_WM}:{S_WM+3}], s3 offen offset:64")
    prio(a, 0)
    srd(a, S_REC, 14, 15, NP*CH*8, WS_REC)
    srd(a, S_OUT, 12, 13, N*128)
    a(f"s_mov_b32 s{sMODE}, 0")
    a(f"s_mov_b32 s{sCHUNK}, 0")
    a(f"s_movk_i32 s{s128}, 128")
    a(f"s_movk_i32 s{sCAPN}, {CAPN}")
    a(f"s_mov_b32 s{sRECS}, {RECS}")
    a(f"s_mov_b32 s{sONE}, 1.0")
    a(f"s_mov_b32 s{sONE+1}, 1.0")
    a(f"s_lshl_b32 s{sSLOT}, s{sW}, 12")
    a(f"s_add_u32 s{sSLOT}, s{sSLOT}, {STG}")
    a(f"s_lshr_b32 s{sNT}, s{sW}, 2")
    a(f"s_and_b32 s{sFT}, s{sW}, 3")
    for r in range(4): a(f"v_mov_b32 v{16+r}, 0")
    a("v_lshlrev_b32 v10, 4, v0")
    a(f"ds_write_b128 v10, v[16:19] offset:{AGG}")
    a(f"ds_write_b128 v10, v[16:19] offset:{AGG+16384}")
    prefill(a, 1)
    a("v_lshrrev_b32 v11, 5, v1")
    a(f"v_lshlrev_b32 v{L8}, 3, v8")
    a("v_lshlrev_b32 v12, 3, v11")
    a("v_sub_u32 v12, v8, v12")
    a("v_and_b32 v13, 1, v12")
    a("v_lshlrev_b32 v13, 4, v13")
    a("v_mov_b32 v14, 0x3f80")
    a("v_lshlrev_b32 v13, v13, v14")
    a("v_ashrrev_i32 v12, 1, v12")
    for i in range(4):
        a(f"v_cmp_eq_u32 s[{60+4*i}:{61+4*i}], {i}, v12")
        a(f"v_cmp_eq_u32 s[{62+4*i}:{63+4*i}], {8+i}, v12")
    for i in range(4):
        a(f"v_cndmask_b32 v{I0+i}, 0, v13, s[{60+4*i}:{61+4*i}]")
        a(f"v_cndmask_b32 v{I1+i}, 0, v13, s[{62+4*i}:{63+4*i}]")
    a("v_bfe_u32 v12, v8, 2, 1")
    a("v_and_b32 v13, 1, v8")
    a("v_lshl_or_b32 v14, v12, 1, v13")
    a("v_lshlrev_b32 v15, 1, v11")
    a("v_sub_u32 v15, v14, v15")
    a("v_cmp_eq_u32 s[60:61], 0, v15")
    a("v_cmp_eq_u32 s[62:63], 1, v15")
    a("v_cmp_gt_u32 s[64:65], 15, v1")
    a("v_mov_b32 v26, 0x3f803f80")
    a(f"v_mov_b32 v{AEXT+3}, 0")
    a(f"v_cndmask_b32 v{AEXT}, 0, v26, s[60:61]")
    a(f"v_cndmask_b32 v{AEXT+1}, 0, v26, s[62:63]")
    a(f"v_cndmask_b32 v{J0}, 1, 2, s[64:65]")
    a(f"v_mov_b32 v{BX0+3}, 0")
    a(f"v_mov_b32 v{BX1+3}, 0")
    a("v_bfe_u32 v15, v8, 1, 1")
    a("v_lshrrev_b32 v26, 3, v8")
    a("v_lshl_or_b32 v27, v26, 1, v15")
    a(f"v_lshl_or_b32 v{CE}, v27, 2, 2")
    a("v_lshl_or_b32 v27, v14, 3, v27")
    a("v_and_b32 v28, 3, v27")
    a("v_lshrrev_b32 v27, 2, v27")
    a("v_lshl_or_b32 v27, v28, 3, v27")
    a("v_and_b32 v28, 7, v8")
    a("v_xor_b32 v28, v28, v11")
    a("v_lshlrev_b32 v28, 4, v28")
    a("v_lshl_add_u32 v27, v27, 7, v28")
    a(f"v_add_u32 v{RA}, s{sSLOT}, v27")
    for k in range(1, 4):
        a(f"v_xor_b32 v{RA+k}, {32*k}, v{RA}")
    a("v_bfe_u32 v27, v1, 4, 1")
    a("v_lshl_or_b32 v27, v11, 2, v27")
    a("v_and_b32 v28, 7, v1")
    a("v_xor_b32 v27, v27, v28")
    a(f"v_lshlrev_b32 v{CD0}, 4, v27")
    a(f"v_xor_b32 v{CD1}, 32, v{CD0}")
    a(f"v_lshlrev_b32 v{CA}, 1, v1")
    a(f"v_and_b32 v{CA}, 16, v{CA}")
    stream_addrs(a)
    a(f"v_mov_b32 v{PM}, 0")
    a(f"s_lshl_b32 s3, s{sNT}, 4")
    a("v_and_b32 v5, 15, v1")
    a("v_add_u32 v5, s3, v5")
    a("v_lshrrev_b32 v7, 4, v1")
    def rec_prep():
        a("v_and_b32 v3, 3, v0")
        a("v_lshlrev_b32 v3, 1, v3")
        a(f"v_add_u32 v3, s{sCHUNK}, v3")
        a("v_lshrrev_b32 v12, 2, v0")
        a(f"v_mul_u32_u24 v12, {CH}, v12")
        a("v_add_u32 v12, v12, v3")
    def rec_masks():
        a(f"v_lshrrev_b32 v2, 16, v{OFFW}")
        a("v_sub_u32 v2, v2, v3")
        for j in range(8):
            a(f"v_cmp_lt_i32 s[{sVAL+2*j}:{sVAL+2*j+1}], {8*(j>>1)+(j&1)}, v2")
    def rec_loads(first):
        a(f"v_and_b32 v4, 0xffff, v{OFFW}")
        a("v_add_lshl_u32 v4, v4, v12, 3")
        for r in range(4):
            if first:
                a(f"s_mov_b64 exec, s[{sVAL+4*r}:{sVAL+4*r+1}]")
            else:
                a(f"s_or_b64 exec, s[{sVAL+4*r}:{sVAL+4*r+1}], s[{sVAL+4*r+2}:{sVAL+4*r+3}]")
            a(f"buffer_load_dwordx4 v[{32+4*r}:{35+4*r}], v4, s[{S_REC}:{S_REC+3}], 0 offen offset:{64*r}")
        a("s_mov_b64 exec, -1")
    rec_prep()
    prio(a, 3)
    a(f"s_waitcnt vmcnt({5 if WF == 1 else 4})")
    stamp(a, 2)
    rec_masks()
    rec_loads(True)
    if WF == 0: warm()
    prio(a, 1)
    a(f"s_waitcnt vmcnt({5 if WF == 0 else 4}) lgkmcnt(0)")
    a("s_barrier")
    stamp(a, 3)
    a(f"v_lshrrev_b32 v2, 16, v{OFFW}")
    a("v_cmp_lt_u32 vcc, 32, v2")
    a("s_and_saveexec_b64 s[76:77], vcc")
    a("s_cbranch_execz K2_NOMAX")
    a(f"v_mov_b32 v3, {FLG}")
    a("ds_max_u32 v3, v2")
    a.label("K2_NOMAX")
    a("s_mov_b64 exec, -1")
    a("v_and_b32 v2, 7, v1")
    a("v_xor_b32 v2, v2, v7")
    a("v_lshlrev_b32 v2, 4, v2")
    a("v_lshl_add_u32 v2, v5, 7, v2")
    a(f"v_add_u32 v2, {STG + 16384}, v2")
    a("v_xor_b32 v4, 64, v2")
    a("ds_read_b128 v[16:19], v2")
    a("ds_read_b128 v[20:23], v4")
    a("v_bfe_u32 v3, v1, 2, 2")
    a("v_and_b32 v2, 3, v1")
    a("v_lshl_add_u32 v3, v7, 3, v3")
    a("v_lshlrev_b32 v3, 7, v3")
    a("v_lshl_add_u32 v3, v2, 3, v3")
    a(f"s_lshl_b32 s3, s{sFT}, 5")
    a(f"s_add_u32 s3, s3, {STG}")
    a("v_add_u32 v3, s3, v3")
    for mtx in range(2):
        for ks in range(2):
            for h in range(2):
                r = 64 + 8*mtx + 4*ks + 2*h
                a(f"ds_read_b64_tr_b16 v[{r}:{r+1}], v3 offset:{8192*mtx + (32*ks+4*h)*128}")
    a(f"s_mov_b32 s3, {NLOG2E:#x}")
    a("v_cmp_gt_u32 s[78:79], 32, v1")
    for j, bx in ((0, BX0), (1, BX1)):
        a(f"v_lshlrev_b32 v{24+j}, 16, v{24+j}")
        a(f"v_mul_f32 v{24+j}, s3, v{24+j}")
        a(f"v_cvt_pk_bf16_f32 v26, v{24+j}, v{24+j}")
        a("v_and_b32 v27, 0xffff0000, v26")
        a(f"v_sub_f32 v27, v{24+j}, v27")
        a("v_cvt_pk_bf16_f32 v27, v27, v27")
        a(f"v_cndmask_b32 v26, v27, v26, s[78:79]")
        a(f"v_and_b32 v{bx+2}, 0xffff, v26")
    a(f"s_lshl_b32 s76, s{sFT}, 7")
    a(f"v_mul_u32_u24 v6, {RS}, v5")
    a("v_lshl_add_u32 v6, v7, 5, v6")
    a("v_add_u32 v6, s76, v6")
    a("v_cmp_gt_u32 s[78:79], 50, v5")
    a("s_waitcnt lgkmcnt(0)")
    a("v_mfma_f32_16x16x32_bf16 v[8:11], v[64:67], v[16:19], 0")
    a("v_mfma_f32_16x16x32_bf16 v[12:15], v[72:75], v[16:19], 0")
    a("v_mfma_f32_16x16x32_bf16 v[8:11], v[68:71], v[20:23], v[8:11]")
    a("v_mfma_f32_16x16x32_bf16 v[12:15], v[76:79], v[20:23], v[12:15]")
    a("s_nop 6")
    for r in range(4):
        a(f"v_mul_f32 v{8+r}, s3, v{8+r}")
    for r in range(4):
        a(f"v_cvt_pk_bf16_f32 v{16+r}, v{8+r}, v{8+r}")
        a(f"v_and_b32 v{16+r}, 0xffff0000, v{16+r}")
        a(f"v_sub_f32 v{20+r}, v{8+r}, v{16+r}")
        a(f"v_cvt_pk_bf16_f32 v{64+2*r}, v{8+r}, v{20+r}")
        a(f"v_mov_b32 v{65+2*r}, v{12+r}")
        a(f"v_and_b32 v{20+r}, 0xffff0000, v{64+2*r}")
        a(f"v_add_f32 v{16+r}, v{16+r}, v{20+r}")
    a("s_mov_b64 exec, s[78:79]")
    a(f"ds_write_b128 v6, v[64:67] offset:{BP}")
    a(f"ds_write_b128 v6, v[68:71] offset:{BP+16}")
    a("s_mov_b64 exec, -1")
    def fcalc():
        for r in range(4):
            a(f"v_exp_f32 v{20+r}, v{16+r}")
        a("s_nop 0")
        for r in range(4):
            a(f"v_add_f32 v{20+r}, 1.0, v{20+r}")
        for r in range(4):
            a(f"v_rcp_f32 v{20+r}, v{20+r}")
        a("s_nop 0")
        for r in range(4):
            a(f"v_mul_f32 v{28+r}, v{16+r}, v{20+r}")
    fcalc()
    a.label("K2_PASS")
    prio(a, 3)
    a("v_mov_b32 v2, 1")
    a(f"v_mov_b32 v3, s{sRECS}")
    a(f"s_waitcnt vmcnt({1 if WF == 0 else 0})")
    stamp(a, 4)
    for j in range(8):
        if j in (4, 6):
            a(f"s_or_b64 s[76:77], s[{sVAL+2*j}:{sVAL+2*j+1}], s[{sVAL+2*j+2}:{sVAL+2*j+3}]")
            a(f"s_cbranch_scc0 K2_RK{j}")
        w1 = 32 + 2*j + 1
        a(f"s_mov_b64 exec, s[{sVAL+2*j}:{sVAL+2*j+1}]")
        a(f"ds_add_rtn_u32 v{56+j}, v{w1}, v2 offset:{CNT}")
        a(f"v_mad_u32_u24 v{48+j}, v{w1}, s{sCAPN}, v3")
        if j in (5, 7):
            a.label(f"K2_RK{j-1}")
    a("s_waitcnt lgkmcnt(0)")
    for j in range(8):
        if j in (4, 6):
            a(f"s_or_b64 s[76:77], s[{sVAL+2*j}:{sVAL+2*j+1}], s[{sVAL+2*j+2}:{sVAL+2*j+3}]")
            a(f"s_cbranch_scc0 K2_PL{j}")
        a(f"s_mov_b64 exec, s[{sVAL+2*j}:{sVAL+2*j+1}]")
        a(f"v_cmpx_gt_u32 vcc, s{sCAPN}, v{56+j}")
        a(f"v_lshl_add_u32 v{48+j}, v{56+j}, 2, v{48+j}")
        a(f"s_andn2_b64 s[{sVAL+2*j}:{sVAL+2*j+1}], s[{sVAL+2*j}:{sVAL+2*j+1}], vcc")
        a(f"ds_write_b32 v{48+j}, v{32+2*j}")
        if j in (5, 7):
            a.label(f"K2_PL{j-1}")
    a("s_mov_b64 exec, -1")
    a("v_lshlrev_b32 v4, 2, v1")
    a(f"s_mov_b32 s{st}, s{sW}")
    a("s_waitcnt lgkmcnt(0)")
    a("s_barrier")
    stamp(a, 5)
    a(f"ds_read_b32 v8, v4 offset:{CNT}")
    loop_head1(a)
    a(f"v_cmp_lt_u32 vcc, s{sCAPN}, v8")
    a(f"v_min_u32 v8, s{sCAPN}, v8")
    a("v_add_u32 v9, 7, v8")
    a("v_lshrrev_b32 v9, 3, v9")
    a(f"v_max_u32 v9, v9, v{J0}")
    a("s_cmp_lg_u64 vcc, 0")
    a(f"s_cselect_b32 s{sOVF}, 1, 0")
    a(f"v_sub_u32 v10, v9, v{J0}")
    a("v_lshlrev_b32 v12, 3, v9")
    a("v_mov_b32 v11, v10")
    a("v_sub_u32 v12, v12, v8")
    a("v_cvt_f32_u32 v12, v12")
    scan64(a, 11)
    a(f"v_readlane_b32 s76, v11, 63")
    a("v_lshlrev_b32 v13, 2, v5")
    a("ds_bpermute_b32 v13, v13, v12")
    a("v_sub_u32 v11, v11, v10")
    a(f"v_cmp_lt_u32 vcc, s{sW}, v10")
    a(f"v_mul_u32_u24 v17, {RS}, v1")
    a(f"v_add_u32 v18, s{sW}, v{J0}")
    a(f"v_mul_u32_u24 v16, {BLK}, v1")
    a("v_lshl_add_u32 v16, v18, 5, v16")
    a(f"v_add_u32 v16, s{sRECS}, v16")
    a(f"s_lshl_b32 s3, s{sW}, 3")
    a(f"s_add_u32 s3, s3, {GT + 512}")
    a("v_lshl_add_u32 v18, v11, 3, s3")
    a("s_mov_b64 exec, vcc")
    a("ds_write_b64 v18, v[16:17]")
    a("s_mov_b64 exec, s[78:79]")
    a(f"s_add_u32 s{sT}, s76, 67")
    a(f"s_lshr_b32 s{sT}, s{sT}, 2")
    a("s_waitcnt lgkmcnt(1)")
    for r in range(4):
        a(f"v_mul_f32 v{20+r}, -v13, v{28+r}")
        a(f"v_cvt_f64_f32 v[{32+2*r}:{33+2*r}], v{20+r}")
        a(f"ds_add_f64 v6, v[{32+2*r}:{33+2*r}] offset:{AGG + 8*r}")
    a("s_mov_b64 exec, -1")
    a("s_waitcnt lgkmcnt(4)")
    a("s_barrier")
    stamp(a, 6)
    a(f"s_cmp_lg_u32 s{sMODE}, 0")
    a("s_cbranch_scc1 K2_SLOWLOOP")
    mainloop(a, "F", False)
    a("v_mov_b32 v2, 0x5f800000")
    a(f"v_cmp_nlt_f32 vcc, v{PM}, v2")
    a("s_and_saveexec_b64 s[76:77], vcc")
    a("s_cbranch_execz K2_NOOVF")
    a(f"v_mov_b32 v3, {FLG+4}")
    a("v_mov_b32 v2, 1")
    a("ds_write_b32 v3, v2")
    a.label("K2_NOOVF")
    a("s_mov_b64 exec, -1")
    a.label("K2_AFTER")
    stamp(a, 7)
    a(f"v_mov_b32 v3, {FLG}")
    a("v_lshrrev_b32 v7, 4, v1")
    a(f"s_cmp_ge_u32 s{sW}, 4")
    a("s_cbranch_scc1 K2_B4")
    a(f"s_lshl_b32 s3, s{sW}, 4")
    a("v_and_b32 v9, 15, v1")
    a("v_add_u32 v9, s3, v9")
    a("v_bfe_u32 v4, v1, 2, 2")
    a("v_and_b32 v2, 3, v1")
    a("v_lshl_add_u32 v4, v7, 3, v4")
    a("v_lshlrev_b32 v4, 7, v4")
    a("v_lshl_add_u32 v4, v2, 5, v4")
    a(f"v_add_u32 v4, {WU2}, v4")
    for ft in range(4):
        for ks in range(2):
            for h in range(2):
                r = 48 + 8*ft + 4*ks + 2*h
                a(f"ds_read_b64_tr_b16 v[{r}:{r+1}], v4 offset:{(32*ks+4*h)*128 + 8*ft}")
    a(f"v_mul_u32_u24 v8, {RS}, v9")
    a("v_lshl_add_u32 v10, v7, 7, v8")
    a(f"v_add_u32 v10, {BP + 4}, v10")
    a("s_waitcnt lgkmcnt(8)")
    for ft in range(4):
        for h in range(2):
            r = 80 + 4*ft + 2*h
            a(f"ds_read2_b32 v[{r}:{r+1}], v10 offset0:{8*ft+4*h} offset1:{8*ft+4*h+2}")
    a("v_lshl_add_u32 v8, v7, 6, v8")
    a(f"v_add_u32 v6, s{sNODE0}, v9")
    a("v_lshlrev_b32 v6, 7, v6")
    a("v_lshl_add_u32 v6, v7, 5, v6")
    a(f"v_cmp_gt_u32 s[74:75], {NPB}, v9") if False else None
    a.label("K2_B4")
    a("s_waitcnt lgkmcnt(0)")
    a("s_barrier")
    stamp(a, 8)
    a("ds_read_b64 v[12:13], v3")
    a(f"s_cmp_ge_u32 s{sW}, 4")
    a("s_cbranch_scc1 K2_NOAGG")
    for ks in range(2):
        for h in range(4):
            r = 16 + 16*ks + 4*h
            a(f"ds_read_b128 v[{r}:{r+3}], v8 offset:{AGG + 256*ks + 16*h}")
    a("s_waitcnt lgkmcnt(8)")
    a("s_branch K2_FL")
    a.label("K2_NOAGG")
    a("s_waitcnt lgkmcnt(0)")
    a.label("K2_FL")
    a("v_readfirstlane_b32 s76, v12")
    a("v_readfirstlane_b32 s77, v13")
    a(f"s_cmp_lg_u32 s{sOVF}, 0")
    a("s_cbranch_scc1 K2_RETRY")
    a(f"s_add_u32 s3, s{sCHUNK}, 32")
    a("s_cmp_gt_u32 s76, s3")
    a("s_cbranch_scc1 K2_NEXTCHUNK")
    a(f"s_andn2_b32 s77, s77, s{sMODE}")
    a("s_cbranch_scc1 K2_GOSLOW")
    a(f"s_cmp_ge_u32 s{sW}, 4")
    a("s_cbranch_scc1 K2_FIN")
    a(f"s_mov_b32 s78, {NLN2:#x}")
    a(f"s_mov_b32 s79, {NLN2:#x}")
    a(f"s_mov_b32 s76, {NLOG2E:#x}")
    a(f"s_mov_b32 s77, {NLOG2E:#x}")
    for r in range(16):
        if r % 2 == 0: a(f"s_waitcnt lgkmcnt({7 - r//2})")
        a(f"v_cvt_f32_f64 v{96+r}, v[{16+2*r}:{17+2*r}]")
    for r in range(8):
        a(f"v_pk_mul_f32 {P(96+2*r)}, {P(96+2*r)}, s[78:79]")
    for r in range(8):
        a(f"v_cvt_pk_bf16_f32 v{16+r}, v{96+2*r}, v{97+2*r}")
    a(f"v_cmp_gt_u32 vcc, {NPB}, v9")
    a("s_nop 0")
    for ks in range(2):
        for ft in range(4):
            a(f"v_mfma_f32_16x16x32_bf16 v[{80+4*ft}:{83+4*ft}], v[{48+8*ft+4*ks}:{51+8*ft+4*ks}], v[{16+4*ks}:{19+4*ks}], v[{80+4*ft}:{83+4*ft}]")
    a("s_nop 4")
    for q in range(8):
        if q == 6: a("s_nop 0")
        a(f"v_pk_mul_f32 {P(16+2*q)}, {P(80+2*q)}, s[76:77]")
    for r in range(16):
        a(f"v_exp_f32 v{16+r}, v{16+r}")
    for q in range(8):
        a(f"v_pk_add_f32 {P(16+2*q)}, {P(16+2*q)}, s[{sONE}:{sONE+1}]")
    for r in range(16):
        a(f"v_rcp_f32 v{16+r}, v{16+r}")
    for q in range(8):
        a(f"v_pk_mul_f32 {P(16+2*q)}, {P(16+2*q)}, {P(80+2*q)}")
    for q in range(8):
        a(f"v_cvt_pk_bf16_f32 v{32+q}, v{16+2*q}, v{17+2*q}")
    a("s_mov_b64 exec, vcc")
    a(f"buffer_store_dwordx4 v[32:35], v6, s[{S_OUT}:{S_OUT+3}], 0 offen")
    a(f"buffer_store_dwordx4 v[36:39], v6, s[{S_OUT}:{S_OUT+3}], 0 offen offset:16")
    a.label("K2_FIN")
    stamp_flush(a, 1, 14, 15, sW, sT)
    a.label("K2_END")
    a("s_endpgm")
    a.label("K2_SLOWLOOP")
    mainloop(a, "S", True)
    a("s_branch K2_AFTER")
    a.label("K2_GOSLOW")
    a(f"s_mov_b32 s{sMODE}, 1")
    a(f"s_mov_b32 s{sCHUNK}, -32")
    a("s_waitcnt lgkmcnt(0)")
    a("s_barrier")
    for r in range(4): a(f"v_mov_b32 v{16+r}, 0")
    a("v_lshlrev_b32 v10, 4, v0")
    a(f"ds_write_b128 v10, v[16:19] offset:{AGG}")
    a(f"v_cmp_gt_u32 vcc, {(50*RS - 16384)//16}, v0")
    a("s_mov_b64 exec, vcc")
    a(f"ds_write_b128 v10, v[16:19] offset:{AGG+16384}")
    a("s_mov_b64 exec, -1")
    a.label("K2_NEXTCHUNK")
    a(f"s_add_u32 s{sCHUNK}, s{sCHUNK}, 32")
    a("s_waitcnt lgkmcnt(0)")
    rec_prep()
    rec_masks()
    a.label("K2_RETRY")
    a("s_waitcnt lgkmcnt(0)")
    rec_prep()
    rec_loads(False)
    a(f"buffer_load_dword v127, v3, s[{S_TAB}:{S_TAB+3}], 0 offen")
    prefill(a, 0)
    a("s_branch K2_RECONST")

def gen_k2_reconst(a):
    a.label("K2_RECONST")
    a("v_and_b32 v8, 31, v1")
    a("v_lshrrev_b32 v11, 5, v1")
    a("v_lshlrev_b32 v12, 3, v11")
    a("v_sub_u32 v12, v8, v12")
    a("v_and_b32 v13, 1, v12")
    a("v_lshlrev_b32 v13, 4, v13")
    a("v_mov_b32 v14, 0x3f80")
    a("v_lshlrev_b32 v13, v13, v14")
    a("v_ashrrev_i32 v12, 1, v12")
    for i in range(4):
        a(f"v_cmp_eq_u32 s[76:77], {i}, v12")
        a("s_nop 1")
        a(f"v_cndmask_b32 v{I0+i}, 0, v13, s[76:77]")
    a("v_bfe_u32 v12, v8, 2, 1")
    a("v_and_b32 v13, 1, v8")
    a("v_lshl_or_b32 v14, v12, 1, v13")
    a("v_lshlrev_b32 v15, 1, v11")
    a("v_sub_u32 v15, v14, v15")
    a("v_cmp_eq_u32 s[76:77], 0, v15")
    a("v_cmp_eq_u32 s[78:79], 1, v15")
    a("v_mov_b32 v26, 0x3f803f80")
    a(f"v_mov_b32 v{AEXT+3}, 0")
    a(f"v_cndmask_b32 v{AEXT}, 0, v26, s[76:77]")
    a(f"v_cndmask_b32 v{AEXT+1}, 0, v26, s[78:79]")
    a(f"v_mov_b32 v{BX0+3}, 0")
    a(f"v_mov_b32 v{BX1+3}, 0")
    stream_addrs(a)
    a("v_lshlrev_b32 v9, 1, v8")
    a("s_movk_i32 s3, 0x4000")
    a(f"buffer_load_ushort v24, v9, s[{S_WM}:{S_WM+3}], s3 offen")
    a(f"buffer_load_ushort v25, v9, s[{S_WM}:{S_WM+3}], s3 offen offset:64")
    a(f"s_mov_b32 s3, {NLOG2E:#x}")
    a("v_cmp_gt_u32 s[78:79], 32, v1")
    a("s_waitcnt vmcnt(0)")
    for j, bx in ((0, BX0), (1, BX1)):
        a(f"v_lshlrev_b32 v{24+j}, 16, v{24+j}")
        a(f"v_mul_f32 v{24+j}, s3, v{24+j}")
        a(f"v_cvt_pk_bf16_f32 v26, v{24+j}, v{24+j}")
        a("v_and_b32 v27, 0xffff0000, v26")
        a(f"v_sub_f32 v27, v{24+j}, v27")
        a("v_cvt_pk_bf16_f32 v27, v27, v27")
        a(f"v_cndmask_b32 v26, v27, v26, s[78:79]")
        a(f"v_and_b32 v{bx+2}, 0xffff, v26")
    a(f"s_lshl_b32 s3, s{sNT}, 4")
    a("v_and_b32 v5, 15, v1")
    a("v_add_u32 v5, s3, v5")
    a("v_lshrrev_b32 v7, 4, v1")
    a(f"s_lshl_b32 s76, s{sFT}, 7")
    a(f"v_mul_u32_u24 v6, {RS}, v5")
    a("v_lshl_add_u32 v6, v7, 5, v6")
    a("v_add_u32 v6, s76, v6")
    a("v_cmp_gt_u32 s[78:79], 50, v5")
    a(f"v_add_u32 v2, {BP}, v6")
    a("ds_read2_b32 v[20:21], v2 offset0:0 offset1:2")
    a("ds_read2_b32 v[22:23], v2 offset0:4 offset1:6")
    a("s_waitcnt lgkmcnt(0)")
    for r in range(4):
        a(f"v_lshlrev_b32 v{16+r}, 16, v{20+r}")
        a(f"v_and_b32 v{20+r}, 0xffff0000, v{20+r}")
        a(f"v_add_f32 v{16+r}, v{16+r}, v{20+r}")
    for r in range(4):
        a(f"v_exp_f32 v{20+r}, v{16+r}")
    a("s_nop 0")
    for r in range(4):
        a(f"v_add_f32 v{20+r}, 1.0, v{20+r}")
    for r in range(4):
        a(f"v_rcp_f32 v{20+r}, v{20+r}")
    a("s_nop 0")
    for r in range(4):
        a(f"v_mul_f32 v{28+r}, v{16+r}, v{20+r}")
    a("s_waitcnt lgkmcnt(0)")
    a("s_barrier")
    a("s_branch K2_PASS")

HEAD = open("standalone__mpnn_edge_mlp__graph.s.ref").read().split("; Override launch")[0]

def main(out):
    a = Asm()
    a.lines.append(HEAD.rstrip())
    a.lines.append(f"; @launch kernel=k1_kernel grid=({NP},1,1) block=(1024,1,1) lds=90112")
    a.lines.append(f"; @launch kernel=k2_kernel grid=({NB},1,1) block=(1024,1,1) lds={K2_LDS}")
    a('.amdgcn_target "amdgcn-amd-amdhsa--gfx950"')
    a(".text")
    for k, g in (("k1_kernel", gen_k1), ("k2_kernel", gen_k2)):
        a(f".globl {k}")
        a(".p2align 8")
        a(f".type {k},@function")
        g(a)
    gen_k2_reconst(a)
    a('.section .rodata,"a"')
    a(".p2align 6")
    a.lines.append(desc("k1_kernel", 80, 102).rstrip())
    a(".p2align 6")
    a.lines.append(desc("k2_kernel", 128, 102).rstrip())
    open(out, "w").write(a.text())

if __name__ == "__main__":
    main(sys.argv[1] if len(sys.argv) > 1 else "standalone__mpnn_edge_mlp__graph.s")
```

```python
import sys, os
sys.path.insert(0, os.path.dirname(__file__))
from asmlib import *

STAMP = int(os.environ.get("STAMP", "0"))
OPT = dict(kv.split("=") for kv in os.environ.get("OPT", "").split(",") if kv)
def opt(k, d): return int(OPT.get(k, d))

N = 12500; E = 800000
NP = 250; CH = 3200
NPB = 49; NB = 256
TROWS = 50
WS_TAB = 0; WS_OFF = 0x200000; WS_REC = 0x400000
WS_STAMP = 0x1000000
NLOG2E = 0xbfb8aa3b
NLN2 = 0xbf317218

def stamp(a, idx):
    if not STAMP: return
    assert idx < 10
    a(f"s_memtime s[{80+2*idx}:{81+2*idx}]")
def stamp_start(a):
    if not STAMP: return
    a("s_memrealtime s[100:101]")
    for i in range(10): a(f"s_mov_b32 s{80+2*i}, 0") if False else None
def stamp_flush(a, kern, wsl, wsh, wave, extra=None):
    if not STAMP: return
    a("s_waitcnt vmcnt(0)")
    stamp(a, 9)
    a(f"s_memrealtime s[76:77]")
    if STAMP == 2:
        lab = f"DBG_{kern}_{len(a.lines)}"
        a("s_load_dwordx2 s[72:73], s[0:1], 56")
        a(f"s_waitcnt lgkmcnt(0)")
        a(f"s_mov_b64 exec, 1")
        if kern == 0:
            a("s_add_u32 s72, s72, 512")
            a("s_addc_u32 s73, s73, 0")
        a("v_mov_b32 v2, 0")
        a("s_cmp_lg_u32 s2, 5")
        a(f"s_cbranch_scc1 {lab}")
        a(f"s_cmp_lg_u32 s{wave}, 0")
        a(f"s_cbranch_scc1 {lab}")
        a("v_mov_b32 v3, s100")
        a(f"global_store_dword v2, v3, s[72:73] offset:{32*kern}")
        a("v_mov_b32 v3, s76")
        a(f"global_store_dword v2, v3, s[72:73] offset:{32*kern+4}")
        idx = (3, 4, 5, 6, 7, 9) if kern == 0 else (2, 4, 6, 7, 8, 9)
        for i, k in enumerate(idx):
            a(f"s_sub_u32 s3, s{80+2*k}, s80")
            a("v_mov_b32 v3, s3")
            a(f"global_store_dword v2, v3, s[72:73] offset:{32*kern+8+4*i}")
        a.label(lab)
        a("s_waitcnt vmcnt(0)")
        return
    a(f"s_lshl_b32 s78, s2, 4")
    a(f"s_add_u32 s78, s78, s{wave}")
    a(f"s_lshl_b32 s78, s78, 6")
    a(f"s_add_u32 s78, s78, {WS_STAMP + kern*0x100000}")
    a(f"s_waitcnt lgkmcnt(0)")
    a(f"s_mov_b64 exec, 1")
    a(f"v_mov_b32 v2, s78")
    srcs = [80+2*i for i in range(10)] + [100, extra if extra is not None else 100, 100, 100, 100, 76]
    for i in range(16):
        a(f"v_mov_b32 v3, s{srcs[i]}")
        a(f"global_store_dword v2, v3, s[{wsl}:{wsh}] offset:{4*i}")
    a("s_waitcnt vmcnt(0)")
def prio(a, p):
    if opt("prio", 1): a(f"s_setprio {p}")

def gen_k1(a):
    HIST = 0; OFFS = 1024; RECS = 2048; W1L = RECS + CH*8; XL = W1L + 3*8192
    st = ["", " sc1", " nt", " sc0 sc1", " sc1 nt"][opt("k1sc", 0)]
    a.label("k1_kernel")
    a(f"s_cmp_ge_u32 s2, {NP}")
    a("s_cbranch_scc1 K1_END")
    a("s_load_dwordx8 s[4:11], s[0:1], 0")
    a("s_load_dwordx2 s[12:13], s[0:1], 32")
    a("s_load_dwordx2 s[14:15], s[0:1], 64")
    stamp_start(a)
    stamp(a, 0)
    a("v_lshrrev_b32 v2, 6, v0")
    a("v_and_b32 v1, 63, v0")
    a("v_readfirstlane_b32 s16, v2")
    a(f"v_cmp_gt_u32 vcc, {CH//4}, v0")
    a("s_mov_b64 s[20:21], vcc")
    a(f"s_mul_i32 s17, s2, {CH*4}")
    a("v_lshlrev_b32 v3, 4, v0")
    a("v_add_u32 v2, s17, v3")
    a("v_lshrrev_b32 v34, 1, v2")
    a("s_cmp_ge_u32 s16, 13")
    a("s_cbranch_scc1 K1_TABLE")
    a("v_lshlrev_b32 v35, 4, v1")
    for r in range(4): a(f"v_mov_b32 v{36+r}, 0")
    a(f"ds_write_b128 v35, v[36:39] offset:{HIST}")
    a("s_mov_b64 exec, s[20:21]")
    a("s_waitcnt lgkmcnt(0)")
    stamp(a, 1)
    nt = " nt" if opt("k1nt", 1) else ""
    a("global_load_dwordx4 v[4:7], v2, s[10:11]" + nt)
    a("global_load_dwordx4 v[8:11], v2, s[8:9]" + nt)
    a("global_load_dwordx2 v[12:13], v34, s[6:7]" + nt)
    stamp(a, 2)
    a("s_barrier")
    stamp(a, 3)
    a("v_mov_b32 v35, 1")
    a(f"s_movk_i32 s3, {-NPB*4}")
    a("s_waitcnt vmcnt(2)")
    stamp(a, 4)
    for j in range(4):
        a(f"v_mul_u32_u24 v{14+j}, 5350, v{4+j}")
        a(f"v_lshrrev_b32 v{14+j}, 18, v{14+j}")
        a(f"v_lshlrev_b32 v{18+j}, 2, v{14+j}")
        a(f"ds_add_rtn_u32 v{22+j}, v{18+j}, v35 offset:{HIST}")
    for j in range(4):
        a(f"v_lshlrev_b32 v{4+j}, 2, v{4+j}")
        a(f"v_mad_i32_i24 v{27+2*j}, v{14+j}, s3, v{4+j}")
    a("s_mov_b32 s3, 0xffff0000")
    a("s_waitcnt vmcnt(0)")
    a("v_lshl_or_b32 v26, v12, 16, v8")
    a("v_and_or_b32 v28, v12, s3, v9")
    a("v_lshl_or_b32 v30, v13, 16, v10")
    a("v_and_or_b32 v32, v13, s3, v11")
    a("s_mov_b64 exec, -1")
    a("v_lshlrev_b32 v3, 4, v1")
    a("s_waitcnt lgkmcnt(0)")
    a("s_barrier")
    stamp(a, 5)
    a(f"ds_read_b128 v[56:59], v3 offset:{HIST}")
    a("s_waitcnt lgkmcnt(0)")
    a("v_add_u32 v66, v56, v57")
    a("v_add_u32 v67, v66, v58")
    a("v_add_u32 v68, v67, v59")
    a("v_mov_b32 v69, v68")
    a("s_nop 1")
    scan64(a, 69)
    a("v_sub_u32 v72, v69, v68")
    a("v_add_u32 v73, v72, v56")
    a("v_add_u32 v74, v72, v66")
    a("v_add_u32 v75, v72, v67")
    a(f"ds_write_b128 v3, v[72:75] offset:{OFFS}")
    a("s_mov_b64 exec, s[20:21]")
    for j in range(4):
        a(f"ds_read_b32 v{4+j}, v{18+j} offset:{OFFS}")
    for j in range(4):
        a(f"s_waitcnt lgkmcnt(3)")
        a(f"v_add_lshl_u32 v{4+j}, v{4+j}, v{22+j}, 3")
        a(f"ds_write_b64 v{4+j}, v[{26+2*j}:{27+2*j}] offset:{RECS}")
    a("s_mov_b64 exec, -1")
    a("s_cmp_lg_u32 s16, 12")
    a("s_cbranch_scc1 K1_NOOFF")
    for j in range(4):
        a(f"v_lshl_or_b32 v{76+j}, v{56+j}, 16, v{72+j}")
    a("s_lshl_b32 s3, s2, 10")
    a(f"s_add_u32 s3, s3, {WS_OFF}")
    a("v_add_u32 v3, s3, v3")
    a("global_store_dwordx4 v3, v[76:79], s[14:15]" + st)
    a.label("K1_NOOFF")
    a("s_mov_b64 exec, s[20:21]")
    a("v_lshlrev_b32 v3, 4, v0")
    a(f"s_mul_i32 s3, s2, {CH*8}")
    a(f"s_add_u32 s3, s3, {WS_REC}")
    a("v_add_u32 v13, s3, v3")
    a(f"v_add_u32 v12, {CH*4}, v13")
    a("s_waitcnt lgkmcnt(0)")
    a("s_barrier")
    stamp(a, 6)
    a(f"ds_read_b128 v[4:7], v3 offset:{RECS}")
    a(f"ds_read_b128 v[8:11], v3 offset:{RECS + CH*4}")
    a("s_waitcnt lgkmcnt(1)")
    a("global_store_dwordx4 v13, v[4:7], s[14:15]" + st)
    a("s_waitcnt lgkmcnt(0)")
    a("global_store_dwordx4 v12, v[8:11], s[14:15]" + st)
    stamp(a, 7); stamp(a, 8)
    stamp_flush(a, 0, 14, 15, 16)
    a("s_endpgm")
    a.label("K1_TABLE")
    a("s_sub_u32 s18, s16, 13")
    a("s_lshl_b32 s19, s18, 13")
    a(f"s_add_u32 s19, s19, {W1L}")
    a(f"s_mul_i32 s22, s18, 3072")
    a(f"s_add_u32 s22, s22, {XL}")
    a("v_lshlrev_b32 v4, 4, v1")
    a("v_lshrrev_b32 v5, 3, v1")
    a("v_and_b32 v6, 7, v1")
    a("v_xor_b32 v6, v6, v5")
    a("v_lshlrev_b32 v6, 4, v6")
    a("v_lshl_add_u32 v6, v5, 7, v6")
    a(f"s_mul_i32 s23, s2, {TROWS*128}")
    a("s_lshl_b32 s3, s18, 11")
    a("s_add_u32 s36, s23, s3")
    a("s_waitcnt lgkmcnt(0)")
    stamp(a, 1)
    srd(a, 24, 4, 5, N*128)
    srd(a, 28, 12, 13, 129*128)
    srd(a, 32, 14, 15, N*128)
    a("s_mov_b32 m0, s22")
    a("s_add_u32 s37, s36, 1024")
    a("buffer_load_dwordx4 v6, s[24:27], s36 offen lds")
    a("s_add_u32 m0, s22, 1024")
    a(f"s_add_u32 s38, s23, {48*128}")
    a("buffer_load_dwordx4 v6, s[24:27], s37 offen lds")
    a("s_add_u32 m0, s22, 2048")
    a("v_add_u32 v6, s38, v6")
    a("buffer_load_dwordx4 v6, s[24:27], 0 offen lds")
    a("s_mov_b32 m0, s19")
    a("s_movk_i32 s3, 0x1000")
    for i in range(4):
        a(f"buffer_load_dwordx4 v4, s[28:31], 0 offen offset:{1024*i} lds")
    a("s_add_u32 m0, s19, 4096")
    a("s_nop 0")
    for i in range(4):
        a(f"buffer_load_dwordx4 v4, s[28:31], s3 offen offset:{1024*i} lds")
    if opt("k1warm", 1):
        a("s_cmp_ge_u32 s2, 8")
        a("s_cbranch_scc1 K1_NOWARM")
        a("s_load_dwordx2 s[42:43], s[0:1], 40")
        a("v_lshlrev_b32 v14, 7, v1")
        a("s_lshl_b32 s3, s18, 13")
        a("v_add_u32 v14, s3, v14")
        a("buffer_load_dword v15, v14, s[28:31], 0 offen")
        a("s_waitcnt lgkmcnt(0)")
        srd(a, 44, 42, 43, 128*128)
        a("buffer_load_dword v15, v14, s[44:47], 0 offen")
        a.label("K1_NOWARM")
    stamp(a, 2)
    a("s_barrier")
    stamp(a, 3)
    a("v_lshrrev_b32 v7, 4, v1")
    a("v_bfe_u32 v8, v1, 2, 2")
    a("v_and_b32 v9, 3, v1")
    a("v_lshl_add_u32 v8, v7, 3, v8")
    a("v_lshlrev_b32 v8, 7, v8")
    a("v_lshl_add_u32 v8, v9, 5, v8")
    a("v_add_u32 v8, s19, v8")
    a("v_and_b32 v10, 15, v1")
    a("v_and_b32 v11, 7, v1")
    a("v_xor_b32 v11, v11, v7")
    a("v_lshlrev_b32 v11, 4, v11")
    a("v_lshl_add_u32 v11, v10, 7, v11")
    a("v_add_u32 v11, s22, v11")
    a("v_xor_b32 v12, 64, v11")
    a("v_lshlrev_b32 v13, 7, v10")
    a("v_lshl_add_u32 v13, v7, 5, v13")
    a(f"s_mov_b32 s40, {NLOG2E:#x}")
    a(f"s_mov_b32 s41, {NLOG2E:#x}")
    a("s_waitcnt vmcnt(0)")
    stamp(a, 4)
    a("ds_read_b128 v[16:19], v11")
    a("ds_read_b128 v[20:23], v12")
    for ft in range(4):
        for ks in range(2):
            for h in range(2):
                r = 32 + 8*ft + 4*ks + 2*h
                a(f"ds_read_b64_tr_b16 v[{r}:{r+1}], v8 offset:{(32*ks+4*h)*128 + 8*ft}")
    def tile(xa, soff, mask2):
        for ft in range(4):
            a(f"v_mfma_f32_16x16x32_bf16 v[{64+4*ft}:{67+4*ft}], v[{32+8*ft}:{35+8*ft}], v[{xa}:{xa+3}], 0")
        for ft in range(4):
            a(f"v_mfma_f32_16x16x32_bf16 v[{64+4*ft}:{67+4*ft}], v[{36+8*ft}:{39+8*ft}], v[{xa+4}:{xa+7}], v[{64+4*ft}:{67+4*ft}]")
        a("s_nop 4")
        for q in range(8):
            if q == 6: a("s_nop 0")
            a(f"v_pk_mul_f32 v[{64+2*q}:{65+2*q}], v[{64+2*q}:{65+2*q}], s[40:41]")
        for q in range(8):
            a(f"v_cvt_pk_bf16_f32 v{64+q}, v{64+2*q}, v{65+2*q}")
        if mask2:
            a("v_cmp_gt_u32 vcc, 2, v10")
            a("s_mov_b64 exec, vcc")
        a(f"buffer_store_dwordx4 v[64:67], v13, s[32:35], s{soff} offen" + st)
        a(f"buffer_store_dwordx4 v[68:71], v13, s[32:35], s{soff} offen offset:16" + st)
    a("s_waitcnt lgkmcnt(0)")
    tile(16, 36, False)
    a("s_cmp_lg_u32 s18, 0")
    a("s_cbranch_scc1 K1_TEND")
    a("ds_read_b128 v[16:19], v11 offset:2048")
    a("ds_read_b128 v[20:23], v12 offset:2048")
    a("s_waitcnt lgkmcnt(0)")
    tile(16, 38, True)
    a.label("K1_TEND")
    for i in (5, 6, 7, 8): stamp(a, i)
    stamp_flush(a, 0, 14, 15, 16)
    a.label("K1_END")
    a("s_endpgm")
    return XL + 3*3072

RS = 528; CAPN = 112; BLK = CAPN*4
CNT = 0; FLG = 256; AGG = 512; BP = AGG + 50*RS; RECS = BP + 50*RS; GT = RECS + 24576
WU2 = GT + 8192; STG = (WU2 + 8192 + 127)//128*128
K2_LDS = STG + 65536
assert K2_LDS <= 163840
D0 = 16; D1 = 32; X = 48; A = 64; AEXT = 80; BX0 = 84; BX1 = 88; I0 = 92; I1 = 96
RA = 100; R4 = 104; VA = 108; VE = 109; VG = 110; CD0 = 111; CD1 = 112; L8 = 113; CA = 114; CE = 115
FA = 116; FAN = 118; GNR = 120; GBA = 122; GBE = 123; PM = 124; OFFW = 125; J0 = 126
NN = 2; PA = 4; PB = 6; RR = 8; OUT = 10; VO = 14
S_X = 16; S_WM = 20; S_WU = 24; S_OUT = 28; S_TAB = 32; S_OFF = 36; S_REC = 40
sB = 44; sNODE0 = 45; sW = 46; sSLOT = 47; sT = 48; st = 49; sCHUNK = 50; sMODE = 51; sOVF = 52; sNT = 53; sFT = 54; s128 = 55
sTN = 56; sTMP = 57; sONE = 58
sVAL = 60
sCAPN = 6; sRECS = 7

def P(r): return f"v[{r}:{r+1}]"

def mfma3(Dn, j):
    bx = BX0 if j == 0 else BX1
    return [f"v_mfma_f32_32x32x16_bf16 {v(Dn,16)}, {v(AEXT,4)}, {v(bx,4)}, 0",
            f"v_mfma_f32_32x32x16_bf16 {v(Dn,16)}, {v(A+8*j,4)}, {v(I0,4)}, {v(Dn,16)}",
            f"v_mfma_f32_32x32x16_bf16 {v(Dn,16)}, {v(A+8*j+4,4)}, {v(I1,4)}, {v(Dn,16)}"]

def xphase(a, Dc, mf):
    ex = [f"v_exp_f32 v{X+r}, v{Dc+r}" for r in range(16)]
    seq = [mf[0]] + ex[0:4] + [mf[1]] + ex[4:8] + [mf[2]] + ex[8:16] if mf else ex
    for l in seq: a(l)

def fphase(a, Dc, off, slow, fa, mids=()):
    mids = dict(mids)
    if not slow:
        a(f"v_pk_add_f32 {P(PA)}, {P(X)}, s[{sONE}:{sONE+1}]")
        cur, nxt = PA, PB
        for q in range(1, 8):
            src = Dc if q == 1 else NN
            a(f"v_pk_fma_f32 {P(NN)}, {P(src)}, {P(X+2*q)}, {P(src)}")
            a(f"v_pk_fma_f32 {P(nxt)}, {P(cur)}, {P(X+2*q)}, {P(cur)}")
            a(f"v_pk_fma_f32 {P(NN)}, {P(Dc+2*q)}, {P(cur)}, {P(NN)}")
            cur, nxt = nxt, cur
            if q in mids: mids[q]()
        a(f"v_rcp_f32 v{RR}, v{cur}")
        a(f"v_rcp_f32 v{RR+1}, v{cur+1}")
        a(f"v_max3_f32 v{PM}, v{cur}, v{cur+1}, v{PM}")
        a(f"v_pk_mul_f32 {P(OUT)}, {P(NN)}, {P(RR)}")
    else:
        for q in range(8):
            a(f"v_pk_add_f32 {P(X+2*q)}, {P(X+2*q)}, s[{sONE}:{sONE+1}]")
        for q in sorted(mids): mids[q]()
        for r in range(16):
            a(f"v_rcp_f32 v{X+r}, v{X+r}")
        a("s_nop 0")
        a(f"v_pk_mul_f32 {P(OUT)}, {P(Dc)}, {P(X)}")
        for q in range(1, 8):
            a(f"v_pk_fma_f32 {P(OUT)}, {P(Dc+2*q)}, {P(X+2*q)}, {P(OUT)}")
    a(f"v_cvt_f64_f32 {P(OUT+2)}, v{OUT+1}")
    a(f"v_cvt_f64_f32 {P(OUT)}, v{OUT}")
    a(f"ds_add_f64 v{fa+1}, {P(OUT+2)} offset:{AGG+off}")
    a(f"ds_add_f64 v{fa}, {P(OUT)} offset:{AGG+off}")

def dma4(a):
    for i in range(4):
        a(f"s_add_u32 m0, s{sSLOT}, {i*1024}" if i else f"s_mov_b32 m0, s{sSLOT}")
        a(f"v_mad_u32_u16 v{VO+(i&1)}, v{R4+i}, s{s128}, v{CD0+(i&1)}")
        a(f"buffer_load_dwordx4 v{VO+(i&1)}, s[{S_TAB}:{S_TAB+3}], 0 offen lds")

def aread(a):
    for k in range(4):
        a(f"ds_read_b128 {v(A+4*k,4)}, v{RA+k}")

def bext(a, fa):
    a(f"ds_read_b32 v{BX0}, v{fa} offset:{BP}")
    a(f"ds_read_b32 v{BX0+1}, v{fa+1} offset:{BP}")
    a(f"ds_read_b32 v{BX1}, v{fa} offset:{BP+256}")
    a(f"ds_read_b32 v{BX1+1}, v{fa+1} offset:{BP+256}")

def loop_head1(a):
    a(f"ds_read_b32 v{GBA}, v{VA}")
    a(f"ds_read_b32 v{GBE}, v{VE}")
    a(f"ds_read2_b32 {P(GNR)}, v{VG} offset0:0 offset1:2")
    a("s_waitcnt lgkmcnt(2)")
    a(f"v_add_u32 v{GBA}, v{GBA}, v{CA}")
    a(f"ds_read_b128 {v(R4,4)}, v{GBA}")
    a("s_waitcnt lgkmcnt(2)")
    a(f"v_add_u32 v{GBE}, v{GBE}, v{CE}")
    a(f"ds_read_u16 v{AEXT+2}, v{GBE}")
    a("s_waitcnt lgkmcnt(1)")
    dma4(a)
    a(f"v_add_u32 v{FA}, v{GNR}, v{L8}")
    a(f"v_add_u32 v{FA+1}, v{GNR+1}, v{L8}")
    bext(a, FA)

def mainloop(a, tag, slow):
    L = lambda x: f"K2_{tag}_{x}"
    a(f"ds_read_b32 v{GBA}, v{VA} offset:512")
    a("s_waitcnt lgkmcnt(0)")
    a(f"v_add_u32 v{GBA}, v{GBA}, v{CA}")
    a(f"ds_read_b128 {v(R4,4)}, v{GBA}")
    a(f"ds_read_b32 v{GBA}, v{VA} offset:1024")
    a("s_waitcnt vmcnt(0)")
    aread(a)
    a("s_waitcnt lgkmcnt(0)")
    a(f"s_add_u32 s{sTN}, s{st}, 16")
    a(f"s_cmp_ge_u32 s{sTN}, s{sT}")
    a(f"s_cbranch_scc1 {L('P1')}")
    dma4(a)
    a.label(L('P1'))
    for m in mfma3(D0, 0): a(m)
    a(f"v_add_u32 v{GBA}, v{GBA}, v{CA}")
    a("s_nop 7")
    a("s_nop 2")
    a.label(L('LOOP'))
    a(f"s_add_u32 s{sTN}, s{st}, 16")
    a(f"s_cmp_ge_u32 s{sTN}, s{sT}")
    a(f"s_cbranch_scc1 {L('TAIL')}")
    a(f"ds_read_b32 v{GBE}, v{VE} offset:512")
    a(f"ds_read2_b32 {P(GNR)}, v{VG} offset0:128 offset1:130")
    a(f"ds_read_b128 {v(R4,4)}, v{GBA}")
    a(f"ds_read_b32 v{GBA}, v{VA} offset:1536")
    xphase(a, D0, mfma3(D1, 1))
    a("s_waitcnt vmcnt(0) lgkmcnt(0)")
    aread(a)
    a(f"v_add_u32 v{GBE}, v{GBE}, v{CE}")
    a(f"v_add_u32 v{FAN}, v{GNR}, v{L8}")
    a(f"v_add_u32 v{FAN+1}, v{GNR+1}, v{L8}")
    a(f"ds_read_u16 v{AEXT+2}, v{GBE}")
    bext(a, FAN)
    def mid():
        a(f"s_add_u32 s{sTMP}, s{st}, 32")
        a(f"s_cmp_ge_u32 s{sTMP}, s{sT}")
        a(f"s_cbranch_scc1 {L('NOD')}")
        a("s_waitcnt lgkmcnt(5)")
        dma4(a)
        a.label(L('NOD'))
    fphase(a, D0, 0, slow, FA, [(3, mid)])
    a("s_waitcnt lgkmcnt(2)")
    xphase(a, D1, mfma3(D0, 0))
    a(f"v_add_u32 v{GBA}, v{GBA}, v{CA}")
    a(f"v_add_u32 v{VA}, 512, v{VA}")
    a(f"v_add_u32 v{VE}, 512, v{VE}")
    a(f"v_add_u32 v{VG}, 512, v{VG}")
    fphase(a, D1, 256, slow, FA)
    a(f"v_mov_b32 v{FA}, v{FAN}")
    a(f"v_mov_b32 v{FA+1}, v{FAN+1}")
    a(f"s_mov_b32 s{st}, s{sTN}")
    if not slow and opt("lprio", 1):
        for thr, p in ((32, 2), (64, 1), (96, 0)):
            a(f"s_lshr_b32 s{sTMP}, s{st}, 4")
            a(f"s_cmp_lg_u32 s{sTMP}, {thr//16}")
            a(f"s_cbranch_scc1 {L('PR%d' % p)}")
            a(f"s_setprio {p}")
            a.label(L('PR%d' % p))
    a(f"s_branch {L('LOOP')}")
    a.label(L('TAIL'))
    xphase(a, D0, mfma3(D1, 1))
    fphase(a, D0, 0, slow, FA)
    xphase(a, D1, None)
    fphase(a, D1, 256, slow, FA)
    a.label(L('DONE'))

def prefill(a, first):
    for r in range(4): a(f"v_mov_b32 v{28+r}, 0xffff")
    a("v_lshlrev_b32 v10, 4, v0")
    a(f"ds_write_b128 v10, v[28:31] offset:{RECS}")
    lab = "K2_PF%d" % first
    a(f"s_cmp_ge_u32 s{sW}, 8")
    a(f"s_cbranch_scc1 {lab}a")
    a(f"v_add_u32 v26, {RECS+16384}, v10")
    a(f"ds_write_b128 v26, v[28:31]")
    a.label(lab + "a")
    a(f"v_mov_b32 v26, {RECS + NPB*BLK}")
    a(f"v_mov_b32 v27, {NPB*RS}")
    a(f"s_cmp_lg_u32 s{sW}, 0")
    a(f"s_cbranch_scc1 {lab}b")
    a(f"v_subrev_u32 v26, {NPB}, v1")
    a(f"v_cmp_gt_u32 s[76:77], {NPB}, v1")
    a("v_mov_b32 v27, 0")
    a("v_lshlrev_b32 v30, 2, v1")
    a(f"v_cndmask_b32 v29, v26, v1, s[76:77]")
    a(f"v_cndmask_b32 v28, 32, v27, s[76:77]")
    a(f"ds_write_b32 v30, v27 offset:{CNT}")
    if first:
        a(f"ds_write_b32 v30, v27 offset:{FLG}")
    a(f"v_mul_u32_u24 v27, {RS}, v29")
    a(f"v_mul_u32_u24 v26, {BLK}, v29")
    a(f"v_add3_u32 v26, v26, v28, s{sRECS}")
    a.label(lab + "b")
    a("v_lshlrev_b32 v10, 3, v0")
    a(f"v_add_u32 v10, {GT}, v10")
    a("ds_write_b64 v10, v[26:27]")

def stream_addrs(a):
    a(f"s_lshl_b32 s3, s{sW}, 5")
    a(f"s_add_u32 s3, s3, {GT}")
    a("v_lshrrev_b32 v27, 4, v1")
    a(f"v_lshl_add_u32 v{VA}, v27, 3, s3")
    a(f"v_lshl_add_u32 v{VE}, v14, 3, s3")
    a("s_add_u32 s3, s3, 4")
    a(f"v_lshl_add_u32 v{VG}, v11, 4, s3")

def gen_k2(a):
    a.label("k2_kernel")
    a(f"s_cmp_ge_u32 s2, {NB}")
    a("s_cbranch_scc1 K2_END")
    a("s_load_dwordx2 s[14:15], s[0:1], 64")
    a("s_load_dwordx2 s[4:5], s[0:1], 0")
    a("s_load_dwordx4 s[8:11], s[0:1], 32")
    a("s_load_dwordx2 s[12:13], s[0:1], 48")
    stamp_start(a)
    stamp(a, 0)
    prio(a, 3)
    a("v_lshrrev_b32 v2, 6, v0")
    a("v_and_b32 v1, 63, v0")
    a(f"v_readfirstlane_b32 s{sW}, v2")
    a("s_and_b32 s3, s2, 7")
    a("s_lshl_b32 s3, s3, 5")
    a(f"s_lshr_b32 s{sB}, s2, 3")
    a(f"s_add_u32 s{sB}, s{sB}, s3")
    a(f"s_mul_i32 s{sNODE0}, s{sB}, {NPB}")
    a("v_lshrrev_b32 v2, 2, v0")
    a("v_lshlrev_b32 v3, 10, v2")
    a(f"s_lshl_b32 s3, s{sB}, 2")
    a(f"s_mov_b32 s{S_OFF+2}, {NP*1024}")
    a(f"s_mov_b32 s{S_OFF+3}, 0x00020000")
    a("v_lshlrev_b32 v4, 4, v1")
    a("s_waitcnt lgkmcnt(0)")
    stamp(a, 1)
    a(f"s_add_u32 s{S_OFF}, s14, {WS_OFF}")
    a(f"s_addc_u32 s{S_OFF+1}, s15, 0")
    a(f"buffer_load_dword v{OFFW}, v3, s[{S_OFF}:{S_OFF+3}], s3 offen")
    wl = opt("warm", 7)
    def warm():
        a("s_lshr_b32 s3, s2, 3")
        a(f"s_mul_i32 s3, s3, 50048")
        a(f"v_lshlrev_b32 v13, {wl}, v0")
        a(f"v_add_u32 v13, s3, v13")
        a(f"v_cmp_gt_u32 vcc, {50048 >> wl}, v0")
        a("s_mov_b64 exec, vcc")
        a(f"buffer_load_dword v127, v13, s[{S_TAB}:{S_TAB+3}], 0 offen")
        a("s_mov_b64 exec, -1")
    WF = opt("warmfirst", 2)
    srd(a, S_TAB, 14, 15, N*128, WS_TAB)
    if WF == 1: warm()
    prio(a, 1)
    srd(a, S_WM, 8, 9, 129*128)
    srd(a, S_WU, 10, 11, 128*128)
    a(f"s_lshl_b32 s3, s{sW}, 10")
    a(f"s_add_u32 m0, s3, {STG}")
    a(f"s_cmp_ge_u32 s{sW}, 8")
    a("s_cbranch_scc1 K2_W1")
    a("s_add_u32 s3, s3, 8192")
    a(f"buffer_load_dwordx4 v4, s[{S_WM}:{S_WM+3}], s3 offen lds")
    a(f"s_add_u32 m0, s3, {WU2 - 8192}")
    a("s_nop 0")
    a(f"buffer_load_dwordx4 v4, s[{S_WU}:{S_WU+3}], s3 offen lds")
    a("s_branch K2_W2")
    a.label("K2_W1")
    a("s_sub_u32 s3, s3, 8192")
    a(f"buffer_load_dwordx4 v4, s[{S_WU}:{S_WU+3}], s3 offen lds")
    srd(a, S_X, 4, 5, N*128)
    a("v_lshrrev_b32 v5, 3, v1")
    a("v_and_b32 v6, 7, v1")
    a("v_xor_b32 v6, v6, v5")
    a("v_lshlrev_b32 v6, 4, v6")
    a("v_lshl_add_u32 v6, v5, 7, v6")
    a(f"s_add_u32 m0, s3, {STG + 16384}")
    a(f"s_lshl_b32 s76, s{sNODE0}, 7")
    a("s_add_u32 s3, s3, s76")
    a("v_add_u32 v6, s3, v6")
    a(f"buffer_load_dwordx4 v6, s[{S_X}:{S_X+3}], 0 offen lds")
    a.label("K2_W2")
    a("v_and_b32 v8, 31, v1")
    a("v_lshlrev_b32 v9, 1, v8")
    a("s_movk_i32 s3, 0x4000")
    a(f"buffer_load_ushort v24, v9, s[{S_WM}:{S_WM+3}], s3 offen")
    a(f"buffer_load_ushort v25, v9, s[{S_WM}:{S_WM+3}], s3 offen offset:64")
    prio(a, 0)
    srd(a, S_REC, 14, 15, NP*CH*8, WS_REC)
    srd(a, S_OUT, 12, 13, N*128)
    a(f"s_mov_b32 s{sMODE}, 0")
    a(f"s_mov_b32 s{sCHUNK}, 0")
    a(f"s_movk_i32 s{s128}, 128")
    a(f"s_movk_i32 s{sCAPN}, {CAPN}")
    a(f"s_mov_b32 s{sRECS}, {RECS}")
    a(f"s_mov_b32 s{sONE}, 1.0")
    a(f"s_mov_b32 s{sONE+1}, 1.0")
    a(f"s_lshl_b32 s{sSLOT}, s{sW}, 12")
    a(f"s_add_u32 s{sSLOT}, s{sSLOT}, {STG}")
    a(f"s_lshr_b32 s{sNT}, s{sW}, 2")
    a(f"s_and_b32 s{sFT}, s{sW}, 3")
    for r in range(4): a(f"v_mov_b32 v{16+r}, 0")
    a("v_lshlrev_b32 v10, 4, v0")
    a(f"ds_write_b128 v10, v[16:19] offset:{AGG}")
    a(f"ds_write_b128 v10, v[16:19] offset:{AGG+16384}")
    prefill(a, 1)
    a("v_lshrrev_b32 v11, 5, v1")
    a(f"v_lshlrev_b32 v{L8}, 3, v8")
    a("v_lshlrev_b32 v12, 3, v11")
    a("v_sub_u32 v12, v8, v12")
    a("v_and_b32 v13, 1, v12")
    a("v_lshlrev_b32 v13, 4, v13")
    a("v_mov_b32 v14, 0x3f80")
    a("v_lshlrev_b32 v13, v13, v14")
    a("v_ashrrev_i32 v12, 1, v12")
    for i in range(4):
        a(f"v_cmp_eq_u32 s[{60+4*i}:{61+4*i}], {i}, v12")
        a(f"v_cmp_eq_u32 s[{62+4*i}:{63+4*i}], {8+i}, v12")
    for i in range(4):
        a(f"v_cndmask_b32 v{I0+i}, 0, v13, s[{60+4*i}:{61+4*i}]")
        a(f"v_cndmask_b32 v{I1+i}, 0, v13, s[{62+4*i}:{63+4*i}]")
    a("v_bfe_u32 v12, v8, 2, 1")
    a("v_and_b32 v13, 1, v8")
    a("v_lshl_or_b32 v14, v12, 1, v13")
    a("v_lshlrev_b32 v15, 1, v11")
    a("v_sub_u32 v15, v14, v15")
    a("v_cmp_eq_u32 s[60:61], 0, v15")
    a("v_cmp_eq_u32 s[62:63], 1, v15")
    a("v_cmp_gt_u32 s[64:65], 15, v1")
    a("v_mov_b32 v26, 0x3f803f80")
    a(f"v_mov_b32 v{AEXT+3}, 0")
    a(f"v_cndmask_b32 v{AEXT}, 0, v26, s[60:61]")
    a(f"v_cndmask_b32 v{AEXT+1}, 0, v26, s[62:63]")
    a(f"v_cndmask_b32 v{J0}, 1, 2, s[64:65]")
    a(f"v_mov_b32 v{BX0+3}, 0")
    a(f"v_mov_b32 v{BX1+3}, 0")
    a("v_bfe_u32 v15, v8, 1, 1")
    a("v_lshrrev_b32 v26, 3, v8")
    a("v_lshl_or_b32 v27, v26, 1, v15")
    a(f"v_lshl_or_b32 v{CE}, v27, 2, 2")
    a("v_lshl_or_b32 v27, v14, 3, v27")
    a("v_and_b32 v28, 3, v27")
    a("v_lshrrev_b32 v27, 2, v27")
    a("v_lshl_or_b32 v27, v28, 3, v27")
    a("v_and_b32 v28, 7, v8")
    a("v_xor_b32 v28, v28, v11")
    a("v_lshlrev_b32 v28, 4, v28")
    a("v_lshl_add_u32 v27, v27, 7, v28")
    a(f"v_add_u32 v{RA}, s{sSLOT}, v27")
    for k in range(1, 4):
        a(f"v_xor_b32 v{RA+k}, {32*k}, v{RA}")
    a("v_bfe_u32 v27, v1, 4, 1")
    a("v_lshl_or_b32 v27, v11, 2, v27")
    a("v_and_b32 v28, 7, v1")
    a("v_xor_b32 v27, v27, v28")
    a(f"v_lshlrev_b32 v{CD0}, 4, v27")
    a(f"v_xor_b32 v{CD1}, 32, v{CD0}")
    a(f"v_lshlrev_b32 v{CA}, 1, v1")
    a(f"v_and_b32 v{CA}, 16, v{CA}")
    stream_addrs(a)
    a(f"v_mov_b32 v{PM}, 0")
    a(f"s_lshl_b32 s3, s{sNT}, 4")
    a("v_and_b32 v5, 15, v1")
    a("v_add_u32 v5, s3, v5")
    a("v_lshrrev_b32 v7, 4, v1")
    def rec_prep():
        a("v_and_b32 v3, 3, v0")
        a("v_lshlrev_b32 v3, 1, v3")
        a(f"v_add_u32 v3, s{sCHUNK}, v3")
        a("v_lshrrev_b32 v12, 2, v0")
        a(f"v_mul_u32_u24 v12, {CH}, v12")
        a("v_add_u32 v12, v12, v3")
    def rec_masks():
        a(f"v_lshrrev_b32 v2, 16, v{OFFW}")
        a("v_sub_u32 v2, v2, v3")
        for j in range(8):
            a(f"v_cmp_lt_i32 s[{sVAL+2*j}:{sVAL+2*j+1}], {8*(j>>1)+(j&1)}, v2")
    def rec_loads(first):
        a(f"v_and_b32 v4, 0xffff, v{OFFW}")
        a("v_add_lshl_u32 v4, v4, v12, 3")
        for r in range(4):
            if first:
                a(f"s_mov_b64 exec, s[{sVAL+4*r}:{sVAL+4*r+1}]")
            else:
                a(f"s_or_b64 exec, s[{sVAL+4*r}:{sVAL+4*r+1}], s[{sVAL+4*r+2}:{sVAL+4*r+3}]")
            a(f"buffer_load_dwordx4 v[{32+4*r}:{35+4*r}], v4, s[{S_REC}:{S_REC+3}], 0 offen offset:{64*r}")
        a("s_mov_b64 exec, -1")
    rec_prep()
    prio(a, 3)
    a(f"s_waitcnt vmcnt({5 if WF == 1 else 4})")
    stamp(a, 2)
    rec_masks()
    rec_loads(True)
    if WF == 0: warm()
    prio(a, 1)
    a(f"s_waitcnt vmcnt({5 if WF == 0 else 4}) lgkmcnt(0)")
    a("s_barrier")
    stamp(a, 3)
    a(f"v_lshrrev_b32 v2, 16, v{OFFW}")
    a("v_cmp_lt_u32 vcc, 32, v2")
    a("s_and_saveexec_b64 s[76:77], vcc")
    a("s_cbranch_execz K2_NOMAX")
    a(f"v_mov_b32 v3, {FLG}")
    a("ds_max_u32 v3, v2")
    a.label("K2_NOMAX")
    a("s_mov_b64 exec, -1")
    a("v_and_b32 v2, 7, v1")
    a("v_xor_b32 v2, v2, v7")
    a("v_lshlrev_b32 v2, 4, v2")
    a("v_lshl_add_u32 v2, v5, 7, v2")
    a(f"v_add_u32 v2, {STG + 16384}, v2")
    a("v_xor_b32 v4, 64, v2")
    a("ds_read_b128 v[16:19], v2")
    a("ds_read_b128 v[20:23], v4")
    a("v_bfe_u32 v3, v1, 2, 2")
    a("v_and_b32 v2, 3, v1")
    a("v_lshl_add_u32 v3, v7, 3, v3")
    a("v_lshlrev_b32 v3, 7, v3")
    a("v_lshl_add_u32 v3, v2, 3, v3")
    a(f"s_lshl_b32 s3, s{sFT}, 5")
    a(f"s_add_u32 s3, s3, {STG}")
    a("v_add_u32 v3, s3, v3")
    for mtx in range(2):
        for ks in range(2):
            for h in range(2):
                r = 64 + 8*mtx + 4*ks + 2*h
                a(f"ds_read_b64_tr_b16 v[{r}:{r+1}], v3 offset:{8192*mtx + (32*ks+4*h)*128}")
    a(f"s_mov_b32 s3, {NLOG2E:#x}")
    a("v_cmp_gt_u32 s[78:79], 32, v1")
    for j, bx in ((0, BX0), (1, BX1)):
        a(f"v_lshlrev_b32 v{24+j}, 16, v{24+j}")
        a(f"v_mul_f32 v{24+j}, s3, v{24+j}")
        a(f"v_cvt_pk_bf16_f32 v26, v{24+j}, v{24+j}")
        a("v_and_b32 v27, 0xffff0000, v26")
        a(f"v_sub_f32 v27, v{24+j}, v27")
        a("v_cvt_pk_bf16_f32 v27, v27, v27")
        a(f"v_cndmask_b32 v26, v27, v26, s[78:79]")
        a(f"v_and_b32 v{bx+2}, 0xffff, v26")
    a(f"s_lshl_b32 s76, s{sFT}, 7")
    a(f"v_mul_u32_u24 v6, {RS}, v5")
    a("v_lshl_add_u32 v6, v7, 5, v6")
    a("v_add_u32 v6, s76, v6")
    a("v_cmp_gt_u32 s[78:79], 50, v5")
    a("s_waitcnt lgkmcnt(0)")
    a("v_mfma_f32_16x16x32_bf16 v[8:11], v[64:67], v[16:19], 0")
    a("v_mfma_f32_16x16x32_bf16 v[12:15], v[72:75], v[16:19], 0")
    a("v_mfma_f32_16x16x32_bf16 v[8:11], v[68:71], v[20:23], v[8:11]")
    a("v_mfma_f32_16x16x32_bf16 v[12:15], v[76:79], v[20:23], v[12:15]")
    a("s_nop 6")
    for r in range(4):
        a(f"v_mul_f32 v{8+r}, s3, v{8+r}")
    for r in range(4):
        a(f"v_cvt_pk_bf16_f32 v{16+r}, v{8+r}, v{8+r}")
        a(f"v_and_b32 v{16+r}, 0xffff0000, v{16+r}")
        a(f"v_sub_f32 v{20+r}, v{8+r}, v{16+r}")
        a(f"v_cvt_pk_bf16_f32 v{64+2*r}, v{8+r}, v{20+r}")
        a(f"v_mov_b32 v{65+2*r}, v{12+r}")
        a(f"v_and_b32 v{20+r}, 0xffff0000, v{64+2*r}")
        a(f"v_add_f32 v{16+r}, v{16+r}, v{20+r}")
    a("s_mov_b64 exec, s[78:79]")
    a(f"ds_write_b128 v6, v[64:67] offset:{BP}")
    a(f"ds_write_b128 v6, v[68:71] offset:{BP+16}")
    a("s_mov_b64 exec, -1")
    def fcalc():
        for r in range(4):
            a(f"v_exp_f32 v{20+r}, v{16+r}")
        a("s_nop 0")
        for r in range(4):
            a(f"v_add_f32 v{20+r}, 1.0, v{20+r}")
        for r in range(4):
            a(f"v_rcp_f32 v{20+r}, v{20+r}")
        a("s_nop 0")
        for r in range(4):
            a(f"v_mul_f32 v{28+r}, v{16+r}, v{20+r}")
    fcalc()
    a.label("K2_PASS")
    prio(a, 3)
    a("v_mov_b32 v2, 1")
    a(f"v_mov_b32 v3, s{sRECS}")
    a(f"s_waitcnt vmcnt({1 if WF == 0 else 0})")
    stamp(a, 4)
    for j in range(8):
        if j in (4, 6):
            a(f"s_or_b64 s[76:77], s[{sVAL+2*j}:{sVAL+2*j+1}], s[{sVAL+2*j+2}:{sVAL+2*j+3}]")
            a(f"s_cbranch_scc0 K2_RK{j}")
        w1 = 32 + 2*j + 1
        a(f"s_mov_b64 exec, s[{sVAL+2*j}:{sVAL+2*j+1}]")
        a(f"ds_add_rtn_u32 v{56+j}, v{w1}, v2 offset:{CNT}")
        a(f"v_mad_u32_u24 v{48+j}, v{w1}, s{sCAPN}, v3")
        if j in (5, 7):
            a.label(f"K2_RK{j-1}")
    a("s_waitcnt lgkmcnt(0)")
    for j in range(8):
        if j in (4, 6):
            a(f"s_or_b64 s[76:77], s[{sVAL+2*j}:{sVAL+2*j+1}], s[{sVAL+2*j+2}:{sVAL+2*j+3}]")
            a(f"s_cbranch_scc0 K2_PL{j}")
        a(f"s_mov_b64 exec, s[{sVAL+2*j}:{sVAL+2*j+1}]")
        a(f"v_cmpx_gt_u32 vcc, s{sCAPN}, v{56+j}")
        a(f"v_lshl_add_u32 v{48+j}, v{56+j}, 2, v{48+j}")
        a(f"s_andn2_b64 s[{sVAL+2*j}:{sVAL+2*j+1}], s[{sVAL+2*j}:{sVAL+2*j+1}], vcc")
        a(f"ds_write_b32 v{48+j}, v{32+2*j}")
        if j in (5, 7):
            a.label(f"K2_PL{j-1}")
    a("s_mov_b64 exec, -1")
    a("v_lshlrev_b32 v4, 2, v1")
    a(f"s_mov_b32 s{st}, s{sW}")
    a("s_waitcnt lgkmcnt(0)")
    a("s_barrier")
    stamp(a, 5)
    a(f"ds_read_b32 v8, v4 offset:{CNT}")
    loop_head1(a)
    a(f"v_cmp_lt_u32 vcc, s{sCAPN}, v8")
    a(f"v_min_u32 v8, s{sCAPN}, v8")
    a("v_add_u32 v9, 7, v8")
    a("v_lshrrev_b32 v9, 3, v9")
    a(f"v_max_u32 v9, v9, v{J0}")
    a("s_cmp_lg_u64 vcc, 0")
    a(f"s_cselect_b32 s{sOVF}, 1, 0")
    a(f"v_sub_u32 v10, v9, v{J0}")
    a("v_lshlrev_b32 v12, 3, v9")
    a("v_mov_b32 v11, v10")
    a("v_sub_u32 v12, v12, v8")
    a("v_cvt_f32_u32 v12, v12")
    scan64(a, 11)
    a(f"v_readlane_b32 s76, v11, 63")
    a("v_lshlrev_b32 v13, 2, v5")
    a("ds_bpermute_b32 v13, v13, v12")
    a("v_sub_u32 v11, v11, v10")
    a(f"v_cmp_lt_u32 vcc, s{sW}, v10")
    a(f"v_mul_u32_u24 v17, {RS}, v1")
    a(f"v_add_u32 v18, s{sW}, v{J0}")
    a(f"v_mul_u32_u24 v16, {BLK}, v1")
    a("v_lshl_add_u32 v16, v18, 5, v16")
    a(f"v_add_u32 v16, s{sRECS}, v16")
    a(f"s_lshl_b32 s3, s{sW}, 3")
    a(f"s_add_u32 s3, s3, {GT + 512}")
    a("v_lshl_add_u32 v18, v11, 3, s3")
    a("s_mov_b64 exec, vcc")
    a("ds_write_b64 v18, v[16:17]")
    a("s_mov_b64 exec, s[78:79]")
    a(f"s_add_u32 s{sT}, s76, 67")
    a(f"s_lshr_b32 s{sT}, s{sT}, 2")
    a("s_waitcnt lgkmcnt(1)")
    for r in range(4):
        a(f"v_mul_f32 v{20+r}, -v13, v{28+r}")
        a(f"v_cvt_f64_f32 v[{32+2*r}:{33+2*r}], v{20+r}")
        a(f"ds_add_f64 v6, v[{32+2*r}:{33+2*r}] offset:{AGG + 8*r}")
    a("s_mov_b64 exec, -1")
    a("s_waitcnt lgkmcnt(4)")
    a("s_barrier")
    stamp(a, 6)
    a(f"s_cmp_lg_u32 s{sMODE}, 0")
    a("s_cbranch_scc1 K2_SLOWLOOP")
    mainloop(a, "F", False)
    a("v_mov_b32 v2, 0x5f800000")
    a(f"v_cmp_nlt_f32 vcc, v{PM}, v2")
    a("s_and_saveexec_b64 s[76:77], vcc")
    a("s_cbranch_execz K2_NOOVF")
    a(f"v_mov_b32 v3, {FLG+4}")
    a("v_mov_b32 v2, 1")
    a("ds_write_b32 v3, v2")
    a.label("K2_NOOVF")
    a("s_mov_b64 exec, -1")
    a.label("K2_AFTER")
    stamp(a, 7)
    a(f"v_mov_b32 v3, {FLG}")
    a("v_lshrrev_b32 v7, 4, v1")
    a(f"s_cmp_ge_u32 s{sW}, 4")
    a("s_cbranch_scc1 K2_B4")
    a(f"s_lshl_b32 s3, s{sW}, 4")
    a("v_and_b32 v9, 15, v1")
    a("v_add_u32 v9, s3, v9")
    a("v_bfe_u32 v4, v1, 2, 2")
    a("v_and_b32 v2, 3, v1")
    a("v_lshl_add_u32 v4, v7, 3, v4")
    a("v_lshlrev_b32 v4, 7, v4")
    a("v_lshl_add_u32 v4, v2, 5, v4")
    a(f"v_add_u32 v4, {WU2}, v4")
    for ft in range(4):
        for ks in range(2):
            for h in range(2):
                r = 48 + 8*ft + 4*ks + 2*h
                a(f"ds_read_b64_tr_b16 v[{r}:{r+1}], v4 offset:{(32*ks+4*h)*128 + 8*ft}")
    a(f"v_mul_u32_u24 v8, {RS}, v9")
    a("v_lshl_add_u32 v10, v7, 7, v8")
    a(f"v_add_u32 v10, {BP + 4}, v10")
    a("s_waitcnt lgkmcnt(8)")
    for ft in range(4):
        for h in range(2):
            r = 80 + 4*ft + 2*h
            a(f"ds_read2_b32 v[{r}:{r+1}], v10 offset0:{8*ft+4*h} offset1:{8*ft+4*h+2}")
    a("v_lshl_add_u32 v8, v7, 6, v8")
    a(f"v_add_u32 v6, s{sNODE0}, v9")
    a("v_lshlrev_b32 v6, 7, v6")
    a("v_lshl_add_u32 v6, v7, 5, v6")
    a(f"v_cmp_gt_u32 s[74:75], {NPB}, v9") if False else None
    a.label("K2_B4")
    a("s_waitcnt lgkmcnt(0)")
    a("s_barrier")
    stamp(a, 8)
    a("ds_read_b64 v[12:13], v3")
    a(f"s_cmp_ge_u32 s{sW}, 4")
    a("s_cbranch_scc1 K2_NOAGG")
    for ks in range(2):
        for h in range(4):
            r = 16 + 16*ks + 4*h
            a(f"ds_read_b128 v[{r}:{r+3}], v8 offset:{AGG + 256*ks + 16*h}")
    a("s_waitcnt lgkmcnt(8)")
    a("s_branch K2_FL")
    a.label("K2_NOAGG")
    a("s_waitcnt lgkmcnt(0)")
    a.label("K2_FL")
    a("v_readfirstlane_b32 s76, v12")
    a("v_readfirstlane_b32 s77, v13")
    a(f"s_cmp_lg_u32 s{sOVF}, 0")
    a("s_cbranch_scc1 K2_RETRY")
    a(f"s_add_u32 s3, s{sCHUNK}, 32")
    a("s_cmp_gt_u32 s76, s3")
    a("s_cbranch_scc1 K2_NEXTCHUNK")
    a(f"s_andn2_b32 s77, s77, s{sMODE}")
    a("s_cbranch_scc1 K2_GOSLOW")
    a(f"s_cmp_ge_u32 s{sW}, 4")
    a("s_cbranch_scc1 K2_FIN")
    a(f"s_mov_b32 s78, {NLN2:#x}")
    a(f"s_mov_b32 s79, {NLN2:#x}")
    a(f"s_mov_b32 s76, {NLOG2E:#x}")
    a(f"s_mov_b32 s77, {NLOG2E:#x}")
    for r in range(16):
        if r % 2 == 0: a(f"s_waitcnt lgkmcnt({7 - r//2})")
        a(f"v_cvt_f32_f64 v{96+r}, v[{16+2*r}:{17+2*r}]")
    for r in range(8):
        a(f"v_pk_mul_f32 {P(96+2*r)}, {P(96+2*r)}, s[78:79]")
    for r in range(8):
        a(f"v_cvt_pk_bf16_f32 v{16+r}, v{96+2*r}, v{97+2*r}")
    a(f"v_cmp_gt_u32 vcc, {NPB}, v9")
    a("s_nop 0")
    for ks in range(2):
        for ft in range(4):
            a(f"v_mfma_f32_16x16x32_bf16 v[{80+4*ft}:{83+4*ft}], v[{48+8*ft+4*ks}:{51+8*ft+4*ks}], v[{16+4*ks}:{19+4*ks}], v[{80+4*ft}:{83+4*ft}]")
    a("s_nop 4")
    for q in range(8):
        if q == 6: a("s_nop 0")
        a(f"v_pk_mul_f32 {P(16+2*q)}, {P(80+2*q)}, s[76:77]")
    for r in range(16):
        a(f"v_exp_f32 v{16+r}, v{16+r}")
    for q in range(8):
        a(f"v_pk_add_f32 {P(16+2*q)}, {P(16+2*q)}, s[{sONE}:{sONE+1}]")
    for r in range(16):
        a(f"v_rcp_f32 v{16+r}, v{16+r}")
    for q in range(8):
        a(f"v_pk_mul_f32 {P(16+2*q)}, {P(16+2*q)}, {P(80+2*q)}")
    for q in range(8):
        a(f"v_cvt_pk_bf16_f32 v{32+q}, v{16+2*q}, v{17+2*q}")
    a("s_mov_b64 exec, vcc")
    a(f"buffer_store_dwordx4 v[32:35], v6, s[{S_OUT}:{S_OUT+3}], 0 offen")
    a(f"buffer_store_dwordx4 v[36:39], v6, s[{S_OUT}:{S_OUT+3}], 0 offen offset:16")
    a.label("K2_FIN")
    stamp_flush(a, 1, 14, 15, sW, sT)
    a.label("K2_END")
    a("s_endpgm")
    a.label("K2_SLOWLOOP")
    mainloop(a, "S", True)
    a("s_branch K2_AFTER")
    a.label("K2_GOSLOW")
    a(f"s_mov_b32 s{sMODE}, 1")
    a(f"s_mov_b32 s{sCHUNK}, -32")
    a("s_waitcnt lgkmcnt(0)")
    a("s_barrier")
    for r in range(4): a(f"v_mov_b32 v{16+r}, 0")
    a("v_lshlrev_b32 v10, 4, v0")
    a(f"ds_write_b128 v10, v[16:19] offset:{AGG}")
    a(f"v_cmp_gt_u32 vcc, {(50*RS - 16384)//16}, v0")
    a("s_mov_b64 exec, vcc")
    a(f"ds_write_b128 v10, v[16:19] offset:{AGG+16384}")
    a("s_mov_b64 exec, -1")
    a.label("K2_NEXTCHUNK")
    a(f"s_add_u32 s{sCHUNK}, s{sCHUNK}, 32")
    a("s_waitcnt lgkmcnt(0)")
    rec_prep()
    rec_masks()
    a.label("K2_RETRY")
    a("s_waitcnt lgkmcnt(0)")
    rec_prep()
    rec_loads(False)
    a(f"buffer_load_dword v127, v3, s[{S_TAB}:{S_TAB+3}], 0 offen")
    prefill(a, 0)
    a("s_branch K2_RECONST")

def gen_k2_reconst(a):
    a.label("K2_RECONST")
    a("v_and_b32 v8, 31, v1")
    a("v_lshrrev_b32 v11, 5, v1")
    a("v_lshlrev_b32 v12, 3, v11")
    a("v_sub_u32 v12, v8, v12")
    a("v_and_b32 v13, 1, v12")
    a("v_lshlrev_b32 v13, 4, v13")
    a("v_mov_b32 v14, 0x3f80")
    a("v_lshlrev_b32 v13, v13, v14")
    a("v_ashrrev_i32 v12, 1, v12")
    for i in range(4):
        a(f"v_cmp_eq_u32 s[76:77], {i}, v12")
        a("s_nop 1")
        a(f"v_cndmask_b32 v{I0+i}, 0, v13, s[76:77]")
    a("v_bfe_u32 v12, v8, 2, 1")
    a("v_and_b32 v13, 1, v8")
    a("v_lshl_or_b32 v14, v12, 1, v13")
    a("v_lshlrev_b32 v15, 1, v11")
    a("v_sub_u32 v15, v14, v15")
    a("v_cmp_eq_u32 s[76:77], 0, v15")
    a("v_cmp_eq_u32 s[78:79], 1, v15")
    a("v_mov_b32 v26, 0x3f803f80")
    a(f"v_mov_b32 v{AEXT+3}, 0")
    a(f"v_cndmask_b32 v{AEXT}, 0, v26, s[76:77]")
    a(f"v_cndmask_b32 v{AEXT+1}, 0, v26, s[78:79]")
    a(f"v_mov_b32 v{BX0+3}, 0")
    a(f"v_mov_b32 v{BX1+3}, 0")
    stream_addrs(a)
    a("v_lshlrev_b32 v9, 1, v8")
    a("s_movk_i32 s3, 0x4000")
    a(f"buffer_load_ushort v24, v9, s[{S_WM}:{S_WM+3}], s3 offen")
    a(f"buffer_load_ushort v25, v9, s[{S_WM}:{S_WM+3}], s3 offen offset:64")
    a(f"s_mov_b32 s3, {NLOG2E:#x}")
    a("v_cmp_gt_u32 s[78:79], 32, v1")
    a("s_waitcnt vmcnt(0)")
    for j, bx in ((0, BX0), (1, BX1)):
        a(f"v_lshlrev_b32 v{24+j}, 16, v{24+j}")
        a(f"v_mul_f32 v{24+j}, s3, v{24+j}")
        a(f"v_cvt_pk_bf16_f32 v26, v{24+j}, v{24+j}")
        a("v_and_b32 v27, 0xffff0000, v26")
        a(f"v_sub_f32 v27, v{24+j}, v27")
        a("v_cvt_pk_bf16_f32 v27, v27, v27")
        a(f"v_cndmask_b32 v26, v27, v26, s[78:79]")
        a(f"v_and_b32 v{bx+2}, 0xffff, v26")
    a(f"s_lshl_b32 s3, s{sNT}, 4")
    a("v_and_b32 v5, 15, v1")
    a("v_add_u32 v5, s3, v5")
    a("v_lshrrev_b32 v7, 4, v1")
    a(f"s_lshl_b32 s76, s{sFT}, 7")
    a(f"v_mul_u32_u24 v6, {RS}, v5")
    a("v_lshl_add_u32 v6, v7, 5, v6")
    a("v_add_u32 v6, s76, v6")
    a("v_cmp_gt_u32 s[78:79], 50, v5")
    a(f"v_add_u32 v2, {BP}, v6")
    a("ds_read2_b32 v[20:21], v2 offset0:0 offset1:2")
    a("ds_read2_b32 v[22:23], v2 offset0:4 offset1:6")
    a("s_waitcnt lgkmcnt(0)")
    for r in range(4):
        a(f"v_lshlrev_b32 v{16+r}, 16, v{20+r}")
        a(f"v_and_b32 v{20+r}, 0xffff0000, v{20+r}")
        a(f"v_add_f32 v{16+r}, v{16+r}, v{20+r}")
    for r in range(4):
        a(f"v_exp_f32 v{20+r}, v{16+r}")
    a("s_nop 0")
    for r in range(4):
        a(f"v_add_f32 v{20+r}, 1.0, v{20+r}")
    for r in range(4):
        a(f"v_rcp_f32 v{20+r}, v{20+r}")
    a("s_nop 0")
    for r in range(4):
        a(f"v_mul_f32 v{28+r}, v{16+r}, v{20+r}")
    a("s_waitcnt lgkmcnt(0)")
    a("s_barrier")
    a("s_branch K2_PASS")

HEAD = open("standalone__mpnn_edge_mlp__graph.s.ref").read().split("; Override launch")[0]

def main(out):
    a = Asm()
    a.lines.append(HEAD.rstrip())
    a.lines.append(f"; @launch kernel=k1_kernel grid=({NP},1,1) block=(1024,1,1) lds=90112")
    a.lines.append(f"; @launch kernel=k2_kernel grid=({NB},1,1) block=(1024,1,1) lds={K2_LDS}")
    a('.amdgcn_target "amdgcn-amd-amdhsa--gfx950"')
    a(".text")
    for k, g in (("k1_kernel", gen_k1), ("k2_kernel", gen_k2)):
        a(f".globl {k}")
        a(".p2align 8")
        a(f".type {k},@function")
        g(a)
    gen_k2_reconst(a)
    a('.section .rodata,"a"')
    a(".p2align 6")
    a.lines.append(desc("k1_kernel", 80, 102).rstrip())
    a(".p2align 6")
    a.lines.append(desc("k2_kernel", 128, 102).rstrip())
    open(out, "w").write(a.text())

if __name__ == "__main__":
    main(sys.argv[1] if len(sys.argv) > 1 else "standalone__mpnn_edge_mlp__graph.s")
```

```python
import sys, os
sys.path.insert(0, os.path.dirname(__file__))
from asmlib import *

CURK = [1]
STAMP = int(os.environ.get("STAMP", "0"))
OPT = dict(kv.split("=") for kv in os.environ.get("OPT", "").split(",") if kv)
def opt(k, d): return int(OPT.get(k, d))

N = 12500; E = 800000
NP = 250; CH = 3200
NPB = 49; NB = 256
TROWS = 50
WS_TAB = 0; WS_OFF = 0x200000; WS_REC = 0x400000
WS_STAMP = 0x1000000
NLOG2E = 0xbfb8aa3b
NLN2 = 0xbf317218

LOOPST = int(os.environ.get("LOOPST", "0"))
def stamp(a, idx, loop=False):
    if not STAMP: return
    if LOOPST and CURK[0] == 2 and not loop and idx not in (0, 8, 9): return
    assert idx < 10
    a(f"s_memtime s[{80+2*idx}:{81+2*idx}]")
def stamp_start(a):
    if not STAMP: return
    a("s_memrealtime s[100:101]")
    for i in range(10): a(f"s_mov_b32 s{80+2*i}, 0") if False else None
def stamp_flush(a, kern, wsl, wsh, wave, extra=None):
    if not STAMP: return
    a("s_waitcnt vmcnt(0)")
    stamp(a, 9)
    a(f"s_memrealtime s[76:77]")
    if STAMP == 2:
        lab = f"DBG_{kern}_{len(a.lines)}"
        a("s_load_dwordx2 s[72:73], s[0:1], 56")
        a(f"s_waitcnt lgkmcnt(0)")
        a(f"s_mov_b64 exec, 1")
        if kern == 0:
            a("s_add_u32 s72, s72, 512")
            a("s_addc_u32 s73, s73, 0")
        a("v_mov_b32 v2, 0")
        a("s_cmp_lg_u32 s2, 5")
        a(f"s_cbranch_scc1 {lab}")
        a(f"s_cmp_lg_u32 s{wave}, 0")
        a(f"s_cbranch_scc1 {lab}")
        a("v_mov_b32 v3, s100")
        a(f"global_store_dword v2, v3, s[72:73] offset:{32*kern}")
        a("v_mov_b32 v3, s76")
        a(f"global_store_dword v2, v3, s[72:73] offset:{32*kern+4}")
        idx = (3, 4, 5, 6, 7, 9) if kern == 0 else (2, 4, 6, 7, 8, 9)
        for i, k in enumerate(idx):
            a(f"s_sub_u32 s3, s{80+2*k}, s80")
            a("v_mov_b32 v3, s3")
            a(f"global_store_dword v2, v3, s[72:73] offset:{32*kern+8+4*i}")
        a.label(lab)
        a("s_waitcnt vmcnt(0)")
        return
    a(f"s_lshl_b32 s78, s2, 4")
    a(f"s_add_u32 s78, s78, s{wave}")
    a(f"s_lshl_b32 s78, s78, 6")
    a(f"s_add_u32 s78, s78, {WS_STAMP + kern*0x100000}")
    a(f"s_waitcnt lgkmcnt(0)")
    a(f"s_mov_b64 exec, 1")
    a(f"v_mov_b32 v2, s78")
    srcs = [80+2*i for i in range(10)] + [100, extra if extra is not None else 100, 100, 100, 100, 76]
    for i in range(16):
        a(f"v_mov_b32 v3, s{srcs[i]}")
        a(f"global_store_dword v2, v3, s[{wsl}:{wsh}] offset:{4*i}")
    a("s_waitcnt vmcnt(0)")
def prio(a, p):
    if opt("prio", 1): a(f"s_setprio {p}")

KS = opt("K", 7); MD = opt("M", 5)
PV = opt("pv", 0)
SP0, SPRIO, DPRIO = [(3, {2:2, 4:1, 6:0}, ((3,2),(4,1),(5,0))), (2, {3:1, 5:0}, ((1,2),(3,1),(5,0))), (2, {2:1, 5:0}, ((2,2),(3,1),(5,0))), (2, {3:1, 6:0}, ((2,2),(4,1),(6,0)))][PV]
RS = 528; CAPN = 112; BLK = CAPN*4
RSTR = 16896
CNT = 16; FLG = 624; AGG = 640; BP = AGG + 50*RS; RECS = BP + 50*RS; GT = RECS + 50*BLK
CONSTL = GT + 5632; WU2 = CONSTL + 7680; STG = (WU2 + 8192 + 127)//128*128
K2_LDS = STG + 65536
PST = STG
assert K2_LDS <= 163840
D0 = 16; D1 = 32; X = 48; A = 64; AEXT = 80; BX0 = 84; BX1 = 88; I0 = 92; I1 = 96
RA = 100; RP = 104; VA = 112; VE = 113; VG = 114; L8 = 115; CA = 116; CE = 117
FA0 = 118; FA1 = 120; GNR = 122; GBA = 124; GBE = 125; PM = 126; OFFW = 127
NN = 2; PA = 4; PB = 6; RR = 8; OUT = 10; CADR = 14; PM2 = 15
N0 = 2; P0 = 4; N1 = 8; P1 = 10; PT = 6; SA = 12; SE = 13
S_X = 16; S_OUT = 28; S_TAB = 32; S_OFF = 36; S_REC = 40; S_CON = 8; S_TABR = 20
sB = 44; sNODE0 = 45; sW = 46; sSLOT = 47; sREM = 48; sIT = 49; sCHUNK = 50; sMODE = 51; sOVF = 52; sNT = 53; sFT = 54
sMODE2 = 55; sTN = 56; sTMP = 57; sONE = 58
sVAL = 60
sCAPN = 6; sRECS = 7; sK = 24; sM = 25; sT = 26; sDYN = 27; sSC = 12; sWB = 55; sWB2 = 55

WS_CONST = 0x280000; WS_FRAG = WS_CONST + 8192
def gen_k1(a):
    HIST = 0; OFFS = 1024; RECS1 = 3072; W1L = RECS1 + RSTR; XL = W1L + 8192
    assert XL % 128 == 0
    st = ["", " sc1", " nt", " sc0 sc1", " sc1 nt"][opt("k1sc", 0)]
    stt = ["", " sc1", " nt", " sc0 sc1", " sc1 nt"][opt("tabsc", 0)]
    nt = " nt" if opt("k1nt", 1) else ""
    a.label("k1_kernel")
    a(f"s_cmp_ge_u32 s2, {NP}")
    a("s_cbranch_scc1 K1_EXTRA")
    a("s_load_dwordx8 s[4:11], s[0:1], 0")
    a("s_load_dwordx2 s[12:13], s[0:1], 32")
    a("s_load_dwordx2 s[14:15], s[0:1], 64")
    stamp_start(a)
    stamp(a, 0)
    a("v_lshrrev_b32 v2, 6, v0")
    a("v_and_b32 v1, 63, v0")
    a("v_readfirstlane_b32 s16, v2")
    a("v_subrev_u32 v40, 64, v0")
    a(f"v_cmp_gt_u32 vcc, {CH//4}, v40")
    a(f"s_mul_i32 s17, s2, {CH*4}")
    a("v_lshlrev_b32 v3, 4, v40")
    a("v_add_u32 v2, s17, v3")
    a("s_cmp_eq_u32 s16, 0")
    a("s_cbranch_scc1 K1_TABLE")
    a("s_mov_b64 exec, vcc")
    a("v_lshrrev_b32 v34, 1, v2")
    a("v_mov_b32 v35, 1")
    a(f"s_movk_i32 s3, {-NPB*3}")
    a("s_waitcnt lgkmcnt(0)")
    stamp(a, 1)
    a("global_load_dwordx4 v[4:7], v2, s[10:11]" + nt)
    a("global_load_dwordx4 v[8:11], v2, s[8:9]" + nt)
    a("global_load_dwordx2 v[12:13], v34, s[6:7]" + nt)
    a(f"s_mul_i32 s18, s2, {RSTR}")
    a(f"s_add_u32 s18, s18, {WS_REC}")
    a("v_add_u32 v41, s18, v3")
    a(f"v_add_u32 v42, {CH*4}, v41")
    a("v_cmp_gt_u32 s[20:21], 0xf8, v40") if False else None
    a("v_mov_b32 v43, 248")
    a("v_cmp_lt_u32 s[20:21], v40, v43")
    stamp(a, 2)
    a("s_barrier")
    stamp(a, 3)
    a("s_waitcnt vmcnt(2)")
    stamp(a, 4)
    for j in range(4):
        a(f"v_mul_u32_u24 v{14+j}, 5350, v{4+j}")
        a(f"v_lshrrev_b32 v{14+j}, 18, v{14+j}")
        a(f"v_lshlrev_b32 v{18+j}, 2, v{14+j}")
        a(f"ds_add_rtn_u32 v{22+j}, v{18+j}, v35 offset:{HIST}")
    a("s_waitcnt lgkmcnt(0)")
    a("s_barrier")
    stamp(a, 5)
    for j in range(4):
        a(f"v_mad_u32_u24 v{4+j}, v{4+j}, 3, 1")
        a(f"v_mad_i32_i24 v{26+j}, v{14+j}, s3, v{4+j}")
        a(f"v_lshlrev_b32 v{18+j}, 1, v{18+j}")
    a("s_barrier")
    stamp(a, 6)
    for j in range(4):
        a(f"ds_read_b64 v[{44+2*j}:{45+2*j}], v{18+j} offset:{OFFS}")
    a("s_mov_b32 s3, 0xffff0000")
    a("s_waitcnt vmcnt(1)")
    if opt("cls", 1):
        for j in range(4):
            a(f"v_add_u32 v{4+j}, {16384 - N//2}, v{8+j}")
            a(f"v_lshrrev_b32 v{4+j}, 14, v{4+j}")
            a(f"v_add_u32 v{26+j}, v{26+j}, v{4+j}")
    for j in range(4):
        a(f"s_waitcnt lgkmcnt({3})")
        a(f"v_add_u32 v{45+2*j}, v{45+2*j}, v{22+j}")
        a(f"ds_write_b8 v{45+2*j}, v{26+j} offset:{RECS1}")
    a("s_waitcnt vmcnt(0)")
    a("v_lshl_or_b32 v8, v12, 16, v8")
    a("v_and_or_b32 v9, v12, s3, v9")
    a("v_lshl_or_b32 v10, v13, 16, v10")
    a("v_and_or_b32 v11, v13, s3, v11")
    for j in range(4):
        a(f"v_lshl_add_u32 v{44+2*j}, v{22+j}, 2, v{44+2*j}")
        a(f"ds_write_b32 v{44+2*j}, v{8+j} offset:{RECS1}")
    a("s_waitcnt lgkmcnt(0)")
    a("s_barrier")
    stamp(a, 7)
    a(f"ds_read_b128 v[4:7], v3 offset:{RECS1}")
    a("s_cmp_gt_u32 s16, 4")
    a("s_cbranch_scc1 K1_ONE")
    a(f"ds_read_b128 v[8:11], v3 offset:{RECS1 + CH*4}")
    a("s_waitcnt lgkmcnt(1)")
    a("global_store_dwordx4 v41, v[4:7], s[14:15]" + st)
    a("s_mov_b64 exec, s[20:21]")
    a("s_waitcnt lgkmcnt(0)")
    a("global_store_dwordx4 v42, v[8:11], s[14:15]" + st)
    a("s_branch K1_FIN")
    a.label("K1_ONE")
    a("s_waitcnt lgkmcnt(0)")
    a("global_store_dwordx4 v41, v[4:7], s[14:15]" + st)
    a.label("K1_FIN")
    stamp(a, 8)
    stamp_flush(a, 0, 14, 15, 16)
    a("s_endpgm")
    a.label("K1_TABLE")
    a("v_lshlrev_b32 v4, 4, v1")
    for r in range(4): a(f"v_mov_b32 v{36+r}, 0")
    a(f"ds_write_b128 v4, v[36:39] offset:{HIST}")
    a("v_lshrrev_b32 v5, 3, v1")
    a("v_and_b32 v6, 7, v1")
    a("v_xor_b32 v6, v6, v5")
    a("v_lshlrev_b32 v6, 4, v6")
    a("v_lshl_add_u32 v6, v5, 7, v6")
    a(f"s_mul_i32 s23, s2, {TROWS*128}")
    a("v_add_u32 v6, s23, v6")
    a("v_add_u32 v14, 4096, v6")
    a(f"s_mov_b32 m0, {XL}")
    a("s_waitcnt lgkmcnt(0)")
    stamp(a, 1)
    a("s_barrier")
    stamp(a, 3)
    srd(a, 24, 4, 5, N*128)
    xp = " nt" if opt("k1xnt", 0) else ""
    for i in range(4):
        a(f"buffer_load_dwordx4 v6, s[24:27], 0 offen offset:{1024*i}" + xp + " lds")
    a(f"s_mov_b32 m0, {XL + 4096}")
    srd(a, 28, 12, 13, 129*128)
    for i in range(3):
        a(f"buffer_load_dwordx4 v14, s[24:27], 0 offen offset:{1024*i}" + xp + " lds")
    a(f"s_mov_b32 m0, {W1L}")
    a("s_movk_i32 s3, 0x1000")
    for i in range(4):
        a(f"buffer_load_dwordx4 v4, s[28:31], 0 offen offset:{1024*i} lds")
    a(f"s_mov_b32 m0, {W1L + 4096}")
    a("s_nop 0")
    for i in range(4):
        a(f"buffer_load_dwordx4 v4, s[28:31], s3 offen offset:{1024*i} lds")
    stamp(a, 2)
    srd(a, 32, 14, 15, N*128)
    a("v_lshrrev_b32 v7, 4, v1")
    a("v_bfe_u32 v8, v1, 2, 2")
    a("v_and_b32 v9, 3, v1")
    a("v_lshl_add_u32 v8, v7, 3, v8")
    a("v_lshlrev_b32 v8, 7, v8")
    a("v_lshl_add_u32 v8, v9, 5, v8")
    a("v_and_b32 v10, 15, v1")
    a("v_and_b32 v11, 7, v1")
    a("v_xor_b32 v11, v11, v7")
    a("v_lshlrev_b32 v11, 4, v11")
    a("v_lshl_add_u32 v11, v10, 7, v11")
    a("v_xor_b32 v12, 64, v11")
    a("v_lshlrev_b32 v13, 7, v10")
    a("v_lshl_add_u32 v13, v7, 5, v13")
    a("v_add_u32 v13, s23, v13")
    a("v_add_u32 v15, 4096, v13")
    a(f"s_mov_b32 s40, {NLOG2E:#x}")
    a(f"s_mov_b32 s41, {NLOG2E:#x}")
    a("v_cmp_gt_u32 s[42:43], 2, v10")
    a("s_lshl_b32 s3, s2, 10")
    a(f"s_add_u32 s3, s3, {WS_OFF}")
    a("v_add_u32 v3, s3, v4")
    a("s_setprio 3")
    a("s_barrier")
    stamp(a, 5)
    a(f"ds_read_b128 v[56:59], v4 offset:{HIST}")
    a("s_waitcnt lgkmcnt(0)")
    for j in range(4):
        a(f"v_add_u32 v{60+j}, 3, v{56+j}")
        a(f"v_lshrrev_b32 v{60+j}, 2, v{60+j}")
        a(f"v_add_u32 v{60+j}, v{60+j}, v{56+j}")
    a("v_add_u32 v66, v60, v61")
    a("v_add_u32 v67, v66, v62")
    a("v_add_u32 v68, v67, v63")
    a("v_mov_b32 v69, v68")
    a("s_nop 1")
    scan64(a, 69)
    a("v_sub_u32 v72, v69, v68")
    a("v_add_u32 v73, v72, v60")
    a("v_add_u32 v74, v72, v66")
    a("v_add_u32 v75, v72, v67")
    for j in range(4):
        a(f"v_lshlrev_b32 v{60+2*j}, 2, v{72+j}")
        a(f"v_add_lshl_u32 v{61+2*j}, v{72+j}, v{56+j}, 2")
    a("v_lshlrev_b32 v5, 5, v1")
    a(f"ds_write_b128 v5, v[60:63] offset:{OFFS}")
    a(f"ds_write_b128 v5, v[64:67] offset:{OFFS+16}")
    a("s_waitcnt lgkmcnt(0)")
    a("s_barrier")
    stamp(a, 6)
    for j in range(4):
        a(f"v_lshl_or_b32 v{76+j}, v{56+j}, 16, v{72+j}")
    a("s_waitcnt vmcnt(0)")
    stamp(a, 4)
    a("global_store_dwordx4 v3, v[76:79], s[14:15]" + st)
    for nti in range(4):
        a(f"ds_read_b128 v[{80+8*nti}:{83+8*nti}], v11 offset:{XL + 2048*nti}")
        a(f"ds_read_b128 v[{84+8*nti}:{87+8*nti}], v12 offset:{XL + 2048*nti}")
    for ft in range(4):
        for ks in range(2):
            for h in range(2):
                r = 16 + 8*ft + 4*ks + 2*h
                a(f"ds_read_b64_tr_b16 v[{r}:{r+1}], v8 offset:{W1L + (32*ks+4*h)*128 + 8*ft}")
    a("s_waitcnt lgkmcnt(0)")
    def mm(nti):
        D = 48 + 16*(nti & 1); xa = 80 + 8*nti
        for ft in range(4):
            a(f"v_mfma_f32_16x16x32_bf16 v[{D+4*ft}:{D+3+4*ft}], v[{16+8*ft}:{19+8*ft}], v[{xa}:{xa+3}], 0")
        for ft in range(4):
            a(f"v_mfma_f32_16x16x32_bf16 v[{D+4*ft}:{D+3+4*ft}], v[{20+8*ft}:{23+8*ft}], v[{xa+4}:{xa+7}], v[{D+4*ft}:{D+3+4*ft}]")
    def fin(nti):
        D = 48 + 16*(nti & 1); o = 80 + 8*nti
        for q in range(8):
            a(f"v_pk_mul_f32 v[{D+2*q}:{D+1+2*q}], v[{D+2*q}:{D+1+2*q}], s[40:41]")
        for q in range(8):
            a(f"v_cvt_pk_bf16_f32 v{o+q}, v{D+2*q}, v{D+1+2*q}")
        if nti == 3: a("s_mov_b64 exec, s[42:43]")
        ar = 13 if nti < 2 else 15
        a(f"buffer_store_dwordx4 v[{o}:{o+3}], v{ar}, s[32:35], 0 offen offset:{2048*(nti&1)}" + stt)
        a(f"buffer_store_dwordx4 v[{o+4}:{o+7}], v{ar}, s[32:35], 0 offen offset:{2048*(nti&1)+16}" + stt)
        if nti == 3: a("s_mov_b64 exec, -1")
    TB = opt("tb", 2)
    def b3(k):
        if TB == k:
            a("s_barrier")
            stamp(a, 7)
    b3(0); mm(0); mm(1); fin(0); mm(2); b3(1); fin(1); mm(3); b3(2); fin(2); a("s_nop 7"); b3(3); fin(3); b3(4)
    stamp(a, 8)
    stamp_flush(a, 0, 14, 15, 16)
    a("s_endpgm")
    a.label("K1_EXTRA")
    a(f"s_cmp_lg_u32 s2, {NP}")
    a("s_cbranch_scc1 K1_END")
    a("s_load_dwordx4 s[8:11], s[0:1], 32")
    a("s_load_dwordx2 s[14:15], s[0:1], 64")
    a("v_lshrrev_b32 v2, 6, v0")
    a("v_and_b32 v1, 63, v0")
    a("v_readfirstlane_b32 s16, v2")
    a("s_waitcnt lgkmcnt(0)")
    srd(a, 20, 8, 9, 129*128)
    srd(a, 24, 10, 11, 128*128)
    a("s_cmp_eq_u32 s16, 0")
    a("s_cbranch_scc1 K1_CONST")
    a("s_cmp_gt_u32 s16, 12")
    a("s_cbranch_scc1 K1_END")
    a("s_sub_u32 s17, s16, 1")
    a("s_lshr_b32 s18, s17, 2")
    a("s_and_b32 s19, s17, 3")
    a("v_and_b32 v3, 15, v1")
    a("v_lshrrev_b32 v4, 4, v1")
    a("v_lshlrev_b32 v4, 10, v4")
    a("s_lshl_b32 s3, s19, 4")
    a("v_add_u32 v5, s3, v3")
    a("v_lshrrev_b32 v6, 2, v3")
    a("v_and_b32 v7, 3, v3")
    a("v_lshl_add_u32 v6, v6, 4, v7")
    a("s_lshl_b32 s3, s19, 2")
    a("v_add_u32 v6, s3, v6")
    a("s_cmp_eq_u32 s18, 2")
    a("s_cselect_b64 s[30:31], -1, 0")
    a("v_cndmask_b32 v5, v5, v6, s[30:31]")
    a("v_lshl_add_u32 v4, v5, 1, v4")
    a("s_cmp_eq_u32 s18, 0")
    a("s_cselect_b32 s28, s8, s10")
    a("s_cselect_b32 s29, s9, s11")
    a("s_movk_i32 s30, 0x4000")
    a("s_mov_b32 s31, 0x00020000")
    a("s_cmp_eq_u32 s18, 1")
    a("s_cselect_b32 s3, 0, 0x2000")
    a("s_add_u32 s4, s3, 0x1000")
    for ks in range(2):
        for j in range(8):
            a(f"buffer_load_ushort v{16+8*ks+j}, v4, s[28:31], s{3+ks} offen offset:{128*j}")
    srd(a, 32, 14, 15, 3*8192, WS_FRAG)
    a("s_lshl_b32 s3, s17, 11")
    a("v_lshlrev_b32 v2, 4, v1")
    a("s_waitcnt vmcnt(0)")
    for q in range(8):
        a(f"v_lshl_or_b32 v{8+q}, v{17+2*q}, 16, v{16+2*q}")
    a("buffer_store_dwordx4 v[8:11], v2, s[32:35], s3 offen")
    a("buffer_store_dwordx4 v[12:15], v2, s[32:35], s3 offen offset:1024")
    a("s_endpgm")
    a.label("K1_CONST")
    a("v_and_b32 v8, 31, v1")
    a("v_lshlrev_b32 v9, 1, v8")
    a("s_movk_i32 s3, 0x4000")
    a("buffer_load_ushort v24, v9, s[20:23], s3 offen")
    a("buffer_load_ushort v25, v9, s[20:23], s3 offen offset:64")
    a("v_lshrrev_b32 v11, 5, v1")
    a("v_lshlrev_b32 v47, 3, v8")
    a("v_lshlrev_b32 v12, 3, v11")
    a("v_sub_u32 v12, v8, v12")
    a("v_and_b32 v13, 1, v12")
    a("v_lshlrev_b32 v13, 4, v13")
    a("v_mov_b32 v14, 0x3f80")
    a("v_lshlrev_b32 v13, v13, v14")
    a("v_ashrrev_i32 v12, 1, v12")
    for i in range(4):
        a(f"v_cmp_eq_u32 s[{60+4*i}:{61+4*i}], {i}, v12")
        a(f"v_cmp_eq_u32 s[{62+4*i}:{63+4*i}], {8+i}, v12")
    for i in range(4):
        a(f"v_cndmask_b32 v{32+i}, 0, v13, s[{60+4*i}:{61+4*i}]")
        a(f"v_cndmask_b32 v{36+i}, 0, v13, s[{62+4*i}:{63+4*i}]")
    a("v_bfe_u32 v12, v8, 2, 1")
    a("v_and_b32 v13, 1, v8")
    a("v_lshl_or_b32 v14, v12, 1, v13")
    a("v_lshlrev_b32 v15, 1, v11")
    a("v_sub_u32 v15, v14, v15")
    a("v_cmp_eq_u32 s[60:61], 0, v15")
    a("v_cmp_eq_u32 s[62:63], 1, v15")
    a("v_mov_b32 v26, 0x3f803f80")
    a("s_nop 0")
    a("v_cndmask_b32 v56, 0, v26, s[60:61]")
    a("v_cndmask_b32 v57, 0, v26, s[62:63]")
    a("v_bfe_u32 v15, v8, 1, 1")
    a("v_lshrrev_b32 v26, 3, v8")
    a("v_lshl_or_b32 v27, v26, 1, v15")
    a("v_lshl_or_b32 v49, v27, 2, 2")
    a("v_lshl_or_b32 v27, v14, 3, v27")
    a("v_and_b32 v28, 3, v27")
    a("v_lshrrev_b32 v27, 2, v27")
    a("v_lshl_or_b32 v27, v28, 3, v27")
    a("v_and_b32 v28, 7, v8")
    a("v_xor_b32 v28, v28, v11")
    a("v_lshlrev_b32 v28, 4, v28")
    a("v_lshl_add_u32 v40, v27, 7, v28")
    for k in range(1, 4):
        a(f"v_xor_b32 v{40+k}, {32*k}, v40")
    a("v_lshlrev_b32 v48, 1, v1")
    a("v_and_b32 v48, 16, v48")
    a("v_lshrrev_b32 v7, 4, v1")
    a(f"s_mov_b32 s3, {GT}")
    a("v_lshl_add_u32 v44, v7, 3, s3")
    a("v_lshl_add_u32 v45, v14, 3, s3")
    a(f"s_mov_b32 s3, {GT + 4}")
    a("v_lshl_add_u32 v46, v11, 4, s3")
    a("v_and_b32 v5, 15, v1")
    a("v_and_b32 v2, 7, v1")
    a("v_xor_b32 v2, v2, v7")
    a("v_lshlrev_b32 v2, 4, v2")
    a("v_lshl_add_u32 v2, v5, 7, v2")
    a(f"v_add_u32 v52, {PST + 16384}, v2")
    a("v_lshlrev_b32 v3, 4, v1")
    a(f"v_add_u32 v53, {PST}, v3")
    a(f"v_mul_u32_u24 v54, {RS}, v5")
    a("v_lshl_add_u32 v54, v7, 5, v54")
    a("v_mul_u32_u24 v55, 12, v5")
    a(f"v_mul_u32_u24 v62, {BLK}, v14")
    a(f"s_mov_b32 s3, {RECS}")
    a("v_add3_u32 v62, v62, v49, s3")
    a(f"v_mul_u32_u24 v63, {2*RS}, v11")
    a("v_add_u32 v63, v63, v47")
    a(f"s_mov_b32 s3, {NLOG2E:#x}")
    a("v_cmp_gt_u32 s[60:61], 32, v1")
    a("v_mov_b32 v59, 0")
    a("v_mov_b32 v61, 0")
    a("s_waitcnt vmcnt(0)")
    for j in range(2):
        a(f"v_lshlrev_b32 v{24+j}, 16, v{24+j}")
        a(f"v_mul_f32 v{24+j}, s3, v{24+j}")
        a(f"v_cvt_pk_bf16_f32 v26, v{24+j}, v{24+j}")
        a("v_and_b32 v27, 0xffff0000, v26")
        a(f"v_sub_f32 v27, v{24+j}, v27")
        a("v_cvt_pk_bf16_f32 v27, v27, v27")
        a(f"v_cndmask_b32 v26, v27, v26, s[60:61]")
        a(f"v_and_b32 v{58+2*j}, 0xffff, v26")
    srd(a, 28, 14, 15, 8192, WS_CONST)
    a("v_lshlrev_b32 v2, 4, v1")
    a("v_lshlrev_b32 v3, 3, v1")
    a("s_movk_i32 s3, 0x1000")
    for i in range(4):
        a(f"buffer_store_dwordx4 v[{32+4*i}:{35+4*i}], v2, s[28:31], 0 offen offset:{1024*i}")
    a("buffer_store_dwordx4 v[52:55], v2, s[28:31], s3 offen")
    for i in range(4):
        a(f"buffer_store_dwordx2 v[{56+2*i}:{57+2*i}], v3, s[28:31], s3 offen offset:{1024+512*i}")
    a("buffer_store_dwordx2 v[48:49], v3, s[28:31], s3 offen offset:3072")
    a.label("K1_END")
    a("s_endpgm")

def P(r): return f"v[{r}:{r+1}]"

def mfma3(Dn, j):
    bx = BX0 if j == 0 else BX1
    return [f"v_mfma_f32_32x32x16_bf16 {v(Dn,16)}, {v(AEXT,4)}, {v(bx,4)}, 0",
            f"v_mfma_f32_32x32x16_bf16 {v(Dn,16)}, {v(A+8*j,4)}, {v(I0,4)}, {v(Dn,16)}",
            f"v_mfma_f32_32x32x16_bf16 {v(Dn,16)}, {v(A+8*j+4,4)}, {v(I1,4)}, {v(Dn,16)}"]

def xphase(a, Dc, mf):
    ex = [f"v_exp_f32 v{X+r}, v{Dc+r}" for r in range(16)]
    seq = [mf[0]] + ex[0:4] + [mf[1]] + ex[4:8] + [mf[2]] + ex[8:16] if mf else ex
    for l in seq: a(l)

def fphase(a, Dc, off, slow, fa, mids=()):
    mids = dict(mids)
    if not slow:
        a(f"v_pk_add_f32 {P(PA)}, {P(X)}, s[{sONE}:{sONE+1}]")
        cur, nxt = PA, PB
        for q in range(1, 8):
            src = Dc if q == 1 else NN
            a(f"v_pk_fma_f32 {P(NN)}, {P(src)}, {P(X+2*q)}, {P(src)}")
            a(f"v_pk_fma_f32 {P(nxt)}, {P(cur)}, {P(X+2*q)}, {P(cur)}")
            a(f"v_pk_fma_f32 {P(NN)}, {P(Dc+2*q)}, {P(cur)}, {P(NN)}")
            cur, nxt = nxt, cur
            if q in mids: mids[q]()
        a(f"v_rcp_f32 v{RR}, v{cur}")
        a(f"v_rcp_f32 v{RR+1}, v{cur+1}")
        a(f"v_max3_f32 v{PM2}, v{cur}, v{cur+1}, v{PM2}")
        a(f"v_pk_mul_f32 {P(OUT)}, {P(NN)}, {P(RR)}")
    else:
        for q in range(8):
            a(f"v_pk_add_f32 {P(X+2*q)}, {P(X+2*q)}, s[{sONE}:{sONE+1}]")
        for q in sorted(mids): mids[q]()
        for r in range(16):
            a(f"v_rcp_f32 v{X+r}, v{X+r}")
        a("s_nop 0")
        a(f"v_pk_mul_f32 {P(OUT)}, {P(Dc)}, {P(X)}")
        for q in range(1, 8):
            a(f"v_pk_fma_f32 {P(OUT)}, {P(Dc+2*q)}, {P(X+2*q)}, {P(OUT)}")
    a(f"v_cvt_f64_f32 {P(OUT+2)}, v{OUT+1}")
    a(f"v_cvt_f64_f32 {P(OUT)}, v{OUT}")
    a(f"ds_add_f64 v{fa+1}, {P(OUT+2)} offset:{AGG+off}")
    a(f"ds_add_f64 v{fa}, {P(OUT)} offset:{AGG+off}")

def dma4(a):
    for i in range(4):
        a(f"s_add_u32 m0, s{sSLOT}, {i*1024}" if i else f"s_mov_b32 m0, s{sSLOT}")
        a("s_nop 0")
        a(f"buffer_load_dwordx4 {P(RP+2*i)}, s[{S_TAB}:{S_TAB+3}], 0 idxen offen lds")

def idxread(a):
    for i in range(4):
        a(f"ds_read_u16 v{RP+2*i}, v{GBA} offset:{4*i}")

def aread(a):
    for k in range(4):
        a(f"ds_read_b128 {v(A+4*k,4)}, v{RA+k}")

def bext(a, fa):
    a(f"ds_read_b32 v{BX0}, v{fa} offset:{BP}")
    a(f"ds_read_b32 v{BX0+1}, v{fa+1} offset:{BP}")
    a(f"ds_read_b32 v{BX1}, v{fa} offset:{BP+256}")
    a(f"ds_read_b32 v{BX1+1}, v{fa+1} offset:{BP+256}")

def dynloop(a, tag, slow):
    L = lambda x: f"K2_{tag}_{x}"
    for par in range(2):
        fa, fan = (FA0, FA1) if par == 0 else (FA1, FA0)
        o = 512*par
        a.label(L(f'LOOP{par}'))
        a(f"s_sub_u32 s{sREM}, s{sREM}, 1")
        a(f"s_cmp_eq_u32 s{sREM}, 0")
        a(f"s_cbranch_scc1 {L(f'TAIL{par}')}")
        if not slow and opt("lprio", 1):
            a(f"s_add_u32 s{sIT}, s{sIT}, 1")
            for it, p in DPRIO:
                a(f"s_cmp_lg_u32 s{sIT}, {it}")
                a(f"s_cbranch_scc1 {L(f'PR{par}{p}')}")
                a(f"s_setprio {p}")
                a.label(L(f'PR{par}{p}'))
        a(f"ds_read_b32 v{GBE}, v{VE} offset:{o+512}")
        a(f"ds_read2_b32 {P(GNR)}, v{VG} offset0:{o//4} offset1:{o//4+2}")
        a(f"s_cmp_lt_u32 s{sREM}, 2")
        a(f"s_cbranch_scc1 {L(f'NOI{par}')}")
        idxread(a)
        a(f"ds_read_b32 v{GBA}, v{VA} offset:{o+1536}")
        a.label(L(f'NOI{par}'))
        xphase(a, D0, mfma3(D1, 1))
        a("s_waitcnt vmcnt(0) lgkmcnt(0)")
        aread(a)
        a(f"v_add_u32 v{GBE}, v{GBE}, v{CE}")
        a(f"v_add_u32 v{fan}, v{GNR}, v{L8}")
        a(f"v_add_u32 v{fan+1}, v{GNR+1}, v{L8}")
        a(f"v_add_u32 v{GBA}, v{GBA}, v{CA}")
        a(f"ds_read_u16 v{AEXT+2}, v{GBE}")
        bext(a, fan)
        def mid():
            a(f"s_cmp_lt_u32 s{sREM}, 2")
            a(f"s_cbranch_scc1 {L(f'NOD{par}')}")
            a("s_waitcnt lgkmcnt(5)")
            dma4(a)
            a.label(L(f'NOD{par}'))
        fphase(a, D0, 0, slow, fa, [(opt("dmaq", 2), mid)])
        a("s_waitcnt lgkmcnt(2)")
        xphase(a, D1, mfma3(D0, 0))
        if par == 1:
            for r in (VA, VE, VG):
                a(f"v_add_u32 v{r}, 1024, v{r}")
        fphase(a, D1, 256, slow, fa)
        if par == 1:
            a(f"s_branch {L('LOOP0')}")
    for par in range(2):
        fa = FA0 if par == 0 else FA1
        a.label(L(f'TAIL{par}'))
        xphase(a, D0, mfma3(D1, 1))
        fphase(a, D0, 0, slow, fa)
        xphase(a, D1, None)
        fphase(a, D1, 256, slow, fa)
        a("s_branch K2_LOOPDONE")

def count_tiles(a):
    a(f"s_lshl_b32 s3, s{sM}, 2")
    a(f"s_add_u32 s3, s3, s{sW}")
    a(f"s_sub_i32 s{sREM}, s{sT}, s3")
    a(f"s_add_i32 s{sREM}, s{sREM}, 15")
    a(f"s_max_i32 s{sREM}, s{sREM}, 0")
    a(f"s_lshr_b32 s{sREM}, s{sREM}, 4")
    a(f"s_sub_i32 s3, s{sT}, s{sW}")
    a("s_add_i32 s3, s3, 15")
    a("s_max_i32 s3, s3, 0")
    a("s_lshr_b32 s3, s3, 2")
    a(f"s_min_u32 s3, s3, s{sM}")
    a(f"s_mul_i32 s3, s3, s{sDYN}")
    a(f"s_add_u32 s{sREM}, s{sREM}, s3")

def schain(a, Dc, Nr, Pr, first, mids=()):
    mids = dict(mids)
    if first:
        a(f"v_pk_add_f32 {P(PT)}, {P(X)}, s[{sONE}:{sONE+1}]")
        cur, nxt = PT, Pr
        q0 = 1
    else:
        cur, nxt = Pr, PT
        q0 = 0
    for q in range(q0, 8):
        src = Dc if (first and q == 1) else Nr
        a(f"v_pk_fma_f32 {P(Nr)}, {P(src)}, {P(X+2*q)}, {P(src)}")
        a(f"v_pk_fma_f32 {P(nxt)}, {P(cur)}, {P(X+2*q)}, {P(cur)}")
        a(f"v_pk_fma_f32 {P(Nr)}, {P(Dc+2*q)}, {P(cur)}, {P(Nr)}")
        cur, nxt = nxt, cur
        if q in mids: mids[q]()
    assert cur == Pr

def sidx(a, j):
    for i in range(4):
        a(f"ds_read_u16 v{RP+2*i}, v{SA} offset:{32*j + 4*i}")

def static_phase(a):
    K = KS
    dma4(a)
    for m in mfma3(D0, 0): a(m)
    a("s_nop 7")
    a("s_nop 3")
    for j in range(K):
        last = j == K-1
        if opt("lprio", 1) and j in SPRIO:
            a(f"s_setprio {SPRIO[j]}")
        if STAMP and LOOPST and j < 7: stamp(a, 1+j, True)
        if j+2 < K:
            sidx(a, j+2)
        if j == K-3:
            a(f"v_mov_b32 v{GBE}, {FLG+8}")
            a.label("K2_POLL")
            a(f"ds_read_b64 {P(GNR)}, v{GBE}")
            a(f"ds_read_b32 v{GBA}, v{VA}")
        if j == K-2:
            a(f"s_cmp_eq_u32 s{sREM}, 0")
            a("s_cbranch_scc1 K2_SN0")
            idxread(a)
            a(f"ds_read_b32 v{GBA}, v{VA} offset:512")
            a.label("K2_SN0")
        if last:
            a(f"s_cmp_eq_u32 s{sREM}, 0")
            a("s_cbranch_scc1 K2_SLAST0")
            a(f"ds_read_b32 v{GBE}, v{VE}")
            a(f"ds_read2_b32 {P(GNR)}, v{VG} offset0:0 offset1:2")
            a(f"s_cmp_lt_u32 s{sREM}, 2")
            a("s_cbranch_scc1 K2_SN1")
            idxread(a)
            a(f"ds_read_b32 v{GBA}, v{VA} offset:1024")
            a.label("K2_SN1")
        xphase(a, D0, mfma3(D1, 1))
        if j == opt("w2", -1) + 1 and j > 0:
            a(f"s_cmp_ge_u32 s{sW}, 4")
            a("s_cbranch_scc1 K2_NOW3")
            a("s_waitcnt vmcnt(1) lgkmcnt(0)")
            a("s_branch K2_NOW4")
            a.label("K2_NOW3")
        a("s_waitcnt vmcnt(0) lgkmcnt(0)")
        if j == opt("w2", -1) + 1 and j > 0: a.label("K2_NOW4")
        aread(a)
        nsmall = 1
        if j == K-3:
            a(f"v_readfirstlane_b32 s{sT}, v{GNR}")
            a(f"v_readfirstlane_b32 s{sOVF}, v{GNR+1}")
            a(f"s_cmp_eq_u32 s{sT}, 0")
            a("s_cbranch_scc1 K2_NOTREADY")
            a.label("K2_READY")
            a(f"s_sub_u32 s{sT}, s{sT}, 1")
            count_tiles(a)
        if j >= K-3:
            a(f"v_add_u32 v{GBA}, v{GBA}, v{CA}")
        if not last:
            a(f"ds_read_u16 v{AEXT+2}, v{SE} offset:{32*(j+1)}")
        else:
            a(f"v_add_u32 v{GBE}, v{GBE}, v{CE}")
            a(f"v_add_u32 v{FA0}, v{GNR}, v{L8}")
            a(f"v_add_u32 v{FA0+1}, v{GNR+1}, v{L8}")
            a(f"v_add_u32 v{VG}, 512, v{VG}")
            a(f"ds_read_u16 v{AEXT+2}, v{GBE}")
            bext(a, FA0)
            nsmall = 5
        def mid():
            if j >= K-2:
                a(f"s_cmp_lt_u32 s{sREM}, {j-(K-2)+1}")
                a(f"s_cbranch_scc1 K2_SND{j}")
            a(f"s_waitcnt lgkmcnt({nsmall})")
            dma4(a)
            if j == opt("w2", -1):
                a(f"s_cmp_ge_u32 s{sW}, 4")
                a("s_cbranch_scc1 K2_NOW2")
                a(f"v_lshlrev_b32 v{GBE}, 7, v0")
                a(f"s_add_u32 s3, s{sWB}, {N*64}")
                a(f"buffer_load_dword v{GBE}, v{GBE}, s[{S_TABR}:{S_TABR+3}], s3 offen")
                a.label("K2_NOW2")
            if j >= K-2: a.label(f"K2_SND{j}")
        schain(a, D0, N0, P0, j == 0, [(opt("dmaq", 2), mid)])
        a("s_waitcnt lgkmcnt(0)")
        xphase(a, D1, mfma3(D0, 0))
        schain(a, D1, N1, P1, j == 0)
        if j in (1, 3):
            for r in (N0, P0, N1, P1):
                a(f"v_pk_mul_f32 {P(r)}, {P(r)}, s[{sSC}:{sSC+1}]")
    def sflush():
        for h, (Nr, Pr) in enumerate(((N0, P0), (N1, P1))):
            a(f"v_rcp_f32 v{X}, v{Pr}")
            a(f"v_rcp_f32 v{X+1}, v{Pr+1}")
            a(f"v_max3_f32 v{PM}, v{Pr}, v{Pr+1}, v{PM}")
            a(f"v_pk_mul_f32 {P(Nr)}, {P(Nr)}, {P(X)}")
            a(f"v_cvt_f64_f32 {P(X+2+4*h)}, v{Nr}")
            a(f"v_cvt_f64_f32 {P(X+4+4*h)}, v{Nr+1}")
            a(f"ds_add_f64 v{FA1}, {P(X+2+4*h)} offset:{AGG+256*h}")
            a(f"ds_add_f64 v{FA1+1}, {P(X+4+4*h)} offset:{AGG+256*h}")
        a(f"v_add_f32 v{X}, abs(v{N0}), abs(v{N0+1})")
        a(f"v_add_f32 v{X+1}, abs(v{N1}), abs(v{N1+1})")
        a(f"v_add_f32 v{X}, v{X}, v{X+1}")
        a(f"v_mul_f32 v{X}, 0, v{X}")
        a(f"v_add_f32 v{PM}, v{PM}, v{X}")
    sflush()
    a("s_branch K2_F_LOOP0")
    a.label("K2_SLAST0")
    xphase(a, D0, mfma3(D1, 1))
    schain(a, D0, N0, P0, False)
    xphase(a, D1, None)
    schain(a, D1, N1, P1, False)
    sflush()
    a("s_branch K2_LOOPDONE")

def prefill(a, lab, first):
    for r in range(4): a(f"v_mov_b32 v{28+r}, 0xffff")
    a("v_lshlrev_b32 v10, 4, v0")
    a(f"ds_write_b128 v10, v[28:31] offset:{RECS}")
    if first:
        for r in range(4): a(f"v_mov_b32 v{16+r}, 0")
        a(f"ds_write_b128 v10, v[16:19] offset:{AGG}")
        a(f"ds_write_b128 v10, v[16:19] offset:{AGG+16384}")
    a(f"s_cmp_ge_u32 s{sW}, 7")
    a(f"s_cbranch_scc1 {lab}b")
    a(f"s_cmp_eq_u32 s{sW}, 6")
    a(f"s_cbranch_scc1 {lab}a")
    a(f"v_mov_b32 v26, {(50*BLK - 16384)//16}")
    a(f"v_add_u32 v10, {RECS+16384}, v10")
    a("v_cmpx_lt_u32 vcc, v0, v26")
    a(f"ds_write_b128 v10, v[28:31]")
    a("s_mov_b64 exec, -1")
    a(f"s_branch {lab}b")
    a.label(lab + "a")
    a("v_mul_u32_u24 v10, 12, v1")
    a("v_mov_b32 v20, 0")
    a("v_mov_b32 v21, 0")
    a(f"v_mul_u32_u24 v22, {CAPN}, v1")
    a(f"v_add_u32 v22, {RECS//4}, v22")
    a("s_mov_b32 exec_lo, -1")
    a(f"s_mov_b32 exec_hi, {hex((1 << 18) - 1)}")
    a(f"ds_write2_b32 v10, v20, v22 offset0:{CNT//4} offset1:{CNT//4+1}")
    a(f"ds_write_b32 v10, v20 offset:{CNT+8}")
    a(f"v_mov_b32 v10, {FLG}")
    a("ds_write_b64 v10, v[20:21] offset:8")
    if first:
        a("ds_write_b64 v10, v[20:21]")
    a("s_mov_b64 exec, -1")
    a.label(lab + "b")

def first_addr(a):
    a("v_lshrrev_b32 v8, 4, v1")
    a(f"v_lshl_add_u32 v8, s{sW}, 2, v8")
    a(f"v_mul_u32_u24 v9, {BLK}, v8")
    a("v_lshlrev_b32 v11, 1, v1")
    a("v_and_b32 v11, 16, v11")
    a(f"v_add3_u32 v{SA}, v9, v11, s{sRECS}")
    a("v_bfe_u32 v8, v1, 4, 1")
    a("v_lshrrev_b32 v9, 5, v1")
    a("v_lshl_or_b32 v8, v9, 2, v8")
    a("v_and_b32 v9, 7, v1")
    a("v_xor_b32 v8, v8, v9")
    a(f"v_lshlrev_b32 v{RP+1}, 4, v8")
    a(f"v_xor_b32 v{RP+3}, 32, v{RP+1}")
    a(f"v_mov_b32 v{RP+5}, v{RP+1}")
    a(f"v_mov_b32 v{RP+7}, v{RP+3}")

def const_read(a):
    a("v_lshlrev_b32 v2, 4, v1")
    a(f"v_add_u32 v{CADR}, {CONSTL}, v2")
    a(f"ds_read_b128 v[4:7], v{CADR} offset:4096")
    a(f"s_lshl_b32 s3, s{sNT}, 11")
    a(f"s_lshl_b32 s76, s{sFT}, 11")
    a(f"s_mul_i32 s77, s{sNT}, {16*RS}")
    a(f"s_lshl_b32 s78, s{sFT}, 7")
    a("s_add_u32 s77, s77, s78")
    a(f"s_mul_i32 s78, s{sNT}, 192")
    a("s_waitcnt lgkmcnt(0)")
    a("v_add_u32 v4, s3, v4")
    a("v_add_u32 v5, s76, v5")
    a("v_add_u32 v6, s77, v6")
    a("v_add_u32 v7, s78, v7")

def const_read2(a):
    a("v_lshlrev_b32 v3, 3, v1")
    a(f"v_add_u32 v3, {CONSTL + 5120}, v3")
    a(f"ds_read_b64 {P(GNR)}, v3 offset:1536")
    a(f"ds_read_b128 {v(VA,4)}, v{CADR} offset:3072")
    a(f"ds_read_b64 {P(CA)}, v3 offset:2048")
    a(f"ds_read_b128 {v(RA,4)}, v{CADR} offset:2048")
    a(f"ds_read_b128 {v(I0,4)}, v{CADR}")
    a(f"ds_read_b128 {v(I1,4)}, v{CADR} offset:1024")
    a(f"ds_read_b64 {P(AEXT)}, v3")
    a(f"ds_read_b64 {P(BX0+2)}, v3 offset:512")
    a(f"ds_read_b64 {P(BX1+2)}, v3 offset:1024")
    a(f"v_mov_b32 v{AEXT+3}, 0")

def correction(a):
    a("v_add_u32 v22, v22, v23")
    a(f"v_mul_u32_u24 v23, {21846*CAPN//4}, v7") if False else None
    a("v_mul_u32_u24 v23, 0x5556, v7")
    a("v_lshrrev_b32 v23, 18, v23")
    a(f"v_mul_u32_u24 v23, {CAPN}, v23")
    a("v_sub_u32 v22, v22, v23")
    a(f"v_subrev_u32 v22, {RECS//4}, v22")
    a("v_mov_b32 v23, 576")
    a("v_cmp_lt_u32 s[76:77], v7, v23")
    a(f"s_lshl_b32 s3, s{sK}, 3")
    a("v_mov_b32 v23, s3")
    a(f"v_min_u32 v22, s{sCAPN}, v22")
    a("v_add_u32 v21, 7, v22")
    a("v_cndmask_b32 v23, 0, v23, s[76:77]")
    a("v_and_b32 v21, -8, v21")
    a("v_max_u32 v21, v21, v23")
    a("v_sub_u32 v21, v22, v21")
    a("v_cvt_f32_i32 v21, v21")
    a("s_mov_b64 exec, s[78:79]")
    a("v_pk_mul_f32 v[24:25], v[24:25], v[20:21] op_sel:[0,1] op_sel_hi:[1,1]")
    a("v_pk_mul_f32 v[26:27], v[26:27], v[20:21] op_sel:[0,1] op_sel_hi:[1,1]")
    for r in range(4):
        a(f"v_cvt_f64_f32 v[{32+2*r}:{33+2*r}], v{24+r}")
        a(f"ds_add_f64 v6, v[{32+2*r}:{33+2*r}] offset:{AGG + 8*r}")
    a("s_mov_b64 exec, -1")

def gen_k2(a):
    CURK[0] = 2
    WARM = opt("warm", 1)
    a.label("k2_kernel")
    a(f"s_cmp_ge_u32 s2, {NB}")
    a("s_cbranch_scc1 K2_END")
    a("s_load_dwordx2 s[14:15], s[0:1], 64")
    a("s_load_dwordx2 s[4:5], s[0:1], 0")
    a("s_load_dwordx2 s[12:13], s[0:1], 48")
    stamp_start(a)
    stamp(a, 0)
    prio(a, 3)
    a("v_lshrrev_b32 v2, 6, v0")
    a("v_and_b32 v1, 63, v0")
    a(f"v_readfirstlane_b32 s{sW}, v2")
    a("s_and_b32 s3, s2, 7")
    a("s_lshl_b32 s3, s3, 5")
    a(f"s_lshr_b32 s{sB}, s2, 3")
    a(f"s_add_u32 s{sB}, s{sB}, s3")
    a("v_lshrrev_b32 v12, 2, v0")
    a("v_lshlrev_b32 v3, 10, v12")
    a(f"s_lshl_b32 s3, s{sB}, 2")
    a(f"s_mov_b32 s{S_OFF+2}, {NP*1024}")
    a(f"s_mov_b32 s{S_OFF+3}, 0x00020000")
    a("s_waitcnt lgkmcnt(0)")
    a(f"s_add_u32 s{S_OFF}, s14, {WS_OFF}")
    a(f"s_addc_u32 s{S_OFF+1}, s15, 0")
    a(f"buffer_load_dword v{OFFW}, v3, s[{S_OFF}:{S_OFF+3}], s3 offen")
    srd(a, S_REC, 14, 15, NP*RSTR, WS_REC)
    a(f"s_mov_b32 s{sCHUNK}, 0")
    def rec_prep(first):
        a("v_and_b32 v3, 3, v0")
        a("v_lshlrev_b32 v3, 2, v3")
        if not first:
            a(f"v_add_u32 v3, s{sCHUNK}, v3")
            a("v_lshrrev_b32 v12, 2, v0")
        a(f"v_mul_u32_u24 v12, {RSTR//4}, v12")
    def rec_masks():
        a(f"v_lshrrev_b32 v5, 16, v{OFFW}")
        a("v_sub_u32 v2, v5, v3")
        for j in (0, 4):
            a(f"v_cmp_lt_i32 s[{sVAL+2*j}:{sVAL+2*j+1}], {16*(j>>2)+(j&3)}, v2")
    def rec_masks2():
        for j in (1, 2, 3, 5, 6, 7):
            a(f"v_cmp_lt_i32 s[{sVAL+2*j}:{sVAL+2*j+1}], {16*(j>>2)+(j&3)}, v2")
    def rec_loads(first):
        a(f"v_and_b32 v6, 0xffff, v{OFFW}")
        if not first:
            a(f"v_lshrrev_b32 v5, 16, v{OFFW}")
        a(f"v_add_u32 v4, v6, v{4 if first else 12}")
        a("v_add_lshl_u32 v5, v4, v5, 2")
        a("v_add_lshl_u32 v4, v4, v3, 2")
        a("v_add_u32 v5, v5, v3")
        for r in range(2):
            if first:
                a(f"s_mov_b64 exec, s[{sVAL+8*r}:{sVAL+8*r+1}]")
            else:
                a(f"s_or_b64 s[76:77], s[{sVAL+8*r}:{sVAL+8*r+1}], s[{sVAL+8*r+2}:{sVAL+8*r+3}]")
                a(f"s_or_b64 s[76:77], s[76:77], s[{sVAL+8*r+4}:{sVAL+8*r+5}]")
                a(f"s_or_b64 exec, s[76:77], s[{sVAL+8*r+6}:{sVAL+8*r+7}]")
            a(f"buffer_load_dword v{40+r}, v5, s[{S_REC}:{S_REC+3}], 0 offen offset:{16*r}")
            a(f"buffer_load_dwordx4 v[{32+4*r}:{35+4*r}], v4, s[{S_REC}:{S_REC+3}], 0 offen offset:{64*r}")
        a("s_mov_b64 exec, -1")
    srd(a, S_CON, 14, 15, 8192*4, WS_CONST)
    a("v_lshlrev_b32 v13, 4, v1")
    a(f"s_lshl_b32 s3, s{sW}, 10")
    a(f"s_add_u32 m0, s3, {PST}")
    a("s_add_u32 s76, s3, 8192")
    a(f"buffer_load_dwordx4 v13, s[{S_CON}:{S_CON+3}], s76 offen lds")
    a(f"s_mul_i32 s{sNODE0}, s{sB}, {NPB}")
    a(f"s_cmp_ge_u32 s{sW}, 8")
    a("s_cbranch_scc1 K2_W1")
    a(f"s_add_u32 m0, s3, {CONSTL}")
    a(f"s_cmp_eq_u32 s{sW}, 7")
    a("s_cselect_b32 exec_hi, 0, -1")
    a(f"buffer_load_dwordx4 v13, s[{S_CON}:{S_CON+3}], s3 offen lds")
    a("s_mov_b64 exec, -1")
    a("s_branch K2_W2")
    a.label("K2_W1")
    srd(a, S_X, 4, 5, N*128)
    a("s_sub_u32 s3, s3, 8192")
    a("v_lshrrev_b32 v5, 3, v1")
    a("v_and_b32 v6, 7, v1")
    a("v_xor_b32 v6, v6, v5")
    a("v_lshlrev_b32 v6, 4, v6")
    a("v_lshl_add_u32 v6, v5, 7, v6")
    a(f"s_add_u32 m0, s3, {PST + 16384}")
    a(f"s_lshl_b32 s76, s{sNODE0}, 7")
    a("s_add_u32 s3, s3, s76")
    a("v_add_u32 v6, s3, v6")
    a(f"buffer_load_dwordx4 v6, s[{S_X}:{S_X+3}], 0 offen lds")
    a.label("K2_W2")
    rec_prep(True)
    a("v_mov_b32 v4, v12")
    EARLY = opt("early", 3)
    def setup():
        srd(a, S_TABR, 14, 15, N*128, WS_TAB)
        a(f"s_mov_b32 s{S_TAB}, s{S_TABR}")
        a(f"s_or_b32 s{S_TAB+1}, s{S_TABR+1}, {128 << 16}")
        a(f"s_mov_b32 s{S_TAB+2}, {N}")
        a(f"s_mov_b32 s{S_TAB+3}, 0x00020000")
        srd(a, S_OUT, 12, 13, N*128)
        a(f"s_mov_b32 s{sSC}, 0x2d800000")
        a(f"s_mov_b32 s{sSC+1}, 0x2d800000")
        a(f"s_movk_i32 s{sCAPN}, {CAPN}")
        a(f"s_mov_b32 s{sRECS}, {RECS}")
        a(f"s_mov_b32 s{sMODE}, 0")
        a(f"s_mov_b32 s{sK}, {KS}")
        a(f"s_mov_b32 s{sM}, {MD}")
        a(f"s_cmp_ge_u32 s{sW}, 12")
        a(f"s_cselect_b32 s{sDYN}, 1, 0")
        a(f"s_mov_b32 s{sONE}, 1.0")
        a(f"s_mov_b32 s{sONE+1}, 1.0")
        a(f"s_lshl_b32 s{sSLOT}, s{sW}, 12")
        a(f"s_add_u32 s{sSLOT}, s{sSLOT}, {STG}")
        a(f"v_mov_b32 v{PM}, 0")
        a(f"v_mov_b32 v{PM2}, 0")
        a(f"s_lshr_b32 s{sNT}, s{sW}, 2")
        a(f"s_and_b32 s{sFT}, s{sW}, 3")
        a("s_lshr_b32 s3, s2, 3")
        a(f"s_mul_i32 s{sWB2}, s3, {25088 if WARM == 1 else 50048}")
    if EARLY & 1: setup()
    if EARLY & 2: prefill(a, "K2_PF1", True)
    if EARLY & 4: first_addr(a)
    a("s_waitcnt vmcnt(2)")
    stamp(a, 2)
    rec_masks()
    rec_loads(True)
    prio(a, 1)
    a(f"s_lshl_b32 s3, s{sW}, 9")
    a(f"s_add_u32 m0, s3, {WU2}")
    a("s_add_u32 s76, s3, 24576")
    a("s_mov_b64 exec, 0xffffffff")
    a(f"buffer_load_dwordx4 v13, s[{S_CON}:{S_CON+3}], s76 offen lds")
    a("s_mov_b64 exec, -1")
    if not (EARLY & 1): setup()
    if not (EARLY & 2): prefill(a, "K2_PF1", True)
    rec_masks2()
    a("s_waitcnt vmcnt(5) lgkmcnt(0)")
    a("s_barrier")
    const_read(a)
    a("v_xor_b32 v2, 64, v4")
    a("ds_read_b128 v[16:19], v4")
    a("ds_read_b128 v[20:23], v2")
    for mtx in range(2):
        for ks in range(2):
            r = 64 + 8*mtx + 4*ks
            a(f"ds_read_b128 v[{r}:{r+3}], v5 offset:{8192*mtx + 1024*ks}")
    a("v_mov_b32 v2, 600")
    a("v_cmp_lt_u32 s[78:79], v7, v2")
    a(f"s_mov_b32 s76, {NLOG2E:#x}")
    a(f"s_mov_b32 s77, {NLOG2E:#x}")
    a("s_waitcnt lgkmcnt(0)")
    a("v_mfma_f32_16x16x32_bf16 v[24:27], v[64:67], v[16:19], 0")
    a("v_mfma_f32_16x16x32_bf16 v[28:31], v[72:75], v[16:19], 0")
    a("v_mfma_f32_16x16x32_bf16 v[24:27], v[68:71], v[20:23], v[24:27]")
    a("v_mfma_f32_16x16x32_bf16 v[28:31], v[76:79], v[20:23], v[28:31]")
    if not (EARLY & 4): first_addr(a)
    else: a("s_nop 4")
    a("s_mov_b32 s3, 0x05040100")
    a("s_mov_b32 s4, 0x07060302")
    a("v_pk_mul_f32 v[24:25], v[24:25], s[76:77]")
    a("v_pk_mul_f32 v[26:27], v[26:27], s[76:77]")
    a("v_pk_mul_f32 v[28:29], v[28:29], s[76:77]")
    a("v_pk_mul_f32 v[30:31], v[30:31], s[76:77]")
    for h in range(2):
        a(f"v_cvt_pk_bf16_f32 v{8+h}, v{24+2*h}, v{25+2*h}")
        a(f"v_lshlrev_b32 v16, 16, v{8+h}")
        a(f"v_and_b32 v17, 0xffff0000, v{8+h}")
        a(f"v_pk_add_f32 v[16:17], v[{24+2*h}:{25+2*h}], v[16:17] neg_lo:[0,1] neg_hi:[0,1]")
        a(f"v_cvt_pk_bf16_f32 v16, v16, v17")
        a(f"v_perm_b32 v{64+4*h}, v16, v{8+h}, s3")
        a(f"v_perm_b32 v{66+4*h}, v16, v{8+h}, s4")
        a(f"v_mov_b32 v{65+4*h}, v{28+2*h}")
        a(f"v_mov_b32 v{67+4*h}, v{29+2*h}")
    a("s_mov_b64 exec, s[78:79]")
    a(f"ds_write_b128 v6, v[64:67] offset:{BP}")
    a(f"ds_write_b128 v6, v[68:71] offset:{BP+16}")
    a("s_mov_b64 exec, -1")
    a(f"v_lshlrev_b32 v17, 7, v0")
    a(f"v_add_u32 v17, s{sWB2}, v17")
    a(f"v_lshrrev_b32 v16, 16, v{OFFW}")
    a("v_cmp_lt_u32 vcc, 32, v16")
    a("s_nop 0")
    a("s_nop 0")
    a("s_cbranch_vccz K2_NOMAX")
    a("s_mov_b64 exec, vcc")
    a(f"v_mov_b32 v3, {FLG}")
    a("ds_max_u32 v3, v16")
    a("s_mov_b64 exec, -1")
    a.label("K2_NOMAX")
    prio(a, 3)
    a("s_waitcnt vmcnt(1)")
    stamp(a, 3)
    a.label("K2_PASS")
    a("v_mov_b32 v2, 1")
    a("v_min_u32 v18, 48, v1")
    a("v_mul_u32_u24 v19, 12, v18")
    a(f"v_mul_u32_u24 v18, {CAPN}, v18")
    a(f"s_or_b64 s[76:77], s[{sVAL+8}:{sVAL+9}], s[{sVAL+10}:{sVAL+11}]")
    a(f"s_or_b64 s[76:77], s[76:77], s[{sVAL+12}:{sVAL+13}]")
    a(f"s_or_b64 s[76:77], s[76:77], s[{sVAL+14}:{sVAL+15}]")
    a(f"s_cselect_b32 s{sTN}, 1, 0")
    for half in range(2):
        if half == 1:
            a(f"s_cbranch_scc0 K2_RK4")
        for j in range(4*half, 4*half+4):
            a(f"v_lshlrev_b32_sdwa v{48+j}, 2, v{40+half} dst_sel:DWORD dst_unused:UNUSED_PAD src0_sel:DWORD src1_sel:BYTE_{j&3}")
        for j in range(4*half, 4*half+4):
            a(f"s_mov_b64 exec, s[{sVAL+2*j}:{sVAL+2*j+1}]")
            a(f"ds_add_rtn_u32 v{56+j}, v{48+j}, v2 offset:{CNT}")
        a("s_mov_b64 exec, -1")
    a.label("K2_RK4")
    if WARM:
        a(f"s_cmp_ge_u32 s{sW}, {4 if WARM == 1 else 7}")
        a("s_cbranch_scc1 K2_NOWARM")
        a(f"buffer_load_dword v{GBE}, v17, s[{S_TABR}:{S_TABR+3}], 0 offen")
        a.label("K2_NOWARM")
    a(f"v_add_u32 v18, {RECS//4 + CAPN}, v18")
    a("s_waitcnt lgkmcnt(0)")
    a("s_barrier")
    stamp(a, 4)
    a(f"ds_read2_b32 v[20:21], v19 offset0:{CNT//4+1} offset1:{CNT//4+2}")
    for j in range(4):
        a(f"ds_read_b32 v{80+j}, v{48+j} offset:{CNT-4}")
    a(f"s_cmp_eq_u32 s{sTN}, 0")
    a("s_cbranch_scc1 K2_PL0")
    for j in range(4, 8):
        a(f"ds_read_b32 v{80+j}, v{48+j} offset:{CNT-4}")
    a.label("K2_PL0")
    for r in range(4):
        a(f"v_exp_f32 v{28+r}, v{24+r}")
    a("s_nop 0")
    a(f"v_pk_add_f32 v[28:29], v[28:29], s[{sONE}:{sONE+1}]")
    a(f"v_pk_add_f32 v[30:31], v[30:31], s[{sONE}:{sONE+1}]")
    for r in range(4):
        a(f"v_rcp_f32 v{28+r}, v{28+r}")
    a("s_nop 0")
    a("v_pk_mul_f32 v[24:25], v[24:25], v[28:29]")
    a("v_pk_mul_f32 v[26:27], v[26:27], v[30:31]")
    a("s_waitcnt lgkmcnt(0)")
    a("v_add_u32 v20, v20, v21")
    a("v_cmp_gt_u32 vcc, v20, v18")
    a("s_nop 1")
    a("s_cbranch_vccnz K2_CAREFUL")
    for j in range(8):
        if j == 4:
            a(f"s_cbranch_scc1 K2_PL4")
        a(f"s_mov_b64 exec, s[{sVAL+2*j}:{sVAL+2*j+1}]")
        a(f"v_add_lshl_u32 v{48+j}, v{56+j}, v{80+j}, 2")
        a(f"ds_write_b32 v{48+j}, v{32+j}")
    a.label("K2_PL4")
    a("s_mov_b64 exec, -1")
    a("s_waitcnt lgkmcnt(0)")
    a("s_barrier")
    stamp(a, 5)
    def fixups(static):
        a(f"s_lshl_b32 s3, s{sW}, 5")
        if static:
            a(f"s_add_u32 s3, s3, {MD*512}")
        for r in (VA, VE, VG):
            a(f"v_add_u32 v{r}, s3, v{r}")
        for k in range(4):
            a(f"v_add_u32 v{RA+k}, s{sSLOT}, v{RA+k}")
    a(f"s_or_b32 s3, s{sDYN}, s{sMODE}")
    a("s_cbranch_scc1 K2_DYNW")
    sidx(a, 0)
    a(f"ds_read2_b32 v[22:23], v7 offset0:{CNT//4+1} offset1:{CNT//4+2}")
    a("s_waitcnt lgkmcnt(1)")
    dma4(a)
    stamp(a, 6)
    prio(a, opt("sp", 3))
    sidx(a, 1)
    const_read2(a)
    a(f"s_mul_i32 s3, s{sW}, {4*BLK}")
    a(f"s_mul_i32 s4, s{sW}, {4*RS}")
    a("s_waitcnt lgkmcnt(8)")
    a(f"v_add_u32 v{SE}, s3, v{GNR}")
    a(f"v_add_u32 v{FA1}, s4, v{GNR+1}")
    a(f"v_add_u32 v{FA1+1}, {RS}, v{FA1}")
    a(f"ds_read_u16 v{AEXT+2}, v{SE}")
    bext(a, FA1)
    correction(a)
    a("s_waitcnt lgkmcnt(9)")
    fixups(True)
    a(f"s_mov_b32 s{sIT}, 100")
    prio(a, SP0)
    a("s_waitcnt vmcnt(0)")
    stamp(a, 1)
    aread(a)
    a("s_waitcnt lgkmcnt(0)")
    static_phase(a)
    a.label("K2_NOTREADY")
    a(f"ds_read_b64 {P(GNR)}, v{GBE}")
    a(f"ds_read_b32 v{GBA}, v{VA}")
    a("s_waitcnt lgkmcnt(0)")
    a(f"v_readfirstlane_b32 s{sT}, v{GNR}")
    a(f"v_readfirstlane_b32 s{sOVF}, v{GNR+1}")
    a(f"s_cmp_eq_u32 s{sT}, 0")
    a("s_cbranch_scc1 K2_NOTREADY")
    a(f"ds_read_b32 v{GBA}, v{VA}")
    a("s_waitcnt lgkmcnt(0)")
    a("s_branch K2_READY")
    a.label("K2_DYNW")
    for i in range(4): a(f"v_mov_b32 v{RP+2*i}, -1")
    a("v_min_u32 v12, 48, v1")
    a("v_mul_u32_u24 v13, 12, v12")
    a(f"ds_read2_b32 v[18:19], v13 offset0:{CNT//4+1} offset1:{CNT//4+2}")
    a(f"ds_read2_b32 v[22:23], v7 offset0:{CNT//4+1} offset1:{CNT//4+2}")
    const_read2(a)
    a("v_cmp_gt_u32 s[76:77], 48, v1")
    a(f"v_mul_u32_u24 v17, {RS}, v12")
    a(f"v_mul_u32_u24 v16, {BLK}, v12")
    a("v_lshrrev_b32 v21, 2, v16")
    a(f"v_add_u32 v21, {RECS//4}, v21")
    a("v_subrev_u32 v9, 48, v1")
    a(f"v_mov_b32 v10, s{sK}")
    a("v_cndmask_b32 v12, v9, v10, s[76:77]")
    a("v_cndmask_b32 v13, 1, 14, s[76:77]")
    a("v_lshl_add_u32 v16, v12, 5, v16")
    a(f"v_add_u32 v16, s{sRECS}, v16")
    a(f"s_lshl_b32 s4, s{sM}, 4")
    a(f"s_mul_i32 s5, s{sM}, 384")
    a(f"s_add_u32 s5, s5, {GT}")
    a("s_waitcnt lgkmcnt(10)")
    a("v_add_u32 v8, v18, v19")
    a("v_sub_u32 v8, v8, v21")
    a(f"v_cmp_lt_u32 vcc, s{sCAPN}, v8")
    a(f"v_min_u32 v8, s{sCAPN}, v8")
    a("v_add_u32 v9, 7, v8")
    a("v_lshrrev_b32 v9, 3, v9")
    a("v_sub_u32 v10, v9, v12 clamp")
    a("v_min_u32 v10, v10, v13")
    a("v_mov_b32 v11, v10")
    a("s_cmp_lg_u64 vcc, 0")
    a(f"s_cselect_b32 s{sOVF}, 1, 0")
    scan64(a, 11)
    a(f"v_readlane_b32 s{sT}, v11, 63")
    a("v_sub_u32 v11, v11, v10")
    def pos():
        a("v_lshlrev_b32 v18, 3, v11")
        a("v_and_b32 v19, 0x78, v18")
        a("v_lshrrev_b32 v20, 4, v11")
        a("v_lshl_add_u32 v19, v20, 9, v19")
        a("v_cmp_gt_u32 s[76:77], s4, v11")
        a(f"v_add_u32 v19, {GT + 384}, v19")
        a("v_add_u32 v18, s5, v18")
        a("v_cndmask_b32 v18, v18, v19, s[76:77]")
    a("v_cmpx_lt_u32 vcc, 0, v10")
    a("s_nop 1")
    a("s_cbranch_execz K2_BLD1")
    a.label("K2_BLD0")
    pos()
    a("ds_write_b64 v18, v[16:17]")
    a("v_add_u32 v16, 32, v16")
    a("v_add_u32 v11, 1, v11")
    a("v_subrev_u32 v10, 1, v10")
    a("v_cmpx_lt_u32 vcc, 0, v10")
    a("s_nop 1")
    a("s_cbranch_execnz K2_BLD0")
    a.label("K2_BLD1")
    a("s_mov_b64 exec, -1")
    a("v_and_b32 v11, 3, v1")
    a(f"v_add_u32 v11, s{sT}, v11")
    a(f"v_mov_b32 v16, {RECS + NPB*BLK}")
    a(f"v_mov_b32 v17, {NPB*RS}")
    pos()
    a("ds_write_b64 v18, v[16:17]")
    a(f"s_add_u32 s{sT}, s{sT}, 3")
    a(f"s_lshr_b32 s{sT}, s{sT}, 2")
    a(f"s_add_u32 s3, s{sT}, 1")
    a("v_mov_b32 v18, s3")
    a(f"v_mov_b32 v19, s{sOVF}")
    a(f"v_mov_b32 v20, {FLG + 8}")
    a("s_waitcnt lgkmcnt(0)")
    a("ds_write_b64 v20, v[18:19]")
    count_tiles(a)
    fixups(False)
    a(f"s_mov_b32 s{sIT}, 0")
    a(f"s_cmp_eq_u32 s{sREM}, 0")
    a("s_cbranch_scc1 K2_DYN0")
    a(f"ds_read_b32 v{GBA}, v{VA}")
    a(f"ds_read_b32 v{GBE}, v{VE}")
    a(f"ds_read2_b32 {P(GNR)}, v{VG} offset0:0 offset1:2")
    a("s_waitcnt lgkmcnt(2)")
    a(f"v_add_u32 v{GBA}, v{GBA}, v{CA}")
    idxread(a)
    a(f"ds_read_b32 v{GBA}, v{VA} offset:512")
    a("s_waitcnt lgkmcnt(1)")
    dma4(a)
    stamp(a, 6)
    a(f"v_add_u32 v{GBE}, v{GBE}, v{CE}")
    a(f"v_add_u32 v{FA0}, v{GNR}, v{L8}")
    a(f"v_add_u32 v{FA0+1}, v{GNR+1}, v{L8}")
    a(f"v_add_u32 v{VG}, 512, v{VG}")
    a(f"ds_read_u16 v{AEXT+2}, v{GBE}")
    bext(a, FA0)
    a("s_waitcnt lgkmcnt(5)")
    a(f"v_add_u32 v{GBA}, v{GBA}, v{CA}")
    a(f"s_cmp_lt_u32 s{sREM}, 2")
    a("s_cbranch_scc1 K2_DYN0")
    idxread(a)
    a(f"ds_read_b32 v{GBA}, v{VA} offset:1024")
    a.label("K2_DYN0")
    correction(a)
    a(f"s_cmp_eq_u32 s{sREM}, 0")
    a("s_cbranch_scc1 K2_LOOPDONE")
    a("s_waitcnt vmcnt(0)")
    stamp(a, 1)
    aread(a)
    a("s_waitcnt lgkmcnt(0)")
    a(f"s_cmp_lt_u32 s{sREM}, 2")
    a("s_cbranch_scc1 K2_DYN1")
    dma4(a)
    a.label("K2_DYN1")
    for m in mfma3(D0, 0): a(m)
    a(f"v_add_u32 v{GBA}, v{GBA}, v{CA}")
    a(f"s_cmp_lg_u32 s{sMODE}, 0")
    a("s_nop 7")
    a("s_nop 1")
    a("s_cbranch_scc1 K2_S_LOOP0")
    dynloop(a, "F", False)
    a.label("K2_LOOPDONE")
    a("v_mov_b32 v2, 0x76800000")
    a("v_mov_b32 v3, 0x5f800000")
    a(f"v_cmp_nlt_f32 vcc, v{PM}, v2")
    a(f"v_cmp_nlt_f32 s[76:77], v{PM2}, v3")
    a("s_or_b64 vcc, vcc, s[76:77]")
    a("s_cbranch_scc0 K2_AFTER")
    a(f"v_mov_b32 v3, {FLG+4}")
    a("v_mov_b32 v2, 1")
    a("ds_write_b32 v3, v2")
    a.label("K2_AFTER")
    stamp(a, 7)
    a(f"v_mov_b32 v3, {FLG}")
    a(f"s_cmp_ge_u32 s{sW}, 4")
    a("s_cbranch_scc1 K2_B4")
    a("v_lshrrev_b32 v7, 4, v1")
    a(f"s_lshl_b32 s3, s{sW}, 4")
    a("v_and_b32 v9, 15, v1")
    a("v_add_u32 v9, s3, v9")
    a("v_lshlrev_b32 v4, 4, v1")
    a(f"v_add_u32 v4, {WU2}, v4")
    for q in range(8):
        a(f"ds_read_b128 v[{48+4*q}:{51+4*q}], v4 offset:{1024*q}")
    a(f"v_mul_u32_u24 v8, {RS}, v9")
    a("v_lshl_add_u32 v10, v7, 7, v8")
    a(f"v_add_u32 v10, {BP + 4}, v10")
    for ft in range(4):
        for h in range(2):
            r = 80 + 4*ft + 2*h
            a(f"ds_read2_b32 v[{r}:{r+1}], v10 offset0:{8*ft+4*h} offset1:{8*ft+4*h+2}")
    a("v_lshl_add_u32 v8, v7, 6, v8")
    a(f"v_add_u32 v6, s{sNODE0}, v9")
    a("v_lshlrev_b32 v6, 7, v6")
    a("v_lshl_add_u32 v6, v7, 5, v6")
    a.label("K2_B4")
    a("s_waitcnt lgkmcnt(0)")
    a("s_barrier")
    stamp(a, 8)
    a("ds_read_b64 v[12:13], v3")
    a(f"s_cmp_ge_u32 s{sW}, 4")
    a("s_cbranch_scc1 K2_NOAGG")
    for ks in range(2):
        for h in range(4):
            r = 16 + 16*ks + 4*h
            a(f"ds_read_b128 v[{r}:{r+3}], v8 offset:{AGG + 256*ks + 16*h}")
    a("s_waitcnt lgkmcnt(8)")
    a("s_branch K2_FL")
    a.label("K2_NOAGG")
    a("s_waitcnt lgkmcnt(0)")
    a.label("K2_FL")
    a("v_readfirstlane_b32 s76, v12")
    a("v_readfirstlane_b32 s77, v13")
    a(f"s_cmp_lg_u32 s{sOVF}, 0")
    a("s_cbranch_scc1 K2_RETRY")
    a(f"s_add_u32 s3, s{sCHUNK}, 32")
    a("s_cmp_gt_u32 s76, s3")
    a("s_cbranch_scc1 K2_NEXTCHUNK")
    a(f"s_andn2_b32 s77, s77, s{sMODE}")
    a("s_cbranch_scc1 K2_GOSLOW")
    a(f"s_cmp_ge_u32 s{sW}, 4")
    a("s_cbranch_scc1 K2_FIN")
    a("s_mov_b32 s78, 0xbfb8aa3b")
    a("s_mov_b32 s79, 0xbfb8aa3b")
    for r in range(16):
        if r % 2 == 0: a(f"s_waitcnt lgkmcnt({7 - r//2})")
        a(f"v_cvt_f32_f64 v{96+r}, v[{16+2*r}:{17+2*r}]")
        if r % 2 == 1: a(f"v_cvt_pk_bf16_f32 v{112+r//2}, v{95+r}, v{96+r}")
        if r == 8:
            for ft in range(4):
                a(f"v_mfma_f32_16x16x32_bf16 v[{80+4*ft}:{83+4*ft}], v[{48+8*ft}:{51+8*ft}], v[112:115], v[{80+4*ft}:{83+4*ft}]")
    a(f"v_cmp_gt_u32 vcc, {NPB}, v9")
    a("v_mov_b32 v12, s78")
    a("v_mov_b32 v13, s78")
    for ft in range(4):
        a(f"v_mfma_f32_16x16x32_bf16 v[{80+4*ft}:{83+4*ft}], v[{52+8*ft}:{55+8*ft}], v[116:119], v[{80+4*ft}:{83+4*ft}]")
    a("s_nop 4")
    for r in range(16):
        a(f"v_exp_f32 v{16+r}, v{80+r}")
    for q in range(8):
        a(f"v_pk_fma_f32 {P(16+2*q)}, {P(16+2*q)}, s[78:79], v[12:13]")
    for r in range(16):
        a(f"v_rcp_f32 v{16+r}, v{16+r}")
    for q in range(8):
        a(f"v_pk_mul_f32 {P(16+2*q)}, {P(16+2*q)}, {P(80+2*q)}")
    for q in range(8):
        a(f"v_cvt_pk_bf16_f32 v{32+q}, v{16+2*q}, v{17+2*q}")
    a("s_mov_b64 exec, vcc")
    a(f"buffer_store_dwordx4 v[32:35], v6, s[{S_OUT}:{S_OUT+3}], 0 offen")
    a(f"buffer_store_dwordx4 v[36:39], v6, s[{S_OUT}:{S_OUT+3}], 0 offen offset:16")
    a.label("K2_FIN")
    stamp_flush(a, 1, 14, 15, sW, sT)
    a.label("K2_END")
    a("s_endpgm")
    dynloop(a, "S", True)
    a.label("K2_CAREFUL")
    for j in range(8):
        a(f"s_mov_b64 exec, s[{sVAL+2*j}:{sVAL+2*j+1}]")
        a(f"v_mul_u32_u24 v{48+j}, 0x5556, v{48+j}")
        a(f"v_lshrrev_b32 v{48+j}, 18, v{48+j}")
        a(f"v_mul_u32_u24 v{48+j}, {CAPN}, v{48+j}")
        a(f"v_add_u32 v{48+j}, {RECS//4 + CAPN}, v{48+j}")
        a(f"v_add_u32 v{56+j}, v{56+j}, v{80+j}")
        a(f"v_cmpx_lt_u32 vcc, v{56+j}, v{48+j}")
        a(f"v_lshlrev_b32 v{56+j}, 2, v{56+j}")
        a(f"s_andn2_b64 s[{sVAL+2*j}:{sVAL+2*j+1}], s[{sVAL+2*j}:{sVAL+2*j+1}], vcc")
        a(f"ds_write_b32 v{56+j}, v{32+j}")
    a("s_branch K2_PL4")
    a.label("K2_GOSLOW")
    a(f"s_mov_b32 s{sMODE}, 1")
    a(f"s_mov_b32 s{sCHUNK}, 0")
    a(f"s_mov_b32 s{sK}, 0")
    a(f"s_mov_b32 s{sM}, 0")
    a("s_waitcnt lgkmcnt(0)")
    a("s_barrier")
    for r in range(4): a(f"v_mov_b32 v{16+r}, 0")
    a("v_lshlrev_b32 v10, 4, v0")
    a(f"ds_write_b128 v10, v[16:19] offset:{AGG}")
    a(f"v_cmp_gt_u32 vcc, {(50*RS - 16384)//16}, v0")
    a("s_mov_b64 exec, vcc")
    a(f"ds_write_b128 v10, v[16:19] offset:{AGG+16384}")
    a("s_mov_b64 exec, -1")
    rec_prep(False)
    rec_masks()
    rec_masks2()
    a("s_branch K2_RETRY")
    a.label("K2_NEXTCHUNK")
    a(f"s_add_u32 s{sCHUNK}, s{sCHUNK}, 32")
    rec_prep(False)
    rec_masks()
    rec_masks2()
    a.label("K2_RETRY")
    a("s_waitcnt lgkmcnt(0)")
    prefill(a, "K2_PF2", False)
    rec_prep(False)
    rec_loads(False)
    const_read(a)
    a("v_mov_b32 v2, 600")
    a("v_cmp_lt_u32 s[78:79], v7, v2")
    a(f"v_add_u32 v2, {BP}, v6")
    a("ds_read2_b32 v[20:21], v2 offset0:0 offset1:2")
    a("ds_read2_b32 v[22:23], v2 offset0:4 offset1:6")
    first_addr(a)
    a("v_bfrev_b32 v17, 1")
    a("s_waitcnt lgkmcnt(0)")
    for r in range(4):
        a(f"v_lshlrev_b32 v{24+r}, 16, v{20+r}")
        a(f"v_and_b32 v{20+r}, 0xffff0000, v{20+r}")
        a(f"v_add_f32 v{24+r}, v{24+r}, v{20+r}")
    a("s_waitcnt vmcnt(0)")
    a("s_barrier")
    a("s_branch K2_PASS")

HEAD = open("standalone__mpnn_edge_mlp__graph.s.ref").read().split("; Override launch")[0]

def main(out):
    a = Asm()
    a.lines.append(HEAD.rstrip())
    a.lines.append(f"; @launch kernel=k1_kernel grid=({NP+1},1,1) block=(896,1,1) lds=90112")
    a.lines.append(f"; @launch kernel=k2_kernel grid=({NB},1,1) block=(1024,1,1) lds={K2_LDS}")
    a('.amdgcn_target "amdgcn-amd-amdhsa--gfx950"')
    a(".text")
    for k, g in (("k1_kernel", gen_k1), ("k2_kernel", gen_k2)):
        a(f".globl {k}")
        a(".p2align 8")
        a(f".type {k},@function")
        g(a)
    a('.section .rodata,"a"')
    a(".p2align 6")
    a.lines.append(desc("k1_kernel", 112, 102).rstrip())
    a(".p2align 6")
    a.lines.append(desc("k2_kernel", 128, 102).rstrip())
    open(out, "w").write(a.text())

if __name__ == "__main__":
    main(sys.argv[1] if len(sys.argv) > 1 else "standalone__mpnn_edge_mlp__graph.s")
```

```python
import sys, os
sys.path.insert(0, os.path.dirname(__file__))
from asmlib import *

CURK = [1]
STK2 = [88, 90, 92, 94, 96, 98, 0, 80, 36, 38]
STAMP = int(os.environ.get("STAMP", "0"))
OPT = dict(kv.split("=") for kv in os.environ.get("OPT", "").split(",") if kv)
def opt(k, d): return int(OPT.get(k, d))

N = 12500; E = 800000
NP = 250; CH = 3200
NPB = 49; NB = 256
TROWS = 50
WS_TAB = 0; WS_OFF = 0x200000; WS_REC = 0x400000
WS_STAMP = 0x1000000
NLOG2E = 0xbfb8aa3b
NLN2 = 0xbf317218

LOOPST = int(os.environ.get("LOOPST", "0"))
SEEN = set()
def stamp(a, idx, loop=False):
    if not STAMP: return
    if opt("stb0", 0) and CURK[0] == 2:
        if idx in SEEN: return
        SEEN.add(idx)
    if LOOPST and CURK[0] == 2 and not loop and idx not in (0, 8, 9): return
    assert idx < 10
    if CURK[0] == 2:
        a("s_memtime s[88:89]")
        a("s_waitcnt lgkmcnt(0)") if False else None
        a(f"s_memtime s[{STK2[idx]}:{STK2[idx]+1}]") if False else None
        a.lines.pop() if False else None
        a.lines.pop()
        a(f"s_memtime s[{STK2[idx]}:{STK2[idx]+1}]")
        return
    a(f"s_memtime s[{80+2*idx}:{81+2*idx}]")
def stamp_start(a):
    if not STAMP: return
    a("s_memrealtime s[100:101]")
    for i in range(10): a(f"s_mov_b32 s{80+2*i}, 0") if False else None
def stamp_flush(a, kern, wsl, wsh, wave, extra=None):
    if not STAMP: return
    a("s_waitcnt vmcnt(0)")
    stamp(a, 9)
    a(f"s_memrealtime s[76:77]")
    if STAMP == 2:
        lab = f"DBG_{kern}_{len(a.lines)}"
        a("s_load_dwordx2 s[72:73], s[0:1], 56")
        a(f"s_waitcnt lgkmcnt(0)")
        a(f"s_mov_b64 exec, 1")
        if kern == 0:
            a("s_add_u32 s72, s72, 512")
            a("s_addc_u32 s73, s73, 0")
        a("v_mov_b32 v2, 0")
        a("s_cmp_lg_u32 s2, 5")
        a(f"s_cbranch_scc1 {lab}")
        a(f"s_cmp_lg_u32 s{wave}, 0")
        a(f"s_cbranch_scc1 {lab}")
        a("v_mov_b32 v3, s100")
        a(f"global_store_dword v2, v3, s[72:73] offset:{32*kern}")
        a("v_mov_b32 v3, s76")
        a(f"global_store_dword v2, v3, s[72:73] offset:{32*kern+4}")
        idx = (3, 4, 5, 6, 7, 9) if kern == 0 else (2, 4, 6, 7, 8, 9)
        for i, k in enumerate(idx):
            a(f"s_sub_u32 s3, s{80+2*k}, s80")
            a("v_mov_b32 v3, s3")
            a(f"global_store_dword v2, v3, s[72:73] offset:{32*kern+8+4*i}")
        a.label(lab)
        a("s_waitcnt vmcnt(0)")
        return
    a(f"s_lshl_b32 s78, s2, 4")
    a(f"s_add_u32 s78, s78, s{wave}")
    a(f"s_lshl_b32 s78, s78, 6")
    a(f"s_add_u32 s78, s78, {WS_STAMP + kern*0x100000}")
    a(f"s_waitcnt lgkmcnt(0)")
    a(f"s_mov_b64 exec, 1")
    a(f"v_mov_b32 v2, s78")
    srcs = ([80+2*i for i in range(10)] if kern == 0 else STK2) + [100, extra if extra is not None else 100, 100, 100, 100, 76]
    for i in range(16):
        a(f"v_mov_b32 v3, s{srcs[i]}")
        a(f"global_store_dword v2, v3, s[{wsl}:{wsh}] offset:{4*i}")
    a("s_waitcnt vmcnt(0)")
def prio(a, p):
    if opt("prio", 1): a(f"s_setprio {p}")

KS = opt("K", 7); MD = opt("M", 6)
PV = opt("pv", 0)
SP0, SPRIO, DPRIO = [(3, {2:2, 4:1, 6:0}, ((3,2),(4,1),(5,0))), (2, {3:1, 5:0}, ((1,2),(3,1),(5,0))), (2, {2:1, 5:0}, ((2,2),(3,1),(5,0))), (2, {3:1, 6:0}, ((2,2),(4,1),(6,0)))][PV]
SPL = opt("spl", 4200)
W1L_ = (SPL + 31)//32; W2L_ = (N - SPL + 31)//32
RS = 528; CAPN = 112; BLK = CAPN*4
RSTR = 16896
CNT = 16; FLG = 624; QC = 0; AGG = 640; BP = AGG + 50*RS; RECS = BP + 50*RS; GT = RECS + 50*BLK
CONSTL = GT + 5632; STG = (CONSTL + 7680 + 127)//128*128
K2_LDS = STG + 65536
PST = STG
assert K2_LDS <= 163840
D0 = 16; D1 = 32; X = 48; A = 64; AEXT = 80; BX0 = 84; BX1 = 88; I0 = 92; I1 = 96
RA = 100; RP = 104; VA = 112; VE = 113; VG = 114; L8 = 115; CA = 116; CE = 117
FA0 = 118; FA1 = 120; GNR = 122; GBA = 124; GBE = 125; PM = 126; OFFW = 127
NN = 2; PA = 4; PB = 6; RR = 8; OUT = 10; CADR = 14; PM2 = 15
N0 = 2; P0 = 4; N1 = 8; P1 = 10; PT = 6; SA = 12; SE = 13
S_X = 16; S_OUT = 28; S_TAB = 32; S_OFF = 36; S_REC = 40; S_CON = 8; S_TABR = 20
sB = 44; sNODE0 = 45; sW = 46; sSLOT = 47; sREM = 48; sIT = 49; sCHUNK = 50; sMODE = 51; sOVF = 52; sNT = 53; sFT = 54
sMODE2 = 55; sTN = 56; sTMP = 57; sONE = 58
sVAL = 60
sCAPN = 6; sRECS = 7; sK = 24; sM = 25; sT = 26; sDYN = 27; sSC = 12; sWB = 54

WS_CONST = 0x280000; WS_FRAG = WS_CONST + 8192
def gen_k1(a):
    HIST = 0; OFFS = 1024; RECS1 = 3072; W1L = RECS1 + RSTR; XL = W1L + 8192
    assert XL % 128 == 0
    st = ["", " sc1", " nt", " sc0 sc1", " sc1 nt"][opt("k1sc", 0)]
    stt = ["", " sc1", " nt", " sc0 sc1", " sc1 nt"][opt("tabsc", 0)]
    nt = " nt" if opt("k1nt", 1) else ""
    a.label("k1_kernel")
    a(f"s_cmp_ge_u32 s2, {NP}")
    a("s_cbranch_scc1 K1_EXTRA")
    a("s_load_dwordx8 s[4:11], s[0:1], 0")
    a("s_load_dwordx2 s[12:13], s[0:1], 32")
    a("s_load_dwordx2 s[14:15], s[0:1], 64")
    stamp_start(a)
    stamp(a, 0)
    a("v_lshrrev_b32 v2, 6, v0")
    a("v_and_b32 v1, 63, v0")
    a("v_readfirstlane_b32 s16, v2")
    a("v_subrev_u32 v40, 64, v0")
    a(f"v_cmp_gt_u32 vcc, {CH//4}, v40")
    a(f"s_mul_i32 s17, s2, {CH*4}")
    a("v_lshlrev_b32 v3, 4, v40")
    a("v_add_u32 v2, s17, v3")
    a("s_cmp_eq_u32 s16, 0")
    a("s_cbranch_scc1 K1_TABLE")
    a("s_mov_b64 exec, vcc")
    a("v_lshrrev_b32 v34, 1, v2")
    a("v_mov_b32 v35, 1")
    a(f"s_movk_i32 s3, {-NPB*3}")
    a("s_waitcnt lgkmcnt(0)")
    stamp(a, 1)
    a("global_load_dwordx4 v[4:7], v2, s[10:11]" + nt)
    a("global_load_dwordx4 v[8:11], v2, s[8:9]" + nt)
    a("global_load_dwordx2 v[12:13], v34, s[6:7]" + nt)
    a(f"s_mul_i32 s18, s2, {RSTR}")
    a(f"s_add_u32 s18, s18, {WS_REC}")
    a("v_add_u32 v41, s18, v3")
    a(f"v_add_u32 v42, {CH*4}, v41")
    a("v_cmp_gt_u32 s[20:21], 0xf8, v40") if False else None
    a("v_mov_b32 v43, 248")
    a("v_cmp_lt_u32 s[20:21], v40, v43")
    stamp(a, 2)
    a("s_barrier")
    stamp(a, 3)
    a("s_waitcnt vmcnt(2)")
    stamp(a, 4)
    for j in range(4):
        a(f"v_mul_u32_u24 v{14+j}, 5350, v{4+j}")
        a(f"v_lshrrev_b32 v{14+j}, 18, v{14+j}")
        a(f"v_lshlrev_b32 v{18+j}, 2, v{14+j}")
        a(f"ds_add_rtn_u32 v{22+j}, v{18+j}, v35 offset:{HIST}")
    a("s_waitcnt lgkmcnt(0)")
    a("s_barrier")
    stamp(a, 5)
    for j in range(4):
        a(f"v_mad_u32_u24 v{4+j}, v{4+j}, 3, 1")
        a(f"v_mad_i32_i24 v{26+j}, v{14+j}, s3, v{4+j}")
        a(f"v_lshlrev_b32 v{18+j}, 1, v{18+j}")
    a("s_barrier")
    stamp(a, 6)
    for j in range(4):
        a(f"ds_read_b64 v[{44+2*j}:{45+2*j}], v{18+j} offset:{OFFS}")
    a("s_mov_b32 s3, 0xffff0000")
    a("s_waitcnt vmcnt(1)")
    if opt("cls", 1):
        for j in range(4):
            a(f"v_add_u32 v{4+j}, {16384 - SPL}, v{8+j}")
            a(f"v_lshrrev_b32 v{4+j}, 14, v{4+j}")
            a(f"v_add_u32 v{26+j}, v{26+j}, v{4+j}")
    for j in range(4):
        a(f"s_waitcnt lgkmcnt({3})")
        a(f"v_add_u32 v{45+2*j}, v{45+2*j}, v{22+j}")
        a(f"ds_write_b8 v{45+2*j}, v{26+j} offset:{RECS1}")
    a("s_waitcnt vmcnt(0)")
    a("v_lshl_or_b32 v8, v12, 16, v8")
    a("v_and_or_b32 v9, v12, s3, v9")
    a("v_lshl_or_b32 v10, v13, 16, v10")
    a("v_and_or_b32 v11, v13, s3, v11")
    for j in range(4):
        a(f"v_lshl_add_u32 v{44+2*j}, v{22+j}, 2, v{44+2*j}")
        a(f"ds_write_b32 v{44+2*j}, v{8+j} offset:{RECS1}")
    a("s_waitcnt lgkmcnt(0)")
    a("s_barrier")
    stamp(a, 7)
    a(f"ds_read_b128 v[4:7], v3 offset:{RECS1}")
    a("s_cmp_gt_u32 s16, 4")
    a("s_cbranch_scc1 K1_ONE")
    a(f"ds_read_b128 v[8:11], v3 offset:{RECS1 + CH*4}")
    a("s_waitcnt lgkmcnt(1)")
    a("global_store_dwordx4 v41, v[4:7], s[14:15]" + st)
    a("s_mov_b64 exec, s[20:21]")
    a("s_waitcnt lgkmcnt(0)")
    a("global_store_dwordx4 v42, v[8:11], s[14:15]" + st)
    a("s_branch K1_FIN")
    a.label("K1_ONE")
    a("s_waitcnt lgkmcnt(0)")
    a("global_store_dwordx4 v41, v[4:7], s[14:15]" + st)
    a.label("K1_FIN")
    stamp(a, 8)
    stamp_flush(a, 0, 14, 15, 16)
    a("s_endpgm")
    a.label("K1_TABLE")
    a("v_lshlrev_b32 v4, 4, v1")
    for r in range(4): a(f"v_mov_b32 v{36+r}, 0")
    a(f"ds_write_b128 v4, v[36:39] offset:{HIST}")
    a("v_lshrrev_b32 v5, 3, v1")
    a("v_and_b32 v6, 7, v1")
    a("v_xor_b32 v6, v6, v5")
    a("v_lshlrev_b32 v6, 4, v6")
    a("v_lshl_add_u32 v6, v5, 7, v6")
    a(f"s_mul_i32 s23, s2, {TROWS*128}")
    a("v_add_u32 v6, s23, v6")
    a("v_add_u32 v14, 4096, v6")
    a(f"s_mov_b32 m0, {XL}")
    a("s_waitcnt lgkmcnt(0)")
    stamp(a, 1)
    a("s_barrier")
    stamp(a, 3)
    srd(a, 24, 4, 5, N*128)
    xp = " nt" if opt("k1xnt", 0) else ""
    for i in range(4):
        a(f"buffer_load_dwordx4 v6, s[24:27], 0 offen offset:{1024*i}" + xp + " lds")
    a(f"s_mov_b32 m0, {XL + 4096}")
    srd(a, 28, 12, 13, 129*128)
    for i in range(3):
        a(f"buffer_load_dwordx4 v14, s[24:27], 0 offen offset:{1024*i}" + xp + " lds")
    a(f"s_mov_b32 m0, {W1L}")
    a("s_movk_i32 s3, 0x1000")
    for i in range(4):
        a(f"buffer_load_dwordx4 v4, s[28:31], 0 offen offset:{1024*i} lds")
    a(f"s_mov_b32 m0, {W1L + 4096}")
    a("s_nop 0")
    for i in range(4):
        a(f"buffer_load_dwordx4 v4, s[28:31], s3 offen offset:{1024*i} lds")
    stamp(a, 2)
    srd(a, 32, 14, 15, N*128)
    a("v_lshrrev_b32 v7, 4, v1")
    a("v_bfe_u32 v8, v1, 2, 2")
    a("v_and_b32 v9, 3, v1")
    a("v_lshl_add_u32 v8, v7, 3, v8")
    a("v_lshlrev_b32 v8, 7, v8")
    a("v_lshl_add_u32 v8, v9, 5, v8")
    a("v_and_b32 v10, 15, v1")
    a("v_and_b32 v11, 7, v1")
    a("v_xor_b32 v11, v11, v7")
    a("v_lshlrev_b32 v11, 4, v11")
    a("v_lshl_add_u32 v11, v10, 7, v11")
    a("v_xor_b32 v12, 64, v11")
    a("v_lshlrev_b32 v13, 7, v10")
    a("v_lshl_add_u32 v13, v7, 5, v13")
    a("v_add_u32 v13, s23, v13")
    a("v_add_u32 v15, 4096, v13")
    a(f"s_mov_b32 s40, {NLOG2E:#x}")
    a(f"s_mov_b32 s41, {NLOG2E:#x}")
    a("v_cmp_gt_u32 s[42:43], 2, v10")
    a("s_lshl_b32 s3, s2, 10")
    a(f"s_add_u32 s3, s3, {WS_OFF}")
    a("v_add_u32 v3, s3, v4")
    a("s_setprio 3")
    a("s_barrier")
    stamp(a, 5)
    a(f"ds_read_b128 v[56:59], v4 offset:{HIST}")
    a("s_waitcnt lgkmcnt(0)")
    for j in range(4):
        a(f"v_add_u32 v{60+j}, 3, v{56+j}")
        a(f"v_lshrrev_b32 v{60+j}, 2, v{60+j}")
        a(f"v_add_u32 v{60+j}, v{60+j}, v{56+j}")
    a("v_add_u32 v66, v60, v61")
    a("v_add_u32 v67, v66, v62")
    a("v_add_u32 v68, v67, v63")
    a("v_mov_b32 v69, v68")
    a("s_nop 1")
    scan64(a, 69)
    a("v_sub_u32 v72, v69, v68")
    a("v_add_u32 v73, v72, v60")
    a("v_add_u32 v74, v72, v66")
    a("v_add_u32 v75, v72, v67")
    for j in range(4):
        a(f"v_lshlrev_b32 v{60+2*j}, 2, v{72+j}")
        a(f"v_add_lshl_u32 v{61+2*j}, v{72+j}, v{56+j}, 2")
    a("v_lshlrev_b32 v5, 5, v1")
    a(f"ds_write_b128 v5, v[60:63] offset:{OFFS}")
    a(f"ds_write_b128 v5, v[64:67] offset:{OFFS+16}")
    a("s_waitcnt lgkmcnt(0)")
    a("s_barrier")
    stamp(a, 6)
    for j in range(4):
        a(f"v_lshl_or_b32 v{76+j}, v{56+j}, 16, v{72+j}")
    a("s_waitcnt vmcnt(0)")
    stamp(a, 4)
    a("global_store_dwordx4 v3, v[76:79], s[14:15]" + st)
    for nti in range(4):
        a(f"ds_read_b128 v[{80+8*nti}:{83+8*nti}], v11 offset:{XL + 2048*nti}")
        a(f"ds_read_b128 v[{84+8*nti}:{87+8*nti}], v12 offset:{XL + 2048*nti}")
    for ft in range(4):
        for ks in range(2):
            for h in range(2):
                r = 16 + 8*ft + 4*ks + 2*h
                a(f"ds_read_b64_tr_b16 v[{r}:{r+1}], v8 offset:{W1L + (32*ks+4*h)*128 + 8*ft}")
    a("s_waitcnt lgkmcnt(0)")
    def mm(nti):
        D = 48 + 16*(nti & 1); xa = 80 + 8*nti
        for ft in range(4):
            a(f"v_mfma_f32_16x16x32_bf16 v[{D+4*ft}:{D+3+4*ft}], v[{16+8*ft}:{19+8*ft}], v[{xa}:{xa+3}], 0")
        for ft in range(4):
            a(f"v_mfma_f32_16x16x32_bf16 v[{D+4*ft}:{D+3+4*ft}], v[{20+8*ft}:{23+8*ft}], v[{xa+4}:{xa+7}], v[{D+4*ft}:{D+3+4*ft}]")
    def fin(nti):
        D = 48 + 16*(nti & 1); o = 80 + 8*nti
        for q in range(8):
            a(f"v_pk_mul_f32 v[{D+2*q}:{D+1+2*q}], v[{D+2*q}:{D+1+2*q}], s[40:41]")
        for q in range(8):
            a(f"v_cvt_pk_bf16_f32 v{o+q}, v{D+2*q}, v{D+1+2*q}")
        if nti == 3: a("s_mov_b64 exec, s[42:43]")
        ar = 13 if nti < 2 else 15
        a(f"buffer_store_dwordx4 v[{o}:{o+3}], v{ar}, s[32:35], 0 offen offset:{2048*(nti&1)}" + stt)
        a(f"buffer_store_dwordx4 v[{o+4}:{o+7}], v{ar}, s[32:35], 0 offen offset:{2048*(nti&1)+16}" + stt)
        if nti == 3: a("s_mov_b64 exec, -1")
    TB = opt("tb", 2)
    def b3(k):
        if TB == k:
            a("s_barrier")
            stamp(a, 7)
    b3(0); mm(0); mm(1); fin(0); mm(2); b3(1); fin(1); mm(3); b3(2); fin(2); a("s_nop 7"); b3(3); fin(3); b3(4)
    stamp(a, 8)
    stamp_flush(a, 0, 14, 15, 16)
    a("s_endpgm")
    a.label("K1_EXTRA")
    a(f"s_cmp_lg_u32 s2, {NP}")
    a("s_cbranch_scc1 K1_END")
    a("s_load_dwordx4 s[8:11], s[0:1], 32")
    a("s_load_dwordx2 s[14:15], s[0:1], 64")
    a("v_lshrrev_b32 v2, 6, v0")
    a("v_and_b32 v1, 63, v0")
    a("v_readfirstlane_b32 s16, v2")
    a("s_waitcnt lgkmcnt(0)")
    srd(a, 20, 8, 9, 129*128)
    srd(a, 24, 10, 11, 128*128)
    a("s_cmp_eq_u32 s16, 0")
    a("s_cbranch_scc1 K1_CONST")
    a("s_cmp_gt_u32 s16, 12")
    a("s_cbranch_scc1 K1_END")
    a("s_sub_u32 s17, s16, 1")
    a("s_lshr_b32 s18, s17, 2")
    a("s_and_b32 s19, s17, 3")
    a("v_and_b32 v3, 15, v1")
    a("v_lshrrev_b32 v4, 4, v1")
    a("v_lshlrev_b32 v4, 10, v4")
    a("s_lshl_b32 s3, s19, 4")
    a("v_add_u32 v5, s3, v3")
    a("v_lshrrev_b32 v6, 2, v3")
    a("v_and_b32 v7, 3, v3")
    a("v_lshl_add_u32 v6, v6, 4, v7")
    a("s_lshl_b32 s3, s19, 2")
    a("v_add_u32 v6, s3, v6")
    a("s_cmp_ge_u32 s18, 1")
    a("s_cselect_b64 s[30:31], -1, 0")
    a("v_cndmask_b32 v5, v5, v6, s[30:31]")
    a("v_lshl_add_u32 v4, v5, 1, v4")
    a("s_cmp_eq_u32 s18, 0")
    a("s_cselect_b32 s28, s8, s10")
    a("s_cselect_b32 s29, s9, s11")
    a("s_movk_i32 s30, 0x4000")
    a("s_mov_b32 s31, 0x00020000")
    a("s_cmp_eq_u32 s18, 1")
    a("s_cselect_b32 s3, 0, 0x2000")
    a("s_add_u32 s4, s3, 0x1000")
    for ks in range(2):
        for j in range(8):
            a(f"buffer_load_ushort v{16+8*ks+j}, v4, s[28:31], s{3+ks} offen offset:{128*j}")
    srd(a, 32, 14, 15, 3*8192, WS_FRAG)
    a("s_lshl_b32 s3, s17, 11")
    a("v_lshlrev_b32 v2, 4, v1")
    a("s_waitcnt vmcnt(0)")
    for q in range(8):
        a(f"v_lshl_or_b32 v{8+q}, v{17+2*q}, 16, v{16+2*q}")
    a("buffer_store_dwordx4 v[8:11], v2, s[32:35], s3 offen")
    a("buffer_store_dwordx4 v[12:15], v2, s[32:35], s3 offen offset:1024")
    a("s_endpgm")
    a.label("K1_CONST")
    a("v_and_b32 v8, 31, v1")
    a("v_lshlrev_b32 v9, 1, v8")
    a("s_movk_i32 s3, 0x4000")
    a("buffer_load_ushort v24, v9, s[20:23], s3 offen")
    a("buffer_load_ushort v25, v9, s[20:23], s3 offen offset:64")
    a("v_lshrrev_b32 v11, 5, v1")
    a("v_lshlrev_b32 v47, 3, v8")
    a("v_lshlrev_b32 v12, 3, v11")
    a("v_sub_u32 v12, v8, v12")
    a("v_and_b32 v13, 1, v12")
    a("v_lshlrev_b32 v13, 4, v13")
    a("v_mov_b32 v14, 0x3f80")
    a("v_lshlrev_b32 v13, v13, v14")
    a("v_ashrrev_i32 v12, 1, v12")
    for i in range(4):
        a(f"v_cmp_eq_u32 s[{60+4*i}:{61+4*i}], {i}, v12")
        a(f"v_cmp_eq_u32 s[{62+4*i}:{63+4*i}], {8+i}, v12")
    for i in range(4):
        a(f"v_cndmask_b32 v{32+i}, 0, v13, s[{60+4*i}:{61+4*i}]")
        a(f"v_cndmask_b32 v{36+i}, 0, v13, s[{62+4*i}:{63+4*i}]")
    a("v_bfe_u32 v12, v8, 2, 1")
    a("v_and_b32 v13, 1, v8")
    a("v_lshl_or_b32 v14, v12, 1, v13")
    a("v_lshlrev_b32 v15, 1, v11")
    a("v_sub_u32 v15, v14, v15")
    a("v_cmp_eq_u32 s[60:61], 0, v15")
    a("v_cmp_eq_u32 s[62:63], 1, v15")
    a("v_mov_b32 v26, 0x3f803f80")
    a("s_nop 0")
    a("v_cndmask_b32 v56, 0, v26, s[60:61]")
    a("v_cndmask_b32 v57, 0, v26, s[62:63]")
    a("v_bfe_u32 v15, v8, 1, 1")
    a("v_lshrrev_b32 v26, 3, v8")
    a("v_lshl_or_b32 v27, v26, 1, v15")
    a("v_lshl_or_b32 v49, v27, 2, 2")
    a("v_lshl_or_b32 v27, v14, 3, v27")
    a("v_and_b32 v28, 3, v27")
    a("v_lshrrev_b32 v27, 2, v27")
    a("v_lshl_or_b32 v27, v28, 3, v27")
    a("v_and_b32 v28, 7, v8")
    a("v_xor_b32 v28, v28, v11")
    a("v_lshlrev_b32 v28, 4, v28")
    a("v_lshl_add_u32 v40, v27, 7, v28")
    for k in range(1, 4):
        a(f"v_xor_b32 v{40+k}, {32*k}, v40")
    a("v_lshlrev_b32 v48, 1, v1")
    a("v_and_b32 v48, 16, v48")
    a("v_lshrrev_b32 v7, 4, v1")
    a(f"s_mov_b32 s3, {GT}")
    a("v_lshl_add_u32 v44, v7, 3, s3")
    a("v_lshl_add_u32 v45, v14, 3, s3")
    a(f"s_mov_b32 s3, {GT + 4}")
    a("v_lshl_add_u32 v46, v11, 4, s3")
    a("v_and_b32 v5, 15, v1")
    a("v_and_b32 v2, 7, v1")
    a("v_xor_b32 v2, v2, v7")
    a("v_lshlrev_b32 v2, 4, v2")
    a("v_lshl_add_u32 v2, v5, 7, v2")
    a(f"v_add_u32 v52, {PST + 16384}, v2")
    a("v_lshlrev_b32 v3, 4, v1")
    a(f"v_add_u32 v53, {PST}, v3")
    a(f"v_mul_u32_u24 v54, {RS}, v5")
    a("v_lshl_add_u32 v54, v7, 5, v54")
    a("v_mul_u32_u24 v55, 12, v5")
    a(f"v_mul_u32_u24 v62, {BLK}, v14")
    a(f"s_mov_b32 s3, {RECS}")
    a("v_add3_u32 v62, v62, v49, s3")
    a(f"v_mul_u32_u24 v63, {2*RS}, v11")
    a("v_add_u32 v63, v63, v47")
    a(f"s_mov_b32 s3, {NLOG2E:#x}")
    a("v_cmp_gt_u32 s[60:61], 32, v1")
    a("v_mov_b32 v59, 0")
    a("v_mov_b32 v61, 0")
    a("s_waitcnt vmcnt(0)")
    for j in range(2):
        a(f"v_lshlrev_b32 v{24+j}, 16, v{24+j}")
        a(f"v_mul_f32 v{24+j}, s3, v{24+j}")
        a(f"v_cvt_pk_bf16_f32 v26, v{24+j}, v{24+j}")
        a("v_and_b32 v27, 0xffff0000, v26")
        a(f"v_sub_f32 v27, v{24+j}, v27")
        a("v_cvt_pk_bf16_f32 v27, v27, v27")
        a(f"v_cndmask_b32 v26, v27, v26, s[60:61]")
        a(f"v_and_b32 v{58+2*j}, 0xffff, v26")
    srd(a, 28, 14, 15, 8192, WS_CONST)
    a("v_lshlrev_b32 v2, 4, v1")
    a("v_lshlrev_b32 v3, 3, v1")
    a("s_movk_i32 s3, 0x1000")
    for i in range(4):
        a(f"buffer_store_dwordx4 v[{32+4*i}:{35+4*i}], v2, s[28:31], 0 offen offset:{1024*i}")
    a("buffer_store_dwordx4 v[52:55], v2, s[28:31], s3 offen")
    for i in range(4):
        a(f"buffer_store_dwordx2 v[{56+2*i}:{57+2*i}], v3, s[28:31], s3 offen offset:{1024+512*i}")
    a("buffer_store_dwordx2 v[48:49], v3, s[28:31], s3 offen offset:3072")
    a.label("K1_END")
    a("s_endpgm")

def P(r): return f"v[{r}:{r+1}]"

def mfma3(Dn, j):
    bx = BX0 if j == 0 else BX1
    return [f"v_mfma_f32_32x32x16_bf16 {v(Dn,16)}, {v(AEXT,4)}, {v(bx,4)}, 0",
            f"v_mfma_f32_32x32x16_bf16 {v(Dn,16)}, {v(A+8*j,4)}, {v(I0,4)}, {v(Dn,16)}",
            f"v_mfma_f32_32x32x16_bf16 {v(Dn,16)}, {v(A+8*j+4,4)}, {v(I1,4)}, {v(Dn,16)}"]

def xphase(a, Dc, mf):
    ex = [f"v_exp_f32 v{X+r}, v{Dc+r}" for r in range(16)]
    seq = [mf[0]] + ex[0:4] + [mf[1]] + ex[4:8] + [mf[2]] + ex[8:16] if mf else ex
    for l in seq: a(l)

def fphase(a, Dc, off, slow, fa, mids=()):
    mids = dict(mids)
    if not slow:
        a(f"v_pk_add_f32 {P(PA)}, {P(X)}, s[{sONE}:{sONE+1}]")
        cur, nxt = PA, PB
        for q in range(1, 8):
            src = Dc if q == 1 else NN
            a(f"v_pk_fma_f32 {P(NN)}, {P(src)}, {P(X+2*q)}, {P(src)}")
            a(f"v_pk_fma_f32 {P(nxt)}, {P(cur)}, {P(X+2*q)}, {P(cur)}")
            a(f"v_pk_fma_f32 {P(NN)}, {P(Dc+2*q)}, {P(cur)}, {P(NN)}")
            cur, nxt = nxt, cur
            if q in mids: mids[q]()
        a(f"v_rcp_f32 v{RR}, v{cur}")
        a(f"v_rcp_f32 v{RR+1}, v{cur+1}")
        a(f"v_max3_f32 v{PM2}, v{cur}, v{cur+1}, v{PM2}")
        a(f"v_pk_mul_f32 {P(OUT)}, {P(NN)}, {P(RR)}")
    else:
        for q in range(8):
            a(f"v_pk_add_f32 {P(X+2*q)}, {P(X+2*q)}, s[{sONE}:{sONE+1}]")
        for q in sorted(mids): mids[q]()
        for r in range(16):
            a(f"v_rcp_f32 v{X+r}, v{X+r}")
        a("s_nop 0")
        a(f"v_pk_mul_f32 {P(OUT)}, {P(Dc)}, {P(X)}")
        for q in range(1, 8):
            a(f"v_pk_fma_f32 {P(OUT)}, {P(Dc+2*q)}, {P(X+2*q)}, {P(OUT)}")
    a(f"v_cvt_f64_f32 {P(OUT+2)}, v{OUT+1}")
    a(f"v_cvt_f64_f32 {P(OUT)}, v{OUT}")
    a(f"ds_add_f64 v{fa+1}, {P(OUT+2)} offset:{AGG+off}")
    a(f"ds_add_f64 v{fa}, {P(OUT)} offset:{AGG+off}")

def dma4(a):
    for i in range(4):
        a(f"s_add_u32 m0, s{sSLOT}, {i*1024}" if i else f"s_mov_b32 m0, s{sSLOT}")
        a("s_nop 0")
        a(f"buffer_load_dwordx4 {P(RP+2*i)}, s[{S_TAB}:{S_TAB+3}], 0 idxen offen lds")

def idxread(a):
    for i in range(4):
        a(f"ds_read_u16 v{RP+2*i}, v{GBA} offset:{4*i}")

def aread(a):
    for k in range(4):
        a(f"ds_read_b128 {v(A+4*k,4)}, v{RA+k}")

def bext(a, fa):
    a(f"ds_read_b32 v{BX0}, v{fa} offset:{BP}")
    a(f"ds_read_b32 v{BX0+1}, v{fa+1} offset:{BP}")
    a(f"ds_read_b32 v{BX1}, v{fa} offset:{BP+256}")
    a(f"ds_read_b32 v{BX1+1}, v{fa+1} offset:{BP+256}")

def dynloop(a, tag, slow):
    L = lambda x: f"K2_{tag}_{x}"
    for par in range(2):
        fa, fan = (FA0, FA1) if par == 0 else (FA1, FA0)
        o = 512*par
        a.label(L(f'LOOP{par}'))
        a(f"s_sub_u32 s{sREM}, s{sREM}, 1")
        a(f"s_cmp_eq_u32 s{sREM}, 0")
        a(f"s_cbranch_scc1 {L(f'TAIL{par}')}")
        if not slow and opt("lprio", 1):
            a(f"s_add_u32 s{sIT}, s{sIT}, 1")
            for it, p in DPRIO:
                a(f"s_cmp_lg_u32 s{sIT}, {it}")
                a(f"s_cbranch_scc1 {L(f'PR{par}{p}')}")
                a(f"s_setprio {p}")
                a.label(L(f'PR{par}{p}'))
        a(f"ds_read_b32 v{GBE}, v{VE} offset:{o+512}")
        a(f"ds_read2_b32 {P(GNR)}, v{VG} offset0:{o//4} offset1:{o//4+2}")
        a(f"s_cmp_lt_u32 s{sREM}, 2")
        a(f"s_cbranch_scc1 {L(f'NOI{par}')}")
        idxread(a)
        a(f"ds_read_b32 v{GBA}, v{VA} offset:{o+1536}")
        a.label(L(f'NOI{par}'))
        xphase(a, D0, mfma3(D1, 1))
        a("s_waitcnt vmcnt(0) lgkmcnt(0)")
        aread(a)
        a(f"v_add_u32 v{GBE}, v{GBE}, v{CE}")
        a(f"v_add_u32 v{fan}, v{GNR}, v{L8}")
        a(f"v_add_u32 v{fan+1}, v{GNR+1}, v{L8}")
        a(f"v_add_u32 v{GBA}, v{GBA}, v{CA}")
        a(f"ds_read_u16 v{AEXT+2}, v{GBE}")
        bext(a, fan)
        def mid():
            a(f"s_cmp_lt_u32 s{sREM}, 2")
            a(f"s_cbranch_scc1 {L(f'NOD{par}')}")
            a("s_waitcnt lgkmcnt(5)")
            dma4(a)
            a.label(L(f'NOD{par}'))
        fphase(a, D0, 0, slow, fa, [(opt("dmaq", 2), mid)])
        a("s_waitcnt lgkmcnt(2)")
        xphase(a, D1, mfma3(D0, 0))
        if par == 1:
            for r in (VA, VE, VG):
                a(f"v_add_u32 v{r}, 1024, v{r}")
        fphase(a, D1, 256, slow, fa)
        if par == 1:
            a(f"s_branch {L('LOOP0')}")
    for par in range(2):
        fa = FA0 if par == 0 else FA1
        a.label(L(f'TAIL{par}'))
        xphase(a, D0, mfma3(D1, 1))
        fphase(a, D0, 0, slow, fa)
        xphase(a, D1, None)
        fphase(a, D1, 256, slow, fa)
        a("s_branch K2_LOOPDONE")

def count_tiles(a):
    a(f"s_lshl_b32 s3, s{sM}, 2")
    a(f"s_add_u32 s3, s3, s{sW}")
    a(f"s_sub_i32 s{sREM}, s{sT}, s3")
    a(f"s_add_i32 s{sREM}, s{sREM}, 15")
    a(f"s_max_i32 s{sREM}, s{sREM}, 0")
    a(f"s_lshr_b32 s{sREM}, s{sREM}, 4")
    a(f"s_sub_i32 s3, s{sT}, s{sW}")
    a("s_add_i32 s3, s3, 15")
    a("s_max_i32 s3, s3, 0")
    a("s_lshr_b32 s3, s3, 2")
    a(f"s_min_u32 s3, s3, s{sM}")
    a(f"s_mul_i32 s3, s3, s{sDYN}")
    a(f"s_add_u32 s{sREM}, s{sREM}, s3")

def schain(a, Dc, Nr, Pr, first, mids=()):
    mids = dict(mids)
    if first:
        a(f"v_pk_add_f32 {P(PT)}, {P(X)}, s[{sONE}:{sONE+1}]")
        cur, nxt = PT, Pr
        q0 = 1
    else:
        cur, nxt = Pr, PT
        q0 = 0
    for q in range(q0, 8):
        src = Dc if (first and q == 1) else Nr
        a(f"v_pk_fma_f32 {P(Nr)}, {P(src)}, {P(X+2*q)}, {P(src)}")
        a(f"v_pk_fma_f32 {P(nxt)}, {P(cur)}, {P(X+2*q)}, {P(cur)}")
        a(f"v_pk_fma_f32 {P(Nr)}, {P(Dc+2*q)}, {P(cur)}, {P(Nr)}")
        cur, nxt = nxt, cur
        if q in mids: mids[q]()
    assert cur == Pr

def sidx(a, j):
    for i in range(4):
        a(f"ds_read_u16 v{RP+2*i}, v{SA} offset:{32*j + 4*i}")

def static_phase(a):
    K = KS
    dma4(a)
    for m in mfma3(D0, 0): a(m)
    a("s_nop 7")
    a("s_nop 3")
    for j in range(K):
        last = j == K-1
        if opt("lprio", 1) and j in SPRIO:
            a(f"s_setprio {SPRIO[j]}")
        if STAMP and LOOPST and j < 7: stamp(a, 1+j, True)
        if j+2 < K:
            sidx(a, j+2)
        if j == K-3:
            a(f"ds_read_b32 v{GBA}, v{VA}")
        if j == K-2:
            a(f"s_cmp_eq_u32 s{sREM}, 0")
            a("s_cbranch_scc1 K2_SN0")
            idxread(a)
            a(f"ds_read_b32 v{GBA}, v{VA} offset:512")
            a.label("K2_SN0")
        if last:
            a(f"s_cmp_eq_u32 s{sREM}, 0")
            a("s_cbranch_scc1 K2_SLAST0")
            a(f"ds_read_b32 v{GBE}, v{VE}")
            a(f"ds_read2_b32 {P(GNR)}, v{VG} offset0:0 offset1:2")
            a(f"s_cmp_lt_u32 s{sREM}, 2")
            a("s_cbranch_scc1 K2_SN1")
            idxread(a)
            a(f"ds_read_b32 v{GBA}, v{VA} offset:1024")
            a.label("K2_SN1")
        xphase(a, D0, mfma3(D1, 1))
        if j == opt("w2", -1) + 1 and j > 0:
            a(f"s_cmp_ge_u32 s{sW}, {(W2L_ + 63)//64}")
            a("s_cbranch_scc1 K2_NOW3")
            a("s_waitcnt vmcnt(1) lgkmcnt(0)")
            a("s_branch K2_NOW4")
            a.label("K2_NOW3")
        a("s_waitcnt vmcnt(0) lgkmcnt(0)")
        if j == opt("w2", -1) + 1 and j > 0: a.label("K2_NOW4")
        aread(a)
        nsmall = 1
        if j >= K-3:
            a(f"v_add_u32 v{GBA}, v{GBA}, v{CA}")
        if not last:
            a(f"ds_read_u16 v{AEXT+2}, v{SE} offset:{32*(j+1)}")
        else:
            a(f"v_add_u32 v{GBE}, v{GBE}, v{CE}")
            a(f"v_add_u32 v{FA0}, v{GNR}, v{L8}")
            a(f"v_add_u32 v{FA0+1}, v{GNR+1}, v{L8}")
            a(f"v_add_u32 v{VG}, 512, v{VG}")
            a(f"ds_read_u16 v{AEXT+2}, v{GBE}")
            bext(a, FA0)
            nsmall = 5
        def mid():
            if j >= K-2:
                a(f"s_cmp_lt_u32 s{sREM}, {j-(K-2)+1}")
                a(f"s_cbranch_scc1 K2_SND{j}")
            a(f"s_waitcnt lgkmcnt({nsmall})")
            dma4(a)
            if j == opt("w2", -1):
                a(f"s_cmp_ge_u32 s{sW}, {(W2L_ + 63)//64}")
                a("s_cbranch_scc1 K2_NOW2")
                a(f"v_lshlrev_b32 v{GBE}, 7, v0")
                a(f"s_mul_i32 s3, s{sWB}, {W2L_*128}")
                a(f"s_add_u32 s3, s3, {SPL*128}")
                a(f"buffer_load_dword v{GBE}, v{GBE}, s[{S_TABR}:{S_TABR+3}], s3 offen")
                a.label("K2_NOW2")
            if j >= K-2: a.label(f"K2_SND{j}")
        schain(a, D0, N0, P0, j == 0, [(opt("dmaq", 2), mid)])
        a("s_waitcnt lgkmcnt(0)")
        xphase(a, D1, mfma3(D0, 0))
        schain(a, D1, N1, P1, j == 0)
        if j in (1, 3):
            for r in (N0, P0, N1, P1):
                a(f"v_pk_mul_f32 {P(r)}, {P(r)}, s[{sSC}:{sSC+1}]")
    def sflush():
        for h, (Nr, Pr) in enumerate(((N0, P0), (N1, P1))):
            a(f"v_rcp_f32 v{X}, v{Pr}")
            a(f"v_rcp_f32 v{X+1}, v{Pr+1}")
            a(f"v_max3_f32 v{PM}, v{Pr}, v{Pr+1}, v{PM}")
            a(f"v_pk_mul_f32 {P(Nr)}, {P(Nr)}, {P(X)}")
            a(f"v_cvt_f64_f32 {P(X+2+4*h)}, v{Nr}")
            a(f"v_cvt_f64_f32 {P(X+4+4*h)}, v{Nr+1}")
            a(f"ds_add_f64 v{FA1}, {P(X+2+4*h)} offset:{AGG+256*h}")
            a(f"ds_add_f64 v{FA1+1}, {P(X+4+4*h)} offset:{AGG+256*h}")
        a(f"v_add_f32 v{X}, abs(v{N0}), abs(v{N0+1})")
        a(f"v_add_f32 v{X+1}, abs(v{N1}), abs(v{N1+1})")
        a(f"v_add_f32 v{X}, v{X}, v{X+1}")
        a(f"v_mul_f32 v{X}, 0, v{X}")
        a(f"v_add_f32 v{PM}, v{PM}, v{X}")
    sflush()
    a("s_branch K2_F_LOOP0")
    a.label("K2_SLAST0")
    xphase(a, D0, mfma3(D1, 1))
    schain(a, D0, N0, P0, False)
    xphase(a, D1, None)
    schain(a, D1, N1, P1, False)
    sflush()
    a("s_branch K2_LOOPDONE")

def first_addr(a):
    a("v_lshrrev_b32 v8, 4, v1")
    a(f"v_lshl_add_u32 v8, s{sW}, 2, v8")
    a(f"v_mul_u32_u24 v9, {BLK}, v8")
    a("v_lshlrev_b32 v11, 1, v1")
    a("v_and_b32 v11, 16, v11")
    a(f"v_add3_u32 v{SA}, v9, v11, s{sRECS}")
    a("v_bfe_u32 v8, v1, 4, 1")
    a("v_lshrrev_b32 v9, 5, v1")
    a("v_lshl_or_b32 v8, v9, 2, v8")
    a("v_and_b32 v9, 7, v1")
    a("v_xor_b32 v8, v8, v9")
    a(f"v_lshlrev_b32 v{RP+1}, 4, v8")
    a(f"v_xor_b32 v{RP+3}, 32, v{RP+1}")
    a(f"v_mov_b32 v{RP+5}, v{RP+1}")
    a(f"v_mov_b32 v{RP+7}, v{RP+3}")

def const_read2(a):
    a("v_lshlrev_b32 v3, 3, v1")
    a(f"v_add_u32 v3, {CONSTL + 5120}, v3")
    a(f"ds_read_b64 {P(GNR)}, v3 offset:1536")
    a(f"ds_read_b128 {v(VA,4)}, v{CADR} offset:3072")
    a(f"ds_read_b64 {P(CA)}, v3 offset:2048")
    a(f"ds_read_b128 {v(RA,4)}, v{CADR} offset:2048")
    a(f"ds_read_b128 {v(I0,4)}, v{CADR}")
    a(f"ds_read_b128 {v(I1,4)}, v{CADR} offset:1024")
    a(f"ds_read_b64 {P(AEXT)}, v3")
    a(f"ds_read_b64 {P(BX0+2)}, v3 offset:512")
    a(f"ds_read_b64 {P(BX1+2)}, v3 offset:1024")
    a(f"v_mov_b32 v{AEXT+3}, 0")

CHK = 36
NR = 12
def cnt_init(a, first):
    for r in range(4): a(f"v_mov_b32 v{4+r}, 0")
    a("v_mul_u32_u24 v3, 12, v1")
    a(f"v_mul_u32_u24 v8, {CAPN}, v1")
    a(f"v_add_u32 v8, {RECS//4}, v8")
    a("s_mov_b32 exec_lo, -1")
    a(f"s_mov_b32 exec_hi, {hex((1 << 18) - 1)}")
    a(f"ds_write2_b32 v3, v4, v8 offset0:{CNT//4} offset1:{CNT//4+1}")
    a(f"ds_write_b32 v3, v4 offset:{CNT+8}")
    if first == 1:
        a(f"ds_write_b32 v4, v4 offset:{QC}")
    if first == 1:
        a(f"v_mov_b32 v3, {FLG}")
        a("ds_write_b128 v3, v[4:7]")
    a("s_mov_b64 exec, -1")

def prefill(a, first):
    a("v_subrev_u32 v2, 768, v0")
    a("v_lshlrev_b32 v2, 4, v2")
    for r in range(4): a(f"v_mov_b32 v{4+r}, 0xffff")
    for i in range(5):
        a(f"ds_write_b128 v2, v[4:7] offset:{RECS + 4096*i}") if RECS + 4096*i < 65536 else None
        if RECS + 4096*i >= 65536:
            if RECS + 4096*(i-1) < 65536:
                a(f"v_add_u32 v3, {RECS}, v2")
            a(f"ds_write_b128 v3, v[4:7] offset:{4096*i}")
    a(f"v_mov_b32 v8, {50*BLK - 5*4096}")
    a("v_cmpx_lt_u32 vcc, v2, v8")
    a(f"ds_write_b128 v3, v[4:7] offset:{4096*5}")
    a("s_mov_b64 exec, -1")
    for r in range(4): a(f"v_mov_b32 v{4+r}, 0")
    if first:
        for i in range(6):
            a(f"ds_write_b128 v2, v[4:7] offset:{AGG + 4096*i}")
        a(f"v_mov_b32 v8, {50*RS - 6*4096}")
        a("v_cmpx_lt_u32 vcc, v2, v8")
        a(f"ds_write_b128 v2, v[4:7] offset:{AGG + 4096*6}")
        a("s_mov_b64 exec, -1")

def gen_k2(a):
    CURK[0] = 2
    WARM = opt("warm", 1)
    FB = 96
    a.label("k2_kernel")
    a(f"s_cmp_ge_u32 s2, {NB}")
    a("s_cbranch_scc1 K2_END")
    a("s_load_dwordx2 s[14:15], s[0:1], 64")
    a("s_load_dwordx2 s[4:5], s[0:1], 0")
    a("s_load_dwordx2 s[12:13], s[0:1], 48")
    stamp_start(a)
    stamp(a, 0)
    prio(a, 3)
    if opt("rot", 1):
        a("v_add_u32 v0, 768, v0")
        a("v_and_b32 v0, 1023, v0")
    a("v_lshrrev_b32 v2, 6, v0")
    a("v_and_b32 v1, 63, v0")
    a(f"v_readfirstlane_b32 s{sW}, v2")
    a("s_and_b32 s3, s2, 7")
    a("s_lshl_b32 s3, s3, 5")
    a(f"s_lshr_b32 s{sB}, s2, 3")
    a(f"s_add_u32 s{sB}, s{sB}, s3")
    a("v_mul_u32_u24 v12, 0x5556, v0")
    a("v_lshrrev_b32 v12, 16, v12")
    a("v_lshlrev_b32 v3, 10, v12")
    a(f"s_lshl_b32 s3, s{sB}, 2")
    a(f"s_mov_b32 s{S_OFF+2}, {NP*1024}")
    a(f"s_mov_b32 s{S_OFF+3}, 0x00020000")
    a(f"s_cmp_ge_u32 s{sW}, 12")
    a(f"s_cselect_b32 s{sDYN}, 1, 0")
    a("s_cbranch_scc1 K2_HELP")
    def setup():
        srd(a, S_TABR, 14, 15, N*128, WS_TAB)
        a(f"s_mov_b32 s{S_TAB}, s{S_TABR}")
        a(f"s_or_b32 s{S_TAB+1}, s{S_TABR+1}, {128 << 16}")
        a(f"s_mov_b32 s{S_TAB+2}, {N}")
        a(f"s_mov_b32 s{S_TAB+3}, 0x00020000")
        srd(a, S_OUT, 12, 13, N*128)
        srd(a, S_REC, 14, 15, NP*RSTR, WS_REC)
        a(f"s_mov_b32 s{sSC}, 0x2d800000")
        a(f"s_mov_b32 s{sSC+1}, 0x2d800000")
        a(f"s_movk_i32 s{sCAPN}, {CAPN}")
        a(f"s_mov_b32 s{sRECS}, {RECS}")
        a(f"s_mov_b32 s{sMODE}, 0")
        a(f"s_mov_b32 s{sMODE2}, 0")
        a(f"s_mov_b32 s{sCHUNK}, 0")
        a(f"s_mov_b32 s{sK}, {KS}")
        a(f"s_mov_b32 s{sM}, {MD}")
        a(f"s_mov_b32 s{sONE}, 1.0")
        a(f"s_mov_b32 s{sONE+1}, 1.0")
        a(f"s_lshl_b32 s{sSLOT}, s{sW}, 12")
        a(f"s_add_u32 s{sSLOT}, s{sSLOT}, {STG}")
        a(f"s_mul_i32 s{sNODE0}, s{sB}, {NPB}")
    def rec_prep(first):
        if not first:
            a("v_mul_u32_u24 v12, 0x5556, v0")
            a("v_lshrrev_b32 v12, 16, v12")
        a("v_mul_u32_u24 v3, 3, v12")
        a("v_sub_u32 v3, v0, v3")
        a("v_lshlrev_b32 v3, 2, v3")
        if not first:
            a(f"v_add_u32 v3, s{sCHUNK}, v3")
        a(f"v_mul_u32_u24 v4, {RSTR//4}, v12")
    VM = lambda j: f"s[{sVAL+2*j}:{sVAL+2*j+1}]"
    def rec_masks():
        a(f"v_lshrrev_b32 v5, 16, v{OFFW}")
        a("v_sub_u32 v2, v5, v3")
        for j in (0, 4, 8):
            a(f"v_cmp_lt_i32 {VM(j)}, {12*(j>>2)+(j&3)}, v2")
    def rec_masks2():
        for j in range(NR):
            if j & 3: a(f"v_cmp_lt_i32 {VM(j)}, {12*(j>>2)+(j&3)}, v2")
    def orm(r, dst):
        a(f"s_or_b64 s[84:85], {VM(4*r)}, {VM(4*r+1)}")
        a(f"s_or_b64 s[84:85], s[84:85], {VM(4*r+2)}")
        a(f"s_or_b64 {dst}, s[84:85], {VM(4*r+3)}")
    def rec_loads(first, lab):
        a(f"v_and_b32 v6, 0xffff, v{OFFW}")
        if not first:
            a(f"v_lshrrev_b32 v5, 16, v{OFFW}")
        a("v_add_u32 v4, v6, v4")
        a("v_add_lshl_u32 v5, v4, v5, 2")
        a("v_add_lshl_u32 v4, v4, v3, 2")
        a("v_add_u32 v5, v5, v3")
        for r in range(3):
            if first: a(f"s_or_b64 exec, {VM(4*r)}, {VM(4*r)}")
            else: orm(r, "exec")
            if r == 2: a(f"s_cbranch_scc0 {lab}")
            a(f"buffer_load_dword v{44+r}, v5, s[{S_REC}:{S_REC+3}], 0 offen offset:{12*r}")
            a(f"buffer_load_dwordx4 v[{32+4*r}:{35+4*r}], v4, s[{S_REC}:{S_REC+3}], 0 offen offset:{48*r}")
        a.label(lab)
        a("s_mov_b64 exec, -1")
    def fixups(static):
        a(f"s_lshl_b32 s3, s{sW}, 5")
        if static:
            a(f"s_lshl_b32 s4, s{sM}, 9")
            a("s_add_u32 s3, s3, s4")
        for r in (VA, VE, VG):
            a(f"v_add_u32 v{r}, s3, v{r}")
        for k in range(4):
            a(f"v_add_u32 v{RA+k}, s{sSLOT}, v{RA+k}")
    def qpoll(lab):
        a(f"v_mov_b32 v5, {QC}")
        a.label(lab)
        a("ds_read_b32 v8, v5")
        a("s_waitcnt lgkmcnt(0)")
        a("v_readfirstlane_b32 s3, v8")
        a("s_cmp_lt_u32 s3, 4")
        a(f"s_cbranch_scc1 {lab}")
    a("s_waitcnt lgkmcnt(0)")
    a(f"s_add_u32 s{S_OFF}, s14, {WS_OFF}")
    a(f"s_addc_u32 s{S_OFF+1}, s15, 0")
    a(f"buffer_load_dword v{OFFW}, v3, s[{S_OFF}:{S_OFF+3}], s3 offen")
    setup()
    rec_prep(True)
    a(f"s_lshr_b32 s{sWB}, s2, 3")
    a("s_barrier")
    a("s_waitcnt vmcnt(0)")
    if not opt("stb2", 0): stamp(a, 2)
    rec_masks()
    rec_loads(True, "K2_RL1")
    rec_masks2()
    first_addr(a)
    a(f"v_mov_b32 v{PM}, 0")
    a(f"v_mov_b32 v{PM2}, 0")
    a(f"s_mul_i32 s3, s{sWB}, {W1L_*128}")
    a("v_lshlrev_b32 v17, 7, v0")
    a("v_add_u32 v17, s3, v17")
    a(f"v_lshrrev_b32 v16, 16, v{OFFW}")
    a(f"v_cmp_lt_u32 vcc, {CHK}, v16")
    a("s_nop 1")
    a("s_cbranch_vccz K2_PASS")
    a("s_mov_b64 exec, vcc")
    a(f"v_mov_b32 v3, {FLG}")
    a("ds_max_u32 v3, v16")
    a("s_mov_b64 exec, -1")
    a.label("K2_PASS")
    a("v_mov_b32 v2, 1")
    a("v_min_u32 v18, 48, v1")
    a("v_mul_u32_u24 v19, 12, v18")
    a(f"v_mul_u32_u24 v18, {CAPN}, v18")
    a(f"v_add_u32 v18, {RECS//4 + CAPN}, v18")
    a("v_lshlrev_b32 v3, 4, v1")
    a(f"v_add_u32 v{CADR}, {CONSTL}, v3")
    qpoll("K2_QPOLL0")
    const_read2(a)
    a(f"s_mul_i32 s84, s{sW}, {4*BLK}")
    a(f"s_mul_i32 s85, s{sW}, {4*RS}")
    a("s_waitcnt lgkmcnt(0)")
    a(f"v_add_u32 v{SE}, s84, v{GNR}")
    a(f"v_add_u32 v{FA1}, s85, v{GNR+1}")
    a(f"v_add_u32 v{FA1+1}, {RS}, v{FA1}")
    fixups(True)
    orm(2, "s[84:85]")
    a(f"s_cselect_b32 s{sTN}, 1, 0")
    def warm1():
        a(f"s_cmp_ge_u32 s{sW}, {(W1L_ + 63)//64}")
        a("s_cbranch_scc1 K2_NOWARM")
        a(f"buffer_load_dword v{GBE}, v17, s[{S_TABR}:{S_TABR+3}], 0 offen")
        a.label("K2_NOWARM")
    a("s_waitcnt vmcnt(0)")
    stamp(a, 3)
    for r in range(3):
        if r == 2:
            a(f"s_cbranch_scc0 K2_RK8")
        for j in range(4*r, 4*r+4):
            a(f"v_lshlrev_b32_sdwa v{48+j}, 2, v{44+r} dst_sel:DWORD dst_unused:UNUSED_PAD src0_sel:DWORD src1_sel:BYTE_{j&3}")
        for j in range(4*r, 4*r+4):
            a(f"s_mov_b64 exec, {VM(j)}")
            a(f"ds_add_rtn_u32 v{60+j}, v{48+j}, v2 offset:{CNT}")
        a("s_mov_b64 exec, -1")
    a.label("K2_RK8")
    if WARM:
        warm1()
    a("s_waitcnt lgkmcnt(0)")
    a("s_barrier")
    stamp(a, 4)
    a(f"ds_read2_b32 v[8:9], v19 offset0:{CNT//4+1} offset1:{CNT//4+2}")
    for j in range(NR):
        if j == 8:
            a(f"s_cmp_eq_u32 s{sTN}, 0")
            a("s_cbranch_scc1 K2_PL0")
        if j >= 4: a(f"s_mov_b64 exec, {VM(j)}")
        a(f"ds_read_b32 v{20+j}, v{48+j} offset:{CNT-4}")
    a.label("K2_PL0")
    a("s_mov_b64 exec, -1")
    a("s_waitcnt lgkmcnt(0)")
    a("v_add_u32 v8, v8, v9")
    a("v_cmp_gt_u32 vcc, v8, v18")
    a("s_nop 1")
    a("s_cbranch_vccnz K2_CAREFUL")
    for j in range(NR):
        if j == 8:
            a(f"s_cbranch_scc1 K2_PL4")
        a(f"s_mov_b64 exec, {VM(j)}")
        a(f"v_add_lshl_u32 v{48+j}, v{60+j}, v{20+j}, 2")
        a(f"ds_write_b32 v{48+j}, v{32+j}")
    a.label("K2_PL4")
    a("s_mov_b64 exec, -1")
    a("s_waitcnt lgkmcnt(0)")
    if opt("stb2", 0): stamp(a, 2)
    a("s_barrier")
    stamp(a, 5)
    a(f"s_cmp_lg_u32 s{sMODE}, 0")
    a("s_cbranch_scc1 K2_SLOWHEAD")
    sidx(a, 0)
    a("s_waitcnt lgkmcnt(0)")
    dma4(a)
    stamp(a, 6)
    sidx(a, 1)
    a(f"v_mov_b32 v2, {FLG+8}")
    a("ds_read_b64 v[4:5], v2")
    a(f"ds_read_u16 v{AEXT+2}, v{SE}")
    bext(a, FA1)
    a("s_waitcnt lgkmcnt(5)")
    a(f"v_readfirstlane_b32 s{sT}, v4")
    a(f"v_readfirstlane_b32 s{sOVF}, v5")
    count_tiles(a)
    a(f"s_mov_b32 s{sIT}, 100")
    prio(a, SP0)
    a("s_waitcnt vmcnt(0)")
    stamp(a, 1)
    aread(a)
    a("s_waitcnt lgkmcnt(0)")
    static_phase(a)
    a.label("K2_HELP")
    a(f"s_sub_u32 s{sNT}, s{sW}, 12")
    a("v_lshlrev_b32 v13, 4, v1")
    a("v_lshrrev_b32 v5, 3, v1")
    a("v_and_b32 v6, 7, v1")
    a("v_xor_b32 v6, v6, v5")
    a("v_lshlrev_b32 v6, 4, v6")
    a("v_lshl_add_u32 v6, v5, 7, v6")
    a(f"s_mul_i32 s{sNODE0}, s{sB}, {NPB}")
    a(f"s_lshl_b32 s3, s{sNT}, 11")
    a(f"s_lshl_b32 s84, s{sNODE0}, 7")
    a("s_add_u32 s84, s84, s3")
    a("v_add_u32 v6, s84, v6")
    a("v_mov_b32 v12, v6")
    cnt_init(a, 1)
    a(f"s_add_u32 m0, s3, {PST + 16384}")
    a("s_waitcnt lgkmcnt(0)")
    a("s_barrier")
    srd(a, S_X, 4, 5, N*128)
    a(f"buffer_load_dwordx4 v12, s[{S_X}:{S_X+3}], 0 offen lds")
    a(f"buffer_load_dwordx4 v12, s[{S_X}:{S_X+3}], 0 offen offset:1024 lds")
    srd(a, S_CON, 14, 15, 8192*4, WS_CONST)
    a(f"s_add_u32 m0, s3, {PST}")
    a("s_add_u32 s4, s3, 8192")
    for i in range(2):
        a(f"buffer_load_dwordx4 v13, s[{S_CON}:{S_CON+3}], s4 offen offset:{1024*i} lds")
    a(f"s_add_u32 m0, s3, {CONSTL}")
    a(f"s_cmp_eq_u32 s{sNT}, 3")
    a(f"buffer_load_dwordx4 v13, s[{S_CON}:{S_CON+3}], s3 offen lds")
    a("s_cselect_b32 exec_hi, 0, -1")
    a(f"buffer_load_dwordx4 v13, s[{S_CON}:{S_CON+3}], s3 offen offset:1024 lds")
    a("s_mov_b64 exec, -1")
    setup()
    prefill(a, 1)
    def hprep():
        first_addr(a)
        for i in range(4): a(f"v_mov_b32 v{RP+2*i}, -1")
        a("v_min_u32 v12, 48, v1")
        a("v_mul_u32_u24 v13, 12, v12")
        a("v_cmp_gt_u32 s[84:85], 48, v1")
        a(f"v_mul_u32_u24 v27, {RS}, v12")
        a(f"v_mul_u32_u24 v26, {BLK}, v12")
        a("v_lshrrev_b32 v28, 2, v26")
        a(f"v_add_u32 v28, {RECS//4}, v28")
        a("v_subrev_u32 v29, 48, v1")
        a(f"v_mov_b32 v11, s{sK}")
        a("v_cndmask_b32 v12, v29, v11, s[84:85]")
        a("v_cndmask_b32 v24, 1, 14, s[84:85]")
        a("v_lshl_add_u32 v26, v12, 5, v26")
        a(f"v_add_u32 v26, s{sRECS}, v26")
        a(f"s_lshl_b32 s60, s{sM}, 4")
        a(f"s_mul_i32 s61, s{sM}, 384")
        a(f"s_add_u32 s61, s61, {GT}")
    def tile_addrs():
        a("v_lshrrev_b32 v7, 4, v1")
        a("v_and_b32 v25, 15, v1")
        a(f"s_lshl_b32 s3, s{sNT}, 4")
        a("v_add_u32 v25, s3, v25")
        a(f"v_mul_u32_u24 v6, {RS}, v25")
        a("v_lshl_add_u32 v6, v7, 5, v6")
        a("v_mul_u32_u24 v10, 12, v25")
        a("v_cmp_gt_u32 s[86:87], 50, v25")
        a("v_lshlrev_b32 v3, 4, v1")
        a(f"v_add_u32 v{CADR}, {CONSTL}, v3")
    hprep()
    tile_addrs()
    a("v_and_b32 v2, 7, v1")
    a("v_xor_b32 v2, v2, v7")
    a("v_lshlrev_b32 v2, 4, v2")
    a("v_lshl_add_u32 v2, v25, 7, v2")
    a(f"v_add_u32 v2, {PST + 16384}, v2")
    a("v_xor_b32 v4, 64, v2")
    a(f"v_add_u32 v3, {PST}, v3")
    a(f"v_mov_b32 v5, {QC}")
    a("v_mov_b32 v8, 1")
    a("s_waitcnt vmcnt(0)")
    if not opt("stb2", 0): stamp(a, 2)
    a("s_mov_b64 exec, 1")
    a("ds_add_u32 v5, v8")
    a("s_mov_b64 exec, -1")
    qpoll("K2_QPOLL")
    a("ds_read_b128 v[16:19], v2")
    a("ds_read_b128 v[20:23], v4")
    for q in range(8):
        a(f"ds_read_b128 v[{32+4*q}:{35+4*q}], v3 offset:{1024*q}")
    a(f"s_mov_b32 s84, {NLOG2E:#x}")
    a(f"s_mov_b32 s85, {NLOG2E:#x}")
    a("s_mov_b32 s3, 0x05040100")
    a("s_mov_b32 s4, 0x07060302")
    a("s_waitcnt lgkmcnt(0)")
    for ks in range(2):
        for ft in range(4):
            D = 64 + 4*ft; W = 32 + 8*ft + 4*ks
            a(f"v_mfma_f32_16x16x32_bf16 v[{D}:{D+3}], v[{W}:{W+3}], v[{16+4*ks}:{19+4*ks}], " + ("0" if ks == 0 else f"v[{D}:{D+3}]"))
    a("s_nop 4")
    for q in range(8):
        if q == 6: a("s_nop 0")
        a(f"v_pk_mul_f32 {P(64+2*q)}, {P(64+2*q)}, s[84:85]")
    for ft in range(4):
        for h in range(2):
            B = 64 + 4*ft + 2*h; O = 32 + 8*ft + 4*h
            a(f"v_cvt_pk_bf16_f32 v8, v{B}, v{B+1}")
            a("v_lshlrev_b32 v16, 16, v8")
            a("v_and_b32 v17, 0xffff0000, v8")
            a(f"v_pk_add_f32 v[16:17], {P(B)}, v[16:17] neg_lo:[0,1] neg_hi:[0,1]")
            a("v_cvt_pk_bf16_f32 v16, v16, v17")
            a(f"v_perm_b32 v{O}, v16, v8, s3")
            a(f"v_perm_b32 v{O+2}, v16, v8, s4")
        a("s_mov_b64 exec, s[86:87]")
        a(f"ds_write_b128 v6, v[{32+8*ft}:{35+8*ft}] offset:{BP + 128*ft}")
        a(f"ds_write_b128 v6, v[{36+8*ft}:{39+8*ft}] offset:{BP + 128*ft + 16}")
        a("s_mov_b64 exec, -1")
    a(f"v_mov_b32 v{PM}, 0")
    a(f"v_mov_b32 v{PM2}, 0")
    a.label("K2_HPASS")
    a.label("K2_HPASS2")
    a("s_waitcnt vmcnt(0) lgkmcnt(0)")
    stamp(a, 3)
    a("s_barrier")
    stamp(a, 4)
    a(f"ds_read2_b32 v[18:19], v13 offset0:{CNT//4+1} offset1:{CNT//4+2}")
    a(f"ds_read2_b32 v[22:23], v10 offset0:{CNT//4+1} offset1:{CNT//4+2}")
    a("s_waitcnt lgkmcnt(1)")
    a("v_add_u32 v8, v18, v19")
    a("v_sub_u32 v8, v8, v28")
    a(f"v_cmp_lt_u32 vcc, s{sCAPN}, v8")
    a(f"v_min_u32 v8, s{sCAPN}, v8")
    a("v_add_u32 v8, 7, v8")
    a("v_lshrrev_b32 v8, 3, v8")
    a("v_sub_u32 v8, v8, v12 clamp")
    a("v_min_u32 v8, v8, v24")
    a("v_mov_b32 v11, v8")
    a("s_cmp_lg_u64 vcc, 0")
    a(f"s_cselect_b32 s{sOVF}, 1, 0")
    scan64(a, 11)
    a(f"v_readlane_b32 s{sT}, v11, 63")
    a("v_sub_u32 v11, v11, v8")
    a(f"v_add_u32 v11, s{sNT}, v11")
    a(f"s_lshl_b32 s3, s{sNT}, 5")
    a("v_add_u32 v26, s3, v26")
    a(f"v_subrev_u32 v8, s{sNT}, v8")
    def pos():
        a("v_lshlrev_b32 v18, 3, v11")
        a("v_and_b32 v19, 0x78, v18")
        a("v_lshrrev_b32 v20, 4, v11")
        a("v_lshl_add_u32 v19, v20, 9, v19")
        a("v_cmp_gt_u32 s[84:85], s60, v11")
        a(f"v_add_u32 v19, {GT + 384}, v19")
        a("v_add_u32 v18, s61, v18")
        a("v_cndmask_b32 v18, v18, v19, s[84:85]")
    a("v_cmpx_lt_i32 vcc, 0, v8")
    a("s_nop 1")
    a("s_cbranch_execz K2_BLD1")
    a.label("K2_BLD0")
    pos()
    a("ds_write_b64 v18, v[26:27]")
    a("v_add_u32 v26, 128, v26")
    a("v_add_u32 v11, 4, v11")
    a("v_subrev_u32 v8, 4, v8")
    a("v_cmpx_lt_i32 vcc, 0, v8")
    a("s_nop 1")
    a("s_cbranch_execnz K2_BLD0")
    a.label("K2_BLD1")
    a("s_mov_b64 exec, -1")
    a(f"s_add_u32 s3, s{sT}, s{sNT}")
    a("v_mov_b32 v11, s3")
    a(f"v_mov_b32 v26, {RECS + NPB*BLK}")
    a(f"v_mov_b32 v27, {NPB*RS}")
    pos()
    a("ds_write_b64 v18, v[26:27]")
    a(f"s_add_u32 s{sT}, s{sT}, 3")
    a(f"s_lshr_b32 s{sT}, s{sT}, 2")
    a(f"v_mov_b32 v18, s{sT}")
    a(f"v_mov_b32 v19, s{sOVF}")
    a(f"v_mov_b32 v20, {FLG + 8}")
    a("ds_write_b64 v20, v[18:19]")
    count_tiles(a)
    a("s_waitcnt lgkmcnt(0)")
    if opt("stb2", 0): stamp(a, 2)
    a("s_barrier")
    stamp(a, 5)
    a.label("K2_DYNHEAD")
    def corr():
        a(f"s_cmp_eq_u32 s{sDYN}, 0")
        a("s_cbranch_scc1 K2_NOCORR")
        const_read2(a)
        a("v_add_u32 v22, v22, v23")
        a(f"v_mul_u32_u24 v23, {CAPN}, v25")
        a("v_sub_u32 v22, v22, v23")
        a("v_cmp_gt_u32 s[84:85], 48, v25")
        a(f"v_subrev_u32 v22, {RECS//4}, v22")
        a(f"s_lshl_b32 s3, s{sK}, 3")
        a("v_mov_b32 v23, s3")
        a(f"v_min_u32 v22, s{sCAPN}, v22")
        a("v_add_u32 v21, 7, v22")
        a("v_cndmask_b32 v23, 0, v23, s[84:85]")
        a("v_and_b32 v21, -8, v21")
        a("v_max_u32 v21, v21, v23")
        a("v_sub_u32 v21, v22, v21")
        a("v_cvt_f32_i32 v21, v21")
        for r in range(16):
            a(f"v_exp_f32 v{32+r}, v{64+r}")
        for q in range(8):
            a(f"v_pk_add_f32 {P(32+2*q)}, {P(32+2*q)}, s[{sONE}:{sONE+1}]")
        for r in range(16):
            a(f"v_rcp_f32 v{32+r}, v{32+r}")
        for q in range(8):
            a(f"v_pk_mul_f32 {P(64+2*q)}, {P(64+2*q)}, {P(32+2*q)}")
        a("s_mov_b64 exec, s[86:87]")
        for q in range(8):
            a(f"v_pk_mul_f32 {P(64+2*q)}, {P(64+2*q)}, v[20:21] op_sel:[0,1] op_sel_hi:[1,1]")
        for r in range(16):
            a(f"v_cvt_f64_f32 v[{32+2*r}:{33+2*r}], v{64+r}")
            a(f"ds_add_f64 v6, v[{32+2*r}:{33+2*r}] offset:{AGG + 128*(r>>2) + 8*(r&3)}")
        a("s_mov_b64 exec, -1")
        a("s_waitcnt lgkmcnt(15)")
        a("s_waitcnt lgkmcnt(15)") if False else None
        fixups(False)
        a.label("K2_NOCORR")
    if opt("cfirst", 1): corr()
    a(f"s_mov_b32 s{sIT}, 0")
    a(f"s_cmp_eq_u32 s{sREM}, 0")
    a("s_cbranch_scc1 K2_DYN0")
    a(f"ds_read_b32 v{GBA}, v{VA}")
    a(f"ds_read_b32 v{GBE}, v{VE}")
    a(f"ds_read2_b32 {P(GNR)}, v{VG} offset0:0 offset1:2")
    a("s_waitcnt lgkmcnt(2)")
    a(f"v_add_u32 v{GBA}, v{GBA}, v{CA}")
    idxread(a)
    a(f"ds_read_b32 v{GBA}, v{VA} offset:512")
    a("s_waitcnt lgkmcnt(1)")
    dma4(a)
    stamp(a, 6)
    a(f"v_add_u32 v{GBE}, v{GBE}, v{CE}")
    a(f"v_add_u32 v{FA0}, v{GNR}, v{L8}")
    a(f"v_add_u32 v{FA0+1}, v{GNR+1}, v{L8}")
    a(f"v_add_u32 v{VG}, 512, v{VG}")
    a(f"ds_read_u16 v{AEXT+2}, v{GBE}")
    bext(a, FA0)
    a("s_waitcnt lgkmcnt(5)")
    a(f"v_add_u32 v{GBA}, v{GBA}, v{CA}")
    a(f"s_cmp_lt_u32 s{sREM}, 2")
    a("s_cbranch_scc1 K2_DYN0")
    idxread(a)
    a(f"ds_read_b32 v{GBA}, v{VA} offset:1024")
    a.label("K2_DYN0")
    if not opt("cfirst", 1): corr()
    a(f"s_cmp_eq_u32 s{sREM}, 0")
    a("s_cbranch_scc1 K2_LOOPDONE")
    a("s_waitcnt vmcnt(0)")
    stamp(a, 1)
    aread(a)
    a("s_waitcnt lgkmcnt(0)")
    a(f"s_cmp_lt_u32 s{sREM}, 2")
    a("s_cbranch_scc1 K2_DYN1")
    dma4(a)
    a.label("K2_DYN1")
    for m in mfma3(D0, 0): a(m)
    a(f"v_add_u32 v{GBA}, v{GBA}, v{CA}")
    a(f"s_cmp_lg_u32 s{sMODE}, 0")
    a("s_nop 7")
    a("s_nop 1")
    a("s_cbranch_scc1 K2_S_LOOP0")
    dynloop(a, "F", False)
    a.label("K2_LOOPDONE")
    a("v_mov_b32 v2, 0x76800000")
    a("v_mov_b32 v3, 0x5f800000")
    a(f"v_cmp_nlt_f32 vcc, v{PM}, v2")
    a(f"v_cmp_nlt_f32 s[84:85], v{PM2}, v3")
    a("s_or_b64 vcc, vcc, s[84:85]")
    a("s_cbranch_scc0 K2_AFTER")
    a(f"v_mov_b32 v3, {FLG+4}")
    a("v_mov_b32 v2, 1")
    a("ds_write_b32 v3, v2")
    a.label("K2_AFTER")
    stamp(a, 7)
    a(f"v_mov_b32 v3, {FLG}")
    a(f"s_cmp_eq_u32 s{sDYN}, 0")
    a("s_cbranch_scc1 K2_B4")
    a("v_lshrrev_b32 v7, 4, v1")
    a(f"s_lshl_b32 s3, s{sNT}, 4")
    a("v_and_b32 v9, 15, v1")
    a("v_add_u32 v9, s3, v9")
    a(f"v_add_u32 v6, s{sNODE0}, v9")
    a("v_lshlrev_b32 v6, 7, v6")
    a("v_lshl_add_u32 v4, v7, 4, v6")
    a(f"buffer_load_dwordx4 v[16:19], v4, s[{S_X}:{S_X+3}], 0 offen")
    a(f"buffer_load_dwordx4 v[20:23], v4, s[{S_X}:{S_X+3}], 0 offen offset:64")
    a("v_lshlrev_b32 v4, 4, v1")
    for hq in range(4):
        a(f"s_mov_b32 s3, {16384 + 4096*hq}")
        for q in range(4):
            r = (96 if hq < 2 else 48) + 16*(hq & 1) + 4*q if hq >= 2 else (24 + 0)
            r = [96, 112 - 80, 48, 64][hq] + 4*q
            a(f"buffer_load_dwordx4 v[{r}:{r+3}], v4, s[{S_CON}:{S_CON+3}], s3 offen offset:{1024*q}")
    a(f"v_mul_u32_u24 v8, {RS}, v9")
    a("v_lshl_add_u32 v8, v7, 6, v8")
    a("v_lshl_add_u32 v6, v7, 5, v6")
    a("s_mov_b32 s86, 0xbfb8aa3b")
    a("s_mov_b32 s87, 0xbfb8aa3b")
    a("s_waitcnt vmcnt(8)")
    for ks in range(2):
        for ft in range(4):
            W = [96, 104, 32, 40][ft] + 4*ks
            a(f"v_mfma_f32_16x16x32_bf16 v[{80+4*ft}:{83+4*ft}], v[{W}:{W+3}], v[{16+4*ks}:{19+4*ks}], " + ("0" if ks == 0 else f"v[{80+4*ft}:{83+4*ft}]"))
    a("s_nop 4")
    for q in range(8):
        if q == 6: a("s_nop 0")
        a(f"v_pk_mul_f32 {P(80+2*q)}, {P(80+2*q)}, s[86:87]")
    a("s_waitcnt vmcnt(0)")
    a.label("K2_B4")
    a("s_waitcnt lgkmcnt(0)")
    a("s_barrier")
    stamp(a, 8)
    a("ds_read_b64 v[12:13], v3")
    a(f"s_cmp_eq_u32 s{sDYN}, 0")
    a("s_cbranch_scc1 K2_NOAGG")
    for ks in range(2):
        for h in range(4):
            r = 16 + 16*ks + 4*h
            a(f"ds_read_b128 v[{r}:{r+3}], v8 offset:{AGG + 256*ks + 16*h}")
    a("s_waitcnt lgkmcnt(8)")
    a("s_branch K2_FL")
    a.label("K2_NOAGG")
    a("s_waitcnt lgkmcnt(0)")
    a.label("K2_FL")
    a("v_readfirstlane_b32 s84, v12")
    a("v_readfirstlane_b32 s85, v13")
    a(f"s_cmp_lg_u32 s{sOVF}, 0")
    a("s_cbranch_scc1 K2_RETRY")
    a(f"s_add_u32 s3, s{sCHUNK}, {CHK}")
    a("s_cmp_gt_u32 s84, s3")
    a("s_cbranch_scc1 K2_NEXTCHUNK")
    a(f"s_andn2_b32 s85, s85, s{sMODE}")
    a("s_cbranch_scc1 K2_GOSLOW")
    a(f"s_cmp_eq_u32 s{sDYN}, 0")
    a("s_cbranch_scc1 K2_FIN")
    a("s_mov_b32 s86, 0xbfb8aa3b")
    a("s_mov_b32 s87, 0xbfb8aa3b")
    a(f"s_mov_b32 s84, {NLN2:#x}")
    a(f"s_mov_b32 s85, {NLN2:#x}")
    for r in range(16):
        if r % 2 == 0: a(f"s_waitcnt lgkmcnt({7 - r//2})")
        a(f"v_cvt_f32_f64 v{96+r}, v[{16+2*r}:{17+2*r}]")
        if r % 2 == 1:
            a(f"v_pk_mul_f32 {P(95+r)}, {P(95+r)}, s[84:85]")
            a(f"v_cvt_pk_bf16_f32 v{112+r//2}, v{95+r}, v{96+r}")
    a(f"v_cmp_gt_u32 vcc, {NPB}, v9")
    a("v_mov_b32 v12, s86")
    a("v_mov_b32 v13, s86")
    for ks in range(2):
        for ft in range(4):
            a(f"v_mfma_f32_16x16x32_bf16 v[{16+4*ft}:{19+4*ft}], v[{48+8*ft+4*ks}:{51+8*ft+4*ks}], v[{112+4*ks}:{115+4*ks}], " + ("0" if ks == 0 else f"v[{16+4*ft}:{19+4*ft}]"))
    a("s_nop 4")
    for q in range(8):
        if q == 6: a("s_nop 0")
        a(f"v_pk_fma_f32 {P(80+2*q)}, {P(16+2*q)}, s[86:87], {P(80+2*q)}")
    for r in range(16):
        a(f"v_exp_f32 v{16+r}, v{80+r}")
    for q in range(8):
        a(f"v_pk_fma_f32 {P(16+2*q)}, {P(16+2*q)}, s[86:87], v[12:13]")
    for r in range(16):
        a(f"v_rcp_f32 v{16+r}, v{16+r}")
    for q in range(8):
        a(f"v_pk_mul_f32 {P(16+2*q)}, {P(16+2*q)}, {P(80+2*q)}")
    for q in range(8):
        a(f"v_cvt_pk_bf16_f32 v{32+q}, v{16+2*q}, v{17+2*q}")
    a("s_mov_b64 exec, vcc")
    so = ["", " sc1", " nt", " sc0 sc1", " sc1 nt"][opt("osc", 0)]
    a(f"buffer_store_dwordx4 v[32:35], v6, s[{S_OUT}:{S_OUT+3}], 0 offen" + so)
    a(f"buffer_store_dwordx4 v[36:39], v6, s[{S_OUT}:{S_OUT+3}], 0 offen offset:16" + so)
    a.label("K2_FIN")
    stamp_flush(a, 1, 14, 15, sW, sT)
    a.label("K2_END")
    a("s_endpgm")
    dynloop(a, "S", True)
    a.label("K2_SLOWHEAD")
    for i in range(4): a(f"v_mov_b32 v{RP+2*i}, -1")
    a(f"v_mov_b32 v2, {FLG+8}")
    a("ds_read_b64 v[4:5], v2")
    a("s_waitcnt lgkmcnt(0)")
    a(f"v_readfirstlane_b32 s{sT}, v4")
    a(f"v_readfirstlane_b32 s{sOVF}, v5")
    count_tiles(a)
    a("s_branch K2_DYNHEAD")
    a.label("K2_CAREFUL")
    for j in range(NR):
        a(f"s_mov_b64 exec, {VM(j)}")
        a(f"v_mul_u32_u24 v{48+j}, 0x5556, v{48+j}")
        a(f"v_lshrrev_b32 v{48+j}, 18, v{48+j}")
        a(f"v_mul_u32_u24 v{48+j}, {CAPN}, v{48+j}")
        a(f"v_add_u32 v{48+j}, {RECS//4 + CAPN}, v{48+j}")
        a(f"v_add_u32 v{60+j}, v{60+j}, v{20+j}")
        a(f"v_cmpx_lt_u32 vcc, v{60+j}, v{48+j}")
        a(f"v_lshlrev_b32 v{60+j}, 2, v{60+j}")
        a(f"s_andn2_b64 {VM(j)}, {VM(j)}, vcc")
        a(f"ds_write_b32 v{60+j}, v{32+j}")
    a("s_branch K2_PL4")
    a.label("K2_GOSLOW")
    a(f"s_mov_b32 s{sMODE}, 1")
    a(f"s_mov_b32 s{sCHUNK}, {-CHK}")
    a(f"s_mov_b32 s{sK}, 0")
    a(f"s_mov_b32 s{sM}, 0")
    a("s_waitcnt lgkmcnt(0)")
    a("s_barrier")
    a(f"s_cmp_eq_u32 s{sDYN}, 0")
    a("s_cbranch_scc1 K2_NEXTCHUNK")
    prefill(a, 2)
    cnt_init(a, 2)
    a("s_branch K2_HAGAIN")
    a.label("K2_NEXTCHUNK")
    a(f"s_add_u32 s{sCHUNK}, s{sCHUNK}, {CHK}")
    a(f"s_cmp_lg_u32 s{sDYN}, 0")
    a("s_cbranch_scc1 K2_RETRY")
    rec_prep(False)
    rec_masks()
    rec_masks2()
    a.label("K2_RETRY")
    a("s_waitcnt lgkmcnt(0)")
    a(f"s_cmp_lg_u32 s{sDYN}, 0")
    a("s_cbranch_scc1 K2_HRETRY")
    rec_prep(False)
    rec_loads(False, "K2_RL2")
    first_addr(a)
    a("v_bfrev_b32 v17, 1")
    a("s_barrier")
    a("s_branch K2_PASS")
    a.label("K2_HAGAIN")
    a(f"s_add_u32 s{sCHUNK}, s{sCHUNK}, {CHK}")
    a("s_branch K2_HR2")
    a.label("K2_HRETRY")
    prefill(a, 0)
    cnt_init(a, 0)
    a.label("K2_HR2")
    hprep()
    tile_addrs()
    a(f"v_add_u32 v2, {BP}, v6")
    for q in range(8):
        a(f"ds_read2_b32 v[{32+2*q}:{33+2*q}], v2 offset0:{32*(q>>1)+4*(q&1)} offset1:{32*(q>>1)+4*(q&1)+2}")
    a("s_waitcnt lgkmcnt(0)")
    a("s_barrier")
    for r in range(16):
        a(f"v_lshlrev_b32 v{64+r}, 16, v{32+r}")
        a(f"v_and_b32 v{32+r}, 0xffff0000, v{32+r}")
        a(f"v_add_f32 v{64+r}, v{64+r}, v{32+r}")
    a("s_branch K2_HPASS2")

HEAD = open("standalone__mpnn_edge_mlp__graph.s.ref").read().split("; Override launch")[0]

def main(out):
    a = Asm()
    a.lines.append(HEAD.rstrip())
    a.lines.append(f"; @launch kernel=k1_kernel grid=({NP+1},1,1) block=(896,1,1) lds=90112")
    a.lines.append(f"; @launch kernel=k2_kernel grid=({NB},1,1) block=(1024,1,1) lds={K2_LDS}")
    a('.amdgcn_target "amdgcn-amd-amdhsa--gfx950"')
    a(".text")
    for k, g in (("k1_kernel", gen_k1), ("k2_kernel", gen_k2)):
        a(f".globl {k}")
        a(".p2align 8")
        a(f".type {k},@function")
        g(a)
    a('.section .rodata,"a"')
    a(".p2align 6")
    a.lines.append(desc("k1_kernel", 112, 102).rstrip())
    a(".p2align 6")
    a.lines.append(desc("k2_kernel", 128, 102).rstrip())
    open(out, "w").write(a.text())

if __name__ == "__main__":
    main(sys.argv[1] if len(sys.argv) > 1 else "standalone__mpnn_edge_mlp__graph.s")
```

```python
import sys, os
sys.path.insert(0, os.path.dirname(__file__))
from asmlib import *

CURK = [1]
STK2 = [88, 90, 92, 94, 96, 98, 0, 80, 36, 38]
STAMP = int(os.environ.get("STAMP", "0"))
OPT = dict(kv.split("=") for kv in os.environ.get("OPT", "").split(",") if kv)
def opt(k, d): return int(OPT.get(k, d))

N = 12500; E = 800000
NP = 250; CH = 3200
NPB = 49; NB = 256
TROWS = 50
WS_TAB = 0; WS_OFF = 0x200000; WS_REC = 0x400000
WS_STAMP = 0x1000000
NLOG2E = 0xbfb8aa3b
NLN2 = 0xbf317218

LOOPST = int(os.environ.get("LOOPST", "0"))
SEEN = set()
def stamp(a, idx, loop=False):
    if not STAMP: return
    if opt("stb0", 0) and CURK[0] == 2:
        if idx in SEEN: return
        SEEN.add(idx)
    if LOOPST and CURK[0] == 2 and not loop and idx not in (0, 8, 9): return
    assert idx < 10
    if CURK[0] == 2:
        a("s_memtime s[88:89]")
        a("s_waitcnt lgkmcnt(0)") if False else None
        a(f"s_memtime s[{STK2[idx]}:{STK2[idx]+1}]") if False else None
        a.lines.pop() if False else None
        a.lines.pop()
        a(f"s_memtime s[{STK2[idx]}:{STK2[idx]+1}]")
        return
    a(f"s_memtime s[{80+2*idx}:{81+2*idx}]")
def stamp_start(a):
    if not STAMP: return
    a("s_memrealtime s[100:101]")
    for i in range(10): a(f"s_mov_b32 s{80+2*i}, 0") if False else None
def stamp_flush(a, kern, wsl, wsh, wave, extra=None):
    if not STAMP: return
    a("s_waitcnt vmcnt(0)")
    stamp(a, 9)
    a(f"s_memrealtime s[76:77]")
    if STAMP == 2:
        lab = f"DBG_{kern}_{len(a.lines)}"
        a("s_load_dwordx2 s[72:73], s[0:1], 56")
        a(f"s_waitcnt lgkmcnt(0)")
        a(f"s_mov_b64 exec, 1")
        if kern == 0:
            a("s_add_u32 s72, s72, 512")
            a("s_addc_u32 s73, s73, 0")
        a("v_mov_b32 v2, 0")
        a("s_cmp_lg_u32 s2, 5")
        a(f"s_cbranch_scc1 {lab}")
        a(f"s_cmp_lg_u32 s{wave}, 0")
        a(f"s_cbranch_scc1 {lab}")
        a("v_mov_b32 v3, s100")
        a(f"global_store_dword v2, v3, s[72:73] offset:{32*kern}")
        a("v_mov_b32 v3, s76")
        a(f"global_store_dword v2, v3, s[72:73] offset:{32*kern+4}")
        idx = (3, 4, 5, 6, 7, 9) if kern == 0 else (2, 4, 6, 7, 8, 9)
        for i, k in enumerate(idx):
            a(f"s_sub_u32 s3, s{80+2*k}, s80")
            a("v_mov_b32 v3, s3")
            a(f"global_store_dword v2, v3, s[72:73] offset:{32*kern+8+4*i}")
        a.label(lab)
        a("s_waitcnt vmcnt(0)")
        return
    a(f"s_lshl_b32 s78, s2, 4")
    a(f"s_add_u32 s78, s78, s{wave}")
    a(f"s_lshl_b32 s78, s78, 6")
    a(f"s_add_u32 s78, s78, {WS_STAMP + kern*0x100000}")
    a(f"s_waitcnt lgkmcnt(0)")
    a(f"s_mov_b64 exec, 1")
    a(f"v_mov_b32 v2, s78")
    srcs = ([80+2*i for i in range(10)] if kern == 0 else STK2) + [100, extra if extra is not None else 100, 100, 100, 100, 76]
    for i in range(16):
        a(f"v_mov_b32 v3, s{srcs[i]}")
        a(f"global_store_dword v2, v3, s[{wsl}:{wsh}] offset:{4*i}")
    a("s_waitcnt vmcnt(0)")
def prio(a, p):
    if opt("prio", 1): a(f"s_setprio {p}")

KS = opt("K", 7); MD = opt("M", 6)
PV = opt("pv", 0)
SP0, SPRIO, DPRIO = [(3, {2:2, 4:1, 6:0}, ((3,2),(4,1),(5,0))), (2, {3:1, 5:0}, ((1,2),(3,1),(5,0))), (2, {2:1, 5:0}, ((2,2),(3,1),(5,0))), (2, {3:1, 6:0}, ((2,2),(4,1),(6,0)))][PV]
SPL = opt("spl", 4200)
W1L_ = (SPL + 31)//32; W2L_ = (N - SPL + 31)//32
RS = 528; CAPN = 112; BLK = CAPN*4
RSTR = 16896
CNT = 16; FLG = 624; QC = 0; AGG = 640; BP = AGG + 50*RS; RECS = BP + 50*RS; GT = RECS + 50*BLK
CONSTL = GT + 5632; STG = (CONSTL + 7680 + 127)//128*128
K2_LDS = STG + 65536
PST = STG
assert K2_LDS <= 163840
D0 = 16; D1 = 32; X = 48; A = 64; AEXT = 80; BX0 = 84; BX1 = 88; I0 = 92; I1 = 96
RA = 100; RP = 104; VA = 112; VE = 113; VG = 114; L8 = 115; CA = 116; CE = 117
FA0 = 118; FA1 = 120; GNR = 122; GBA = 124; GBE = 125; PM = 126; OFFW = 127
NN = 2; PA = 4; PB = 6; RR = 8; OUT = 10; CADR = 14; PM2 = 15
N0 = 2; P0 = 4; N1 = 8; P1 = 10; PT = 6; SA = 12; SE = 13
S_X = 16; S_OUT = 28; S_TAB = 32; S_OFF = 36; S_REC = 40; S_CON = 8; S_TABR = 20
sB = 44; sNODE0 = 45; sW = 46; sSLOT = 47; sREM = 48; sIT = 49; sCHUNK = 50; sMODE = 51; sOVF = 52; sNT = 53; sFT = 54
sMODE2 = 55; sTN = 56; sTMP = 57; sONE = 58
sVAL = 60
sCAPN = 6; sRECS = 7; sK = 24; sM = 25; sT = 26; sDYN = 27; sSC = 12; sWB = 54

K1W = 1 + (CH//4//opt('u', 2) + 63)//64
WS_CONST = 0x280000; WS_FRAG = WS_CONST + 8192
def gen_k1(a):
    HIST = 0; OFFS = 1024; RECS1 = 3072; W1L = RECS1 + RSTR; XL = W1L + 8192
    assert XL % 128 == 0
    st = ["", " sc1", " nt", " sc0 sc1", " sc1 nt"][opt("k1sc", 0)]
    stt = ["", " sc1", " nt", " sc0 sc1", " sc1 nt"][opt("tabsc", 0)]
    nt = " nt" if opt("k1nt", 1) else ""
    a.label("k1_kernel")
    a(f"s_cmp_ge_u32 s2, {NP}")
    a("s_cbranch_scc1 K1_EXTRA")
    a("s_load_dwordx8 s[4:11], s[0:1], 0")
    a("s_load_dwordx2 s[12:13], s[0:1], 32")
    a("s_load_dwordx2 s[14:15], s[0:1], 64")
    stamp_start(a)
    stamp(a, 0)
    a("v_lshrrev_b32 v2, 6, v0")
    a("v_and_b32 v1, 63, v0")
    a("v_readfirstlane_b32 s16, v2")
    U = opt("u", 2)
    NT = CH // 4 // U
    a("v_subrev_u32 v40, 64, v0")
    a(f"v_mov_b32 v41, {NT}")
    a("v_cmp_lt_u32 vcc, v40, v41")
    a(f"s_mul_i32 s17, s2, {CH*4}")
    a("v_lshlrev_b32 v3, 4, v40")
    a("v_add_u32 v2, s17, v3")
    a("s_cmp_eq_u32 s16, 0")
    a("s_cbranch_scc1 K1_TABLE")
    a("s_mov_b64 exec, vcc")
    DST = lambda u, j: 48 + 36*u + j
    SRC = lambda u, j: 52 + 36*u + j
    EE = lambda u: 56 + 36*u
    BK = lambda u, j: 58 + 36*u + j
    HA = lambda u, j: 62 + 36*u + j
    RK = lambda u, j: 66 + 36*u + j
    DL = lambda u, j: 70 + 36*u + j
    OF = lambda u, j: 74 + 36*u + 2*j
    for u in range(U):
        a(f"v_add_u32 v{4+u}, {u*NT*16}, v2")
        a(f"v_lshrrev_b32 v{8+u}, 1, v{4+u}")
    a("v_mov_b32 v35, 1")
    a(f"s_movk_i32 s3, {-NPB*3}")
    a("s_waitcnt lgkmcnt(0)")
    if not opt("k1dbg",0): stamp(a, 1)
    for u in range(U):
        a(f"global_load_dwordx4 v[{DST(u,0)}:{DST(u,3)}], v{4+u}, s[10:11]" + nt)
    a(f"s_mul_i32 s18, s2, {RSTR}")
    a(f"s_add_u32 s18, s18, {WS_REC}")
    if not opt("k1dbg",0): stamp(a, 2)
    a("s_barrier")
    for u in range(U):
        a(f"global_load_dwordx4 v[{SRC(u,0)}:{SRC(u,3)}], v{4+u}, s[8:9]" + nt)
    for u in range(U):
        a(f"global_load_dwordx2 v[{EE(u)}:{EE(u)+1}], v{8+u}, s[6:7]" + nt)
    stamp(a, 3)
    for u in range(U):
        a(f"s_waitcnt vmcnt({2*U + U-1-u})")
        if u == U-1: stamp(a, 4)
        for j in range(4):
            a(f"v_mul_u32_u24 v{BK(u,j)}, 5350, v{DST(u,j)}")
            a(f"v_lshrrev_b32 v{BK(u,j)}, 18, v{BK(u,j)}")
            a(f"v_lshlrev_b32 v{HA(u,j)}, 2, v{BK(u,j)}")
            a(f"ds_add_rtn_u32 v{RK(u,j)}, v{HA(u,j)}, v35 offset:{HIST}")
    a("s_waitcnt lgkmcnt(0)")
    a("s_barrier")
    stamp(a, 5)
    for u in range(U):
        for j in range(4):
            a(f"v_mad_u32_u24 v{DST(u,j)}, v{DST(u,j)}, 3, 1")
            a(f"v_mad_i32_i24 v{DL(u,j)}, v{BK(u,j)}, s3, v{DST(u,j)}")
            a(f"v_lshlrev_b32 v{HA(u,j)}, 1, v{HA(u,j)}")
    a("s_barrier")
    stamp(a, 6)
    for u in range(U):
        for j in range(4):
            a(f"ds_read_b64 v[{OF(u,j)}:{OF(u,j)+1}], v{HA(u,j)} offset:{OFFS}")
    a("s_mov_b32 s3, 0xffff0000")
    a("s_waitcnt lgkmcnt(0)")
    for u in range(U):
        for j in range(4):
            a(f"v_add_u32 v{OF(u,j)+1}, v{OF(u,j)+1}, v{RK(u,j)}")
            a(f"v_lshl_add_u32 v{OF(u,j)}, v{RK(u,j)}, 2, v{OF(u,j)}")
    for u in range(U):
        a(f"s_waitcnt vmcnt({U + U-1-u})")
        for j in range(4):
            a(f"v_add_u32 v{DST(u,j)}, {16384 - SPL}, v{SRC(u,j)}")
            a(f"v_lshrrev_b32 v{DST(u,j)}, 14, v{DST(u,j)}")
            a(f"v_add_u32 v{DL(u,j)}, v{DL(u,j)}, v{DST(u,j)}")
            a(f"ds_write_b8 v{OF(u,j)+1}, v{DL(u,j)} offset:{RECS1}")
    for u in range(U):
        a(f"s_waitcnt vmcnt({U-1-u})")
        if u == U-1 and opt("k1dbg",0): stamp(a, 1)
        a(f"v_lshl_or_b32 v{SRC(u,0)}, v{EE(u)}, 16, v{SRC(u,0)}")
        a(f"v_and_or_b32 v{SRC(u,1)}, v{EE(u)}, s3, v{SRC(u,1)}")
        a(f"v_lshl_or_b32 v{SRC(u,2)}, v{EE(u)+1}, 16, v{SRC(u,2)}")
        a(f"v_and_or_b32 v{SRC(u,3)}, v{EE(u)+1}, s3, v{SRC(u,3)}")
        for j in range(4):
            a(f"ds_write_b32 v{OF(u,j)}, v{SRC(u,j)} offset:{RECS1}")
    a("s_mov_b64 exec, -1")
    NW = K1W - 1
    NCP = (16768//16 + NW*64 - 1) // (NW*64)
    a("v_add_u32 v41, s18, v3")
    a(f"v_mov_b32 v42, {16768//16 - (NCP-1)*NW*64}")
    a("v_cmp_lt_u32 vcc, v40, v42")
    a("s_waitcnt lgkmcnt(0)")
    if opt("k1dbg",0): stamp(a, 2)
    a("s_barrier")
    stamp(a, 7)
    for c in range(NCP):
        a(f"ds_read_b128 v[{4+4*c}:{7+4*c}], v3 offset:{RECS1 + c*NW*1024}")
    for c in range(NCP):
        a(f"s_waitcnt lgkmcnt({NCP-1-c})")
        if c == NCP-1:
            a("s_cbranch_vccz K1_FIN")
            a("s_mov_b64 exec, vcc")
        a(f"global_store_dwordx4 v41, v[{4+4*c}:{7+4*c}], s[14:15]" + st)
        if c < NCP-1: a(f"v_add_u32 v41, {NW*1024}, v41")
    a.label("K1_FIN")
    stamp(a, 8)
    stamp_flush(a, 0, 14, 15, 16)
    a("s_endpgm")
    a.label("K1_TABLE")
    a("v_lshlrev_b32 v4, 4, v1")
    for r in range(4): a(f"v_mov_b32 v{36+r}, 0")
    a(f"ds_write_b128 v4, v[36:39] offset:{HIST}")
    a("v_lshrrev_b32 v5, 3, v1")
    a("v_and_b32 v6, 7, v1")
    a("v_xor_b32 v6, v6, v5")
    a("v_lshlrev_b32 v6, 4, v6")
    a("v_lshl_add_u32 v6, v5, 7, v6")
    a(f"s_mul_i32 s23, s2, {TROWS*128}")
    a("v_add_u32 v6, s23, v6")
    a("v_add_u32 v14, 4096, v6")
    a(f"s_mov_b32 m0, {XL}")
    a("s_waitcnt lgkmcnt(0)")
    stamp(a, 1)
    TF = opt("tfirst", 0)
    XE = opt("xearly", 1) or TF
    if not XE:
        a("s_barrier")
        stamp(a, 3)
    srd(a, 24, 4, 5, N*128)
    xp = " nt" if opt("k1xnt", 0) else ""
    for i in range(4):
        a(f"buffer_load_dwordx4 v6, s[24:27], 0 offen offset:{1024*i}" + xp + " lds")
    a(f"s_mov_b32 m0, {XL + 4096}")
    srd(a, 28, 12, 13, 129*128)
    for i in range(3):
        a(f"buffer_load_dwordx4 v14, s[24:27], 0 offen offset:{1024*i}" + xp + " lds")
    a(f"s_mov_b32 m0, {W1L}")
    a("s_movk_i32 s3, 0x1000")
    for i in range(4):
        a(f"buffer_load_dwordx4 v4, s[28:31], 0 offen offset:{1024*i} lds")
    a(f"s_mov_b32 m0, {W1L + 4096}")
    a("s_nop 0")
    for i in range(4):
        a(f"buffer_load_dwordx4 v4, s[28:31], s3 offen offset:{1024*i} lds")
    stamp(a, 2)
    if XE:
        a("s_barrier")
        stamp(a, 3)
    srd(a, 32, 14, 15, N*128)
    a("v_lshrrev_b32 v7, 4, v1")
    a("v_bfe_u32 v8, v1, 2, 2")
    a("v_and_b32 v9, 3, v1")
    a("v_lshl_add_u32 v8, v7, 3, v8")
    a("v_lshlrev_b32 v8, 7, v8")
    a("v_lshl_add_u32 v8, v9, 5, v8")
    a("v_and_b32 v10, 15, v1")
    a("v_and_b32 v11, 7, v1")
    a("v_xor_b32 v11, v11, v7")
    a("v_lshlrev_b32 v11, 4, v11")
    a("v_lshl_add_u32 v11, v10, 7, v11")
    a("v_xor_b32 v12, 64, v11")
    a("v_lshlrev_b32 v13, 7, v10")
    a("v_lshl_add_u32 v13, v7, 5, v13")
    a("v_add_u32 v13, s23, v13")
    a("v_add_u32 v15, 4096, v13")
    a(f"s_mov_b32 s40, {NLOG2E:#x}")
    a(f"s_mov_b32 s41, {NLOG2E:#x}")
    a("v_cmp_gt_u32 s[42:43], 2, v10")
    if opt("toff", 1):
        a("s_and_b32 s3, s2, 7")
        a("s_lshl_b32 s3, s3, 5")
        a("s_lshr_b32 s44, s2, 3")
        a("s_add_u32 s3, s3, s44")
        a("s_lshl_b32 s3, s3, 2")
        a(f"s_add_u32 s3, s3, {WS_OFF}")
        a("v_lshlrev_b32 v3, 12, v1")
        a("v_add_u32 v3, s3, v3")
    else:
        a("s_lshl_b32 s3, s2, 10")
        a(f"s_add_u32 s3, s3, {WS_OFF}")
        a("v_add_u32 v3, s3, v4")
    def table():
        for nti in range(4):
            a(f"ds_read_b128 v[{80+8*nti}:{83+8*nti}], v11 offset:{XL + 2048*nti}")
            a(f"ds_read_b128 v[{84+8*nti}:{87+8*nti}], v12 offset:{XL + 2048*nti}")
        for ft in range(4):
            for ks in range(2):
                for h in range(2):
                    r = 16 + 8*ft + 4*ks + 2*h
                    a(f"ds_read_b64_tr_b16 v[{r}:{r+1}], v8 offset:{W1L + (32*ks+4*h)*128 + 8*ft}")
        a("s_waitcnt lgkmcnt(0)")
        def mm(nti):
            D = 48 + 16*(nti & 1); xa = 80 + 8*nti
            for ft in range(4):
                a(f"v_mfma_f32_16x16x32_bf16 v[{D+4*ft}:{D+3+4*ft}], v[{16+8*ft}:{19+8*ft}], v[{xa}:{xa+3}], 0")
            for ft in range(4):
                a(f"v_mfma_f32_16x16x32_bf16 v[{D+4*ft}:{D+3+4*ft}], v[{20+8*ft}:{23+8*ft}], v[{xa+4}:{xa+7}], v[{D+4*ft}:{D+3+4*ft}]")
        def fin(nti):
            D = 48 + 16*(nti & 1); o = 80 + 8*nti
            for q in range(8):
                a(f"v_pk_mul_f32 v[{D+2*q}:{D+1+2*q}], v[{D+2*q}:{D+1+2*q}], s[40:41]")
            for q in range(8):
                a(f"v_cvt_pk_bf16_f32 v{o+q}, v{D+2*q}, v{D+1+2*q}")
            if nti == 3: a("s_mov_b64 exec, s[42:43]")
            ar = 13 if nti < 2 else 15
            a(f"buffer_store_dwordx4 v[{o}:{o+3}], v{ar}, s[32:35], 0 offen offset:{2048*(nti&1)}" + stt)
            a(f"buffer_store_dwordx4 v[{o+4}:{o+7}], v{ar}, s[32:35], 0 offen offset:{2048*(nti&1)+16}" + stt)
            if nti == 3: a("s_mov_b64 exec, -1")
        TB = opt("tb", 4)
        def b3(k):
            if TB == k and not TF:
                a("s_barrier")
                stamp(a, 7)
        b3(0); mm(0); mm(1); fin(0); mm(2); b3(1); fin(1); mm(3); b3(2); fin(2); a("s_nop 7"); b3(3); fin(3); b3(4)
    a("s_setprio 3")
    if TF:
        a("s_waitcnt vmcnt(0)")
        stamp(a, 4)
        table()
    a("s_barrier")
    stamp(a, 5)
    a(f"ds_read_b128 v[56:59], v4 offset:{HIST}")
    a("s_waitcnt lgkmcnt(0)")
    for j in range(4):
        a(f"v_add_u32 v{60+j}, 3, v{56+j}")
        a(f"v_lshrrev_b32 v{60+j}, 2, v{60+j}")
        a(f"v_add_u32 v{60+j}, v{60+j}, v{56+j}")
    a("v_add_u32 v66, v60, v61")
    a("v_add_u32 v67, v66, v62")
    a("v_add_u32 v68, v67, v63")
    a("v_mov_b32 v69, v68")
    a("s_nop 1")
    scan64(a, 69)
    a("v_sub_u32 v72, v69, v68")
    a("v_add_u32 v73, v72, v60")
    a("v_add_u32 v74, v72, v66")
    a("v_add_u32 v75, v72, v67")
    for j in range(4):
        a(f"v_lshlrev_b32 v{60+2*j}, 2, v{72+j}")
        a(f"v_add_lshl_u32 v{61+2*j}, v{72+j}, v{56+j}, 2")
    a("v_lshlrev_b32 v5, 5, v1")
    a(f"ds_write_b128 v5, v[60:63] offset:{OFFS}")
    a(f"ds_write_b128 v5, v[64:67] offset:{OFFS+16}")
    a("s_waitcnt lgkmcnt(0)")
    a("s_barrier")
    stamp(a, 6)
    for j in range(4):
        a(f"v_lshl_or_b32 v{76+j}, v{56+j}, 16, v{72+j}")
    if not TF:
        a("s_waitcnt vmcnt(0)")
        stamp(a, 4)
    if opt("toff", 1):
        for j in range(4):
            a(f"global_store_dword v3, v{76+j}, s[14:15] offset:{1024*j}" + st)
    else:
        a("global_store_dwordx4 v3, v[76:79], s[14:15]" + st)
    if not TF: table()
    stamp(a, 8)
    stamp_flush(a, 0, 14, 15, 16)
    a("s_endpgm")
    a.label("K1_EXTRA")
    a(f"s_cmp_lg_u32 s2, {NP}")
    a("s_cbranch_scc1 K1_END")
    a("s_load_dwordx4 s[8:11], s[0:1], 32")
    a("s_load_dwordx2 s[14:15], s[0:1], 64")
    a("v_lshrrev_b32 v2, 6, v0")
    a("v_and_b32 v1, 63, v0")
    a("v_readfirstlane_b32 s16, v2")
    a("s_waitcnt lgkmcnt(0)")
    srd(a, 20, 8, 9, 129*128)
    srd(a, 24, 10, 11, 128*128)
    a("s_cmp_eq_u32 s16, 0")
    a("s_cbranch_scc1 K1_CONST")
    a("s_sub_u32 s17, s16, 1")
    a.label("K1_FRAG")
    a("s_cmp_gt_u32 s17, 11")
    a("s_cbranch_scc1 K1_END")
    a("s_lshr_b32 s18, s17, 2")
    a("s_and_b32 s19, s17, 3")
    a("v_and_b32 v3, 15, v1")
    a("v_lshrrev_b32 v4, 4, v1")
    a("v_lshlrev_b32 v4, 10, v4")
    a("s_lshl_b32 s3, s19, 4")
    a("v_add_u32 v5, s3, v3")
    a("v_lshrrev_b32 v6, 2, v3")
    a("v_and_b32 v7, 3, v3")
    a("v_lshl_add_u32 v6, v6, 4, v7")
    a("s_lshl_b32 s3, s19, 2")
    a("v_add_u32 v6, s3, v6")
    a("s_cmp_ge_u32 s18, 1")
    a("s_cselect_b64 s[30:31], -1, 0")
    a("v_cndmask_b32 v5, v5, v6, s[30:31]")
    a("v_lshl_add_u32 v4, v5, 1, v4")
    a("s_cmp_eq_u32 s18, 0")
    a("s_cselect_b32 s28, s8, s10")
    a("s_cselect_b32 s29, s9, s11")
    a("s_movk_i32 s30, 0x4000")
    a("s_mov_b32 s31, 0x00020000")
    a("s_cmp_eq_u32 s18, 1")
    a("s_cselect_b32 s3, 0, 0x2000")
    a("s_add_u32 s4, s3, 0x1000")
    for ks in range(2):
        for j in range(8):
            a(f"buffer_load_ushort v{16+8*ks+j}, v4, s[28:31], s{3+ks} offen offset:{128*j}")
    srd(a, 32, 14, 15, 3*8192, WS_FRAG)
    a("s_lshl_b32 s3, s17, 11")
    a("v_lshlrev_b32 v2, 4, v1")
    a("s_waitcnt vmcnt(0)")
    for q in range(8):
        a(f"v_lshl_or_b32 v{8+q}, v{17+2*q}, 16, v{16+2*q}")
    a("buffer_store_dwordx4 v[8:11], v2, s[32:35], s3 offen")
    a("buffer_store_dwordx4 v[12:15], v2, s[32:35], s3 offen offset:1024")
    a(f"s_add_u32 s17, s17, {K1W-1}")
    a("s_branch K1_FRAG")
    a.label("K1_CONST")
    a("v_and_b32 v8, 31, v1")
    a("v_lshlrev_b32 v9, 1, v8")
    a("s_movk_i32 s3, 0x4000")
    a("buffer_load_ushort v24, v9, s[20:23], s3 offen")
    a("buffer_load_ushort v25, v9, s[20:23], s3 offen offset:64")
    a("v_lshrrev_b32 v11, 5, v1")
    a("v_lshlrev_b32 v47, 3, v8")
    a("v_lshlrev_b32 v12, 3, v11")
    a("v_sub_u32 v12, v8, v12")
    a("v_and_b32 v13, 1, v12")
    a("v_lshlrev_b32 v13, 4, v13")
    a("v_mov_b32 v14, 0x3f80")
    a("v_lshlrev_b32 v13, v13, v14")
    a("v_ashrrev_i32 v12, 1, v12")
    for i in range(4):
        a(f"v_cmp_eq_u32 s[{60+4*i}:{61+4*i}], {i}, v12")
        a(f"v_cmp_eq_u32 s[{62+4*i}:{63+4*i}], {8+i}, v12")
    for i in range(4):
        a(f"v_cndmask_b32 v{32+i}, 0, v13, s[{60+4*i}:{61+4*i}]")
        a(f"v_cndmask_b32 v{36+i}, 0, v13, s[{62+4*i}:{63+4*i}]")
    a("v_bfe_u32 v12, v8, 2, 1")
    a("v_and_b32 v13, 1, v8")
    a("v_lshl_or_b32 v14, v12, 1, v13")
    a("v_lshlrev_b32 v15, 1, v11")
    a("v_sub_u32 v15, v14, v15")
    a("v_cmp_eq_u32 s[60:61], 0, v15")
    a("v_cmp_eq_u32 s[62:63], 1, v15")
    a("v_mov_b32 v26, 0x3f803f80")
    a("s_nop 0")
    a("v_cndmask_b32 v56, 0, v26, s[60:61]")
    a("v_cndmask_b32 v57, 0, v26, s[62:63]")
    a("v_bfe_u32 v15, v8, 1, 1")
    a("v_lshrrev_b32 v26, 3, v8")
    a("v_lshl_or_b32 v27, v26, 1, v15")
    a("v_lshl_or_b32 v49, v27, 2, 2")
    a("v_lshl_or_b32 v27, v14, 3, v27")
    a("v_and_b32 v28, 3, v27")
    a("v_lshrrev_b32 v27, 2, v27")
    a("v_lshl_or_b32 v27, v28, 3, v27")
    a("v_and_b32 v28, 7, v8")
    a("v_xor_b32 v28, v28, v11")
    a("v_lshlrev_b32 v28, 4, v28")
    a("v_lshl_add_u32 v40, v27, 7, v28")
    for k in range(1, 4):
        a(f"v_xor_b32 v{40+k}, {32*k}, v40")
    a("v_lshlrev_b32 v48, 1, v1")
    a("v_and_b32 v48, 16, v48")
    a("v_lshrrev_b32 v7, 4, v1")
    a(f"s_mov_b32 s3, {GT}")
    a("v_lshl_add_u32 v44, v7, 3, s3")
    a("v_lshl_add_u32 v45, v14, 3, s3")
    a(f"s_mov_b32 s3, {GT + 4}")
    a("v_lshl_add_u32 v46, v11, 4, s3")
    a("v_and_b32 v5, 15, v1")
    a("v_and_b32 v2, 7, v1")
    a("v_xor_b32 v2, v2, v7")
    a("v_lshlrev_b32 v2, 4, v2")
    a("v_lshl_add_u32 v2, v5, 7, v2")
    a(f"v_add_u32 v52, {PST + 16384}, v2")
    a("v_lshlrev_b32 v3, 4, v1")
    a(f"v_add_u32 v53, {PST}, v3")
    a(f"v_mul_u32_u24 v54, {RS}, v5")
    a("v_lshl_add_u32 v54, v7, 5, v54")
    a("v_mul_u32_u24 v55, 12, v5")
    a(f"v_mul_u32_u24 v62, {BLK}, v14")
    a(f"s_mov_b32 s3, {RECS}")
    a("v_add3_u32 v62, v62, v49, s3")
    a(f"v_mul_u32_u24 v63, {2*RS}, v11")
    a("v_add_u32 v63, v63, v47")
    a(f"s_mov_b32 s3, {NLOG2E:#x}")
    a("v_cmp_gt_u32 s[60:61], 32, v1")
    a("v_mov_b32 v59, 0")
    a("v_mov_b32 v61, 0")
    a("s_waitcnt vmcnt(0)")
    for j in range(2):
        a(f"v_lshlrev_b32 v{24+j}, 16, v{24+j}")
        a(f"v_mul_f32 v{24+j}, s3, v{24+j}")
        a(f"v_cvt_pk_bf16_f32 v26, v{24+j}, v{24+j}")
        a("v_and_b32 v27, 0xffff0000, v26")
        a(f"v_sub_f32 v27, v{24+j}, v27")
        a("v_cvt_pk_bf16_f32 v27, v27, v27")
        a(f"v_cndmask_b32 v26, v27, v26, s[60:61]")
        a(f"v_and_b32 v{58+2*j}, 0xffff, v26")
    srd(a, 28, 14, 15, 8192, WS_CONST)
    a("v_lshlrev_b32 v2, 4, v1")
    a("v_lshlrev_b32 v3, 3, v1")
    a("s_movk_i32 s3, 0x1000")
    for i in range(4):
        a(f"buffer_store_dwordx4 v[{32+4*i}:{35+4*i}], v2, s[28:31], 0 offen offset:{1024*i}")
    a("buffer_store_dwordx4 v[52:55], v2, s[28:31], s3 offen")
    for i in range(4):
        a(f"buffer_store_dwordx2 v[{56+2*i}:{57+2*i}], v3, s[28:31], s3 offen offset:{1024+512*i}")
    a("buffer_store_dwordx2 v[48:49], v3, s[28:31], s3 offen offset:3072")
    a.label("K1_END")
    a("s_endpgm")

def P(r): return f"v[{r}:{r+1}]"

def mfma3(Dn, j):
    bx = BX0 if j == 0 else BX1
    return [f"v_mfma_f32_32x32x16_bf16 {v(Dn,16)}, {v(AEXT,4)}, {v(bx,4)}, 0",
            f"v_mfma_f32_32x32x16_bf16 {v(Dn,16)}, {v(A+8*j,4)}, {v(I0,4)}, {v(Dn,16)}",
            f"v_mfma_f32_32x32x16_bf16 {v(Dn,16)}, {v(A+8*j+4,4)}, {v(I1,4)}, {v(Dn,16)}"]

def xphase(a, Dc, mf):
    ex = [f"v_exp_f32 v{X+r}, v{Dc+r}" for r in range(16)]
    seq = [mf[0]] + ex[0:4] + [mf[1]] + ex[4:8] + [mf[2]] + ex[8:16] if mf else ex
    for l in seq: a(l)

def fphase(a, Dc, off, slow, fa, mids=()):
    mids = dict(mids)
    if not slow:
        a(f"v_pk_add_f32 {P(PA)}, {P(X)}, s[{sONE}:{sONE+1}]")
        cur, nxt = PA, PB
        for q in range(1, 8):
            src = Dc if q == 1 else NN
            a(f"v_pk_fma_f32 {P(NN)}, {P(src)}, {P(X+2*q)}, {P(src)}")
            a(f"v_pk_fma_f32 {P(nxt)}, {P(cur)}, {P(X+2*q)}, {P(cur)}")
            a(f"v_pk_fma_f32 {P(NN)}, {P(Dc+2*q)}, {P(cur)}, {P(NN)}")
            cur, nxt = nxt, cur
            if q in mids: mids[q]()
        a(f"v_rcp_f32 v{RR}, v{cur}")
        a(f"v_rcp_f32 v{RR+1}, v{cur+1}")
        a(f"v_max3_f32 v{PM2}, v{cur}, v{cur+1}, v{PM2}")
        a(f"v_pk_mul_f32 {P(OUT)}, {P(NN)}, {P(RR)}")
    else:
        for q in range(8):
            a(f"v_pk_add_f32 {P(X+2*q)}, {P(X+2*q)}, s[{sONE}:{sONE+1}]")
        for q in sorted(mids): mids[q]()
        for r in range(16):
            a(f"v_rcp_f32 v{X+r}, v{X+r}")
        a("s_nop 0")
        a(f"v_pk_mul_f32 {P(OUT)}, {P(Dc)}, {P(X)}")
        for q in range(1, 8):
            a(f"v_pk_fma_f32 {P(OUT)}, {P(Dc+2*q)}, {P(X+2*q)}, {P(OUT)}")
    a(f"v_cvt_f64_f32 {P(OUT+2)}, v{OUT+1}")
    a(f"v_cvt_f64_f32 {P(OUT)}, v{OUT}")
    a(f"ds_add_f64 v{fa+1}, {P(OUT+2)} offset:{AGG+off}")
    a(f"ds_add_f64 v{fa}, {P(OUT)} offset:{AGG+off}")

def dma4(a):
    for i in range(4):
        a(f"s_add_u32 m0, s{sSLOT}, {i*1024}" if i else f"s_mov_b32 m0, s{sSLOT}")
        a("s_nop 0")
        a(f"buffer_load_dwordx4 {P(RP+2*i)}, s[{S_TAB}:{S_TAB+3}], 0 idxen offen lds")

def idxread(a):
    for i in range(4):
        a(f"ds_read_u16 v{RP+2*i}, v{GBA} offset:{4*i}")

def aread(a):
    for k in range(4):
        a(f"ds_read_b128 {v(A+4*k,4)}, v{RA+k}")

def bext(a, fa):
    a(f"ds_read_b32 v{BX0}, v{fa} offset:{BP}")
    a(f"ds_read_b32 v{BX0+1}, v{fa+1} offset:{BP}")
    a(f"ds_read_b32 v{BX1}, v{fa} offset:{BP+256}")
    a(f"ds_read_b32 v{BX1+1}, v{fa+1} offset:{BP+256}")

def dynloop(a, tag, slow):
    L = lambda x: f"K2_{tag}_{x}"
    for par in range(2):
        fa, fan = (FA0, FA1) if par == 0 else (FA1, FA0)
        o = 512*par
        a.label(L(f'LOOP{par}'))
        a(f"s_sub_u32 s{sREM}, s{sREM}, 1")
        a(f"s_cmp_eq_u32 s{sREM}, 0")
        a(f"s_cbranch_scc1 {L(f'TAIL{par}')}")
        if not slow and opt("lprio", 1):
            a(f"s_add_u32 s{sIT}, s{sIT}, 1")
            for it, p in DPRIO:
                a(f"s_cmp_lg_u32 s{sIT}, {it}")
                a(f"s_cbranch_scc1 {L(f'PR{par}{p}')}")
                a(f"s_setprio {p}")
                a.label(L(f'PR{par}{p}'))
        a(f"ds_read_b32 v{GBE}, v{VE} offset:{o+512}")
        a(f"ds_read2_b32 {P(GNR)}, v{VG} offset0:{o//4} offset1:{o//4+2}")
        a(f"s_cmp_lt_u32 s{sREM}, 2")
        a(f"s_cbranch_scc1 {L(f'NOI{par}')}")
        idxread(a)
        a(f"ds_read_b32 v{GBA}, v{VA} offset:{o+1536}")
        a.label(L(f'NOI{par}'))
        xphase(a, D0, mfma3(D1, 1))
        a("s_waitcnt vmcnt(0) lgkmcnt(0)")
        aread(a)
        a(f"v_add_u32 v{GBE}, v{GBE}, v{CE}")
        a(f"v_add_u32 v{fan}, v{GNR}, v{L8}")
        a(f"v_add_u32 v{fan+1}, v{GNR+1}, v{L8}")
        a(f"v_add_u32 v{GBA}, v{GBA}, v{CA}")
        a(f"ds_read_u16 v{AEXT+2}, v{GBE}")
        bext(a, fan)
        def mid():
            a(f"s_cmp_lt_u32 s{sREM}, 2")
            a(f"s_cbranch_scc1 {L(f'NOD{par}')}")
            a("s_waitcnt lgkmcnt(5)")
            dma4(a)
            a.label(L(f'NOD{par}'))
        fphase(a, D0, 0, slow, fa, [(opt("dmaq", 2), mid)])
        a("s_waitcnt lgkmcnt(2)")
        xphase(a, D1, mfma3(D0, 0))
        if par == 1:
            for r in (VA, VE, VG):
                a(f"v_add_u32 v{r}, 1024, v{r}")
        fphase(a, D1, 256, slow, fa)
        if par == 1:
            a(f"s_branch {L('LOOP0')}")
    for par in range(2):
        fa = FA0 if par == 0 else FA1
        a.label(L(f'TAIL{par}'))
        xphase(a, D0, mfma3(D1, 1))
        fphase(a, D0, 0, slow, fa)
        xphase(a, D1, None)
        fphase(a, D1, 256, slow, fa)
        a("s_branch K2_LOOPDONE")

def count_tiles(a):
    a(f"s_lshl_b32 s3, s{sM}, 2")
    a(f"s_add_u32 s3, s3, s{sW}")
    a(f"s_sub_i32 s{sREM}, s{sT}, s3")
    a(f"s_add_i32 s{sREM}, s{sREM}, 15")
    a(f"s_max_i32 s{sREM}, s{sREM}, 0")
    a(f"s_lshr_b32 s{sREM}, s{sREM}, 4")
    a(f"s_sub_i32 s3, s{sT}, s{sW}")
    a("s_add_i32 s3, s3, 15")
    a("s_max_i32 s3, s3, 0")
    a("s_lshr_b32 s3, s3, 2")
    a(f"s_min_u32 s3, s3, s{sM}")
    a(f"s_mul_i32 s3, s3, s{sDYN}")
    a(f"s_add_u32 s{sREM}, s{sREM}, s3")

def schain(a, Dc, Nr, Pr, first, mids=()):
    mids = dict(mids)
    if first:
        a(f"v_pk_add_f32 {P(PT)}, {P(X)}, s[{sONE}:{sONE+1}]")
        cur, nxt = PT, Pr
        q0 = 1
    else:
        cur, nxt = Pr, PT
        q0 = 0
    for q in range(q0, 8):
        src = Dc if (first and q == 1) else Nr
        a(f"v_pk_fma_f32 {P(Nr)}, {P(src)}, {P(X+2*q)}, {P(src)}")
        a(f"v_pk_fma_f32 {P(nxt)}, {P(cur)}, {P(X+2*q)}, {P(cur)}")
        a(f"v_pk_fma_f32 {P(Nr)}, {P(Dc+2*q)}, {P(cur)}, {P(Nr)}")
        cur, nxt = nxt, cur
        if q in mids: mids[q]()
    assert cur == Pr

def sidx(a, j):
    for i in range(4):
        a(f"ds_read_u16 v{RP+2*i}, v{SA} offset:{32*j + 4*i}")

def static_phase(a):
    K = KS
    dma4(a)
    for m in mfma3(D0, 0): a(m)
    a("s_nop 7")
    a("s_nop 3")
    for j in range(K):
        last = j == K-1
        if opt("lprio", 1) and j in SPRIO:
            a(f"s_setprio {SPRIO[j]}")
        if STAMP and LOOPST and j < 7: stamp(a, 1+j, True)
        if j+2 < K:
            sidx(a, j+2)
        if j == K-3:
            a(f"ds_read_b32 v{GBA}, v{VA}")
        if j == K-2:
            a(f"s_cmp_eq_u32 s{sREM}, 0")
            a("s_cbranch_scc1 K2_SN0")
            idxread(a)
            a(f"ds_read_b32 v{GBA}, v{VA} offset:512")
            a.label("K2_SN0")
        if last:
            a(f"s_cmp_eq_u32 s{sREM}, 0")
            a("s_cbranch_scc1 K2_SLAST0")
            a(f"ds_read_b32 v{GBE}, v{VE}")
            a(f"ds_read2_b32 {P(GNR)}, v{VG} offset0:0 offset1:2")
            a(f"s_cmp_lt_u32 s{sREM}, 2")
            a("s_cbranch_scc1 K2_SN1")
            idxread(a)
            a(f"ds_read_b32 v{GBA}, v{VA} offset:1024")
            a.label("K2_SN1")
        xphase(a, D0, mfma3(D1, 1))
        if j == opt("w2", -1) + 1 and j > 0:
            a(f"s_cmp_ge_u32 s{sW}, {(W2L_ + 63)//64}")
            a("s_cbranch_scc1 K2_NOW3")
            a("s_waitcnt vmcnt(1) lgkmcnt(0)")
            a("s_branch K2_NOW4")
            a.label("K2_NOW3")
        a("s_waitcnt vmcnt(0) lgkmcnt(0)")
        if j == opt("w2", -1) + 1 and j > 0: a.label("K2_NOW4")
        aread(a)
        nsmall = 1
        if j >= K-3:
            a(f"v_add_u32 v{GBA}, v{GBA}, v{CA}")
        if not last:
            a(f"ds_read_u16 v{AEXT+2}, v{SE} offset:{32*(j+1)}")
        else:
            a(f"v_add_u32 v{GBE}, v{GBE}, v{CE}")
            a(f"v_add_u32 v{FA0}, v{GNR}, v{L8}")
            a(f"v_add_u32 v{FA0+1}, v{GNR+1}, v{L8}")
            a(f"v_add_u32 v{VG}, 512, v{VG}")
            a(f"ds_read_u16 v{AEXT+2}, v{GBE}")
            bext(a, FA0)
            nsmall = 5
        def mid():
            if j >= K-2:
                a(f"s_cmp_lt_u32 s{sREM}, {j-(K-2)+1}")
                a(f"s_cbranch_scc1 K2_SND{j}")
            a(f"s_waitcnt lgkmcnt({nsmall})")
            dma4(a)
            if j == opt("w2", -1):
                a(f"s_cmp_ge_u32 s{sW}, {(W2L_ + 63)//64}")
                a("s_cbranch_scc1 K2_NOW2")
                a(f"v_lshlrev_b32 v{GBE}, 7, v0")
                a(f"s_mul_i32 s3, s{sWB}, {W2L_*128}")
                a(f"s_add_u32 s3, s3, {SPL*128}")
                a(f"buffer_load_dword v{GBE}, v{GBE}, s[{S_TABR}:{S_TABR+3}], s3 offen")
                a.label("K2_NOW2")
            if j >= K-2: a.label(f"K2_SND{j}")
        schain(a, D0, N0, P0, j == 0, [(opt("dmaq", 2), mid)])
        a("s_waitcnt lgkmcnt(0)")
        xphase(a, D1, mfma3(D0, 0))
        schain(a, D1, N1, P1, j == 0)
        if j in (1, 3):
            for r in (N0, P0, N1, P1):
                a(f"v_pk_mul_f32 {P(r)}, {P(r)}, s[{sSC}:{sSC+1}]")
    def sflush():
        for h, (Nr, Pr) in enumerate(((N0, P0), (N1, P1))):
            a(f"v_rcp_f32 v{X}, v{Pr}")
            a(f"v_rcp_f32 v{X+1}, v{Pr+1}")
            a(f"v_max3_f32 v{PM}, v{Pr}, v{Pr+1}, v{PM}")
            a(f"v_pk_mul_f32 {P(Nr)}, {P(Nr)}, {P(X)}")
            a(f"v_cvt_f64_f32 {P(X+2+4*h)}, v{Nr}")
            a(f"v_cvt_f64_f32 {P(X+4+4*h)}, v{Nr+1}")
            a(f"ds_add_f64 v{FA1}, {P(X+2+4*h)} offset:{AGG+256*h}")
            a(f"ds_add_f64 v{FA1+1}, {P(X+4+4*h)} offset:{AGG+256*h}")
        a(f"v_add_f32 v{X}, abs(v{N0}), abs(v{N0+1})")
        a(f"v_add_f32 v{X+1}, abs(v{N1}), abs(v{N1+1})")
        a(f"v_add_f32 v{X}, v{X}, v{X+1}")
        a(f"v_mul_f32 v{X}, 0, v{X}")
        a(f"v_add_f32 v{PM}, v{PM}, v{X}")
    sflush()
    a("s_branch K2_F_LOOP0")
    a.label("K2_SLAST0")
    xphase(a, D0, mfma3(D1, 1))
    schain(a, D0, N0, P0, False)
    xphase(a, D1, None)
    schain(a, D1, N1, P1, False)
    sflush()
    a("s_branch K2_LOOPDONE")

def first_addr(a):
    a("v_lshrrev_b32 v8, 4, v1")
    a(f"v_lshl_add_u32 v8, s{sW}, 2, v8")
    a(f"v_mul_u32_u24 v9, {BLK}, v8")
    a("v_lshlrev_b32 v11, 1, v1")
    a("v_and_b32 v11, 16, v11")
    a(f"v_add3_u32 v{SA}, v9, v11, s{sRECS}")
    a("v_bfe_u32 v8, v1, 4, 1")
    a("v_lshrrev_b32 v9, 5, v1")
    a("v_lshl_or_b32 v8, v9, 2, v8")
    a("v_and_b32 v9, 7, v1")
    a("v_xor_b32 v8, v8, v9")
    a(f"v_lshlrev_b32 v{RP+1}, 4, v8")
    a(f"v_xor_b32 v{RP+3}, 32, v{RP+1}")
    a(f"v_mov_b32 v{RP+5}, v{RP+1}")
    a(f"v_mov_b32 v{RP+7}, v{RP+3}")

def const_read2(a):
    a("v_lshlrev_b32 v3, 3, v1")
    a(f"v_add_u32 v3, {CONSTL + 5120}, v3")
    a(f"ds_read_b64 {P(GNR)}, v3 offset:1536")
    a(f"ds_read_b128 {v(VA,4)}, v{CADR} offset:3072")
    a(f"ds_read_b64 {P(CA)}, v3 offset:2048")
    a(f"ds_read_b128 {v(RA,4)}, v{CADR} offset:2048")
    a(f"ds_read_b128 {v(I0,4)}, v{CADR}")
    a(f"ds_read_b128 {v(I1,4)}, v{CADR} offset:1024")
    a(f"ds_read_b64 {P(AEXT)}, v3")
    a(f"ds_read_b64 {P(BX0+2)}, v3 offset:512")
    a(f"ds_read_b64 {P(BX1+2)}, v3 offset:1024")
    a(f"v_mov_b32 v{AEXT+3}, 0")

CHK = 36
NR = 12
def cnt_init(a, first):
    for r in range(4): a(f"v_mov_b32 v{4+r}, 0")
    a("v_mul_u32_u24 v3, 12, v1")
    a(f"v_mul_u32_u24 v8, {CAPN}, v1")
    a(f"v_add_u32 v8, {RECS//4}, v8")
    a("s_mov_b32 exec_lo, -1")
    a(f"s_mov_b32 exec_hi, {hex((1 << 18) - 1)}")
    a(f"ds_write2_b32 v3, v4, v8 offset0:{CNT//4} offset1:{CNT//4+1}")
    a(f"ds_write_b32 v3, v4 offset:{CNT+8}")
    if first == 1:
        a(f"ds_write_b64 v4, v[4:5] offset:{QC}")
    if first == 1:
        a(f"v_mov_b32 v3, {FLG}")
        a("ds_write_b128 v3, v[4:7]")
    a("s_mov_b64 exec, -1")

def prefill(a, first):
    a("v_subrev_u32 v2, 768, v0")
    a("v_lshlrev_b32 v2, 4, v2")
    for r in range(4): a(f"v_mov_b32 v{4+r}, 0xffff")
    for i in range(5):
        a(f"ds_write_b128 v2, v[4:7] offset:{RECS + 4096*i}") if RECS + 4096*i < 65536 else None
        if RECS + 4096*i >= 65536:
            if RECS + 4096*(i-1) < 65536:
                a(f"v_add_u32 v3, {RECS}, v2")
            a(f"ds_write_b128 v3, v[4:7] offset:{4096*i}")
    a(f"v_mov_b32 v8, {50*BLK - 5*4096}")
    a("v_cmpx_lt_u32 vcc, v2, v8")
    a(f"ds_write_b128 v3, v[4:7] offset:{4096*5}")
    a("s_mov_b64 exec, -1")
    for r in range(4): a(f"v_mov_b32 v{4+r}, 0")
    if first:
        for i in range(6):
            a(f"ds_write_b128 v2, v[4:7] offset:{AGG + 4096*i}")
        a(f"v_mov_b32 v8, {50*RS - 6*4096}")
        a("v_cmpx_lt_u32 vcc, v2, v8")
        a(f"ds_write_b128 v2, v[4:7] offset:{AGG + 4096*6}")
        a("s_mov_b64 exec, -1")

def gen_k2(a):
    CURK[0] = 2
    WARM = opt("warm", 1)
    FB = 96
    a.label("k2_kernel")
    a(f"s_cmp_ge_u32 s2, {NB}")
    a("s_cbranch_scc1 K2_END")
    a("s_load_dwordx2 s[14:15], s[0:1], 64")
    a("s_load_dwordx2 s[4:5], s[0:1], 0")
    a("s_load_dwordx2 s[12:13], s[0:1], 48")
    stamp_start(a)
    stamp(a, 0)
    prio(a, 3)
    if opt("rot", 1):
        a("v_add_u32 v0, 768, v0")
        a("v_and_b32 v0, 1023, v0")
    a("v_lshrrev_b32 v2, 6, v0")
    a("v_and_b32 v1, 63, v0")
    a(f"v_readfirstlane_b32 s{sW}, v2")
    a("s_and_b32 s3, s2, 7")
    a("s_lshl_b32 s3, s3, 5")
    a(f"s_lshr_b32 s{sB}, s2, 3")
    a(f"s_add_u32 s{sB}, s{sB}, s3")
    a("v_mul_u32_u24 v12, 0x5556, v0")
    a("v_lshrrev_b32 v12, 16, v12")
    if opt("toff", 1):
        a("v_lshlrev_b32 v3, 2, v12")
        a("v_and_b32 v4, 31, v12")
        a("v_lshrrev_b32 v12, 5, v12")
        a("v_lshl_add_u32 v12, v4, 3, v12")
        a(f"s_lshl_b32 s3, s{sB}, 10")
        a(f"s_mov_b32 s{S_OFF+2}, {NB*1024}")
    else:
        a("v_lshlrev_b32 v3, 10, v12")
        a(f"s_lshl_b32 s3, s{sB}, 2")
        a(f"s_mov_b32 s{S_OFF+2}, {NP*1024}")
    a(f"s_mov_b32 s{S_OFF+3}, 0x00020000")
    a(f"s_cmp_ge_u32 s{sW}, 12")
    a(f"s_cselect_b32 s{sDYN}, 1, 0")
    a("s_cbranch_scc1 K2_HELP")
    def setup():
        srd(a, S_TABR, 14, 15, N*128, WS_TAB)
        a(f"s_mov_b32 s{S_TAB}, s{S_TABR}")
        a(f"s_or_b32 s{S_TAB+1}, s{S_TABR+1}, {128 << 16}")
        a(f"s_mov_b32 s{S_TAB+2}, {N}")
        a(f"s_mov_b32 s{S_TAB+3}, 0x00020000")
        srd(a, S_OUT, 12, 13, N*128)
        srd(a, S_REC, 14, 15, NP*RSTR, WS_REC)
        a(f"s_mov_b32 s{sSC}, 0x2d800000")
        a(f"s_mov_b32 s{sSC+1}, 0x2d800000")
        a(f"s_movk_i32 s{sCAPN}, {CAPN}")
        a(f"s_mov_b32 s{sRECS}, {RECS}")
        a(f"s_mov_b32 s{sMODE}, 0")
        a(f"s_mov_b32 s{sMODE2}, 0")
        a(f"s_mov_b32 s{sCHUNK}, 0")
        a(f"s_mov_b32 s{sK}, {KS}")
        a(f"s_mov_b32 s{sM}, {MD}")
        a(f"s_mov_b32 s{sONE}, 1.0")
        a(f"s_mov_b32 s{sONE+1}, 1.0")
        a(f"s_lshl_b32 s{sSLOT}, s{sW}, 12")
        a(f"s_add_u32 s{sSLOT}, s{sSLOT}, {STG}")
        a(f"s_mul_i32 s{sNODE0}, s{sB}, {NPB}")
    def rec_prep(first):
        a("v_mul_u32_u24 v3, 0x5556, v0")
        a("v_lshrrev_b32 v4, 16, v3")
        if not first:
            if opt("toff", 1):
                a("v_and_b32 v3, 31, v4")
                a("v_lshrrev_b32 v12, 5, v4")
                a("v_lshl_add_u32 v12, v3, 3, v12")
            else:
                a("v_mov_b32 v12, v4")
        a("v_mul_u32_u24 v3, 3, v4")
        a("v_sub_u32 v3, v0, v3")
        a("v_lshlrev_b32 v3, 2, v3")
        if not first:
            a(f"v_add_u32 v3, s{sCHUNK}, v3")
        a(f"v_mul_u32_u24 v4, {RSTR//4}, v12")
        if first and opt("toff", 1):
            a(f"v_cmp_gt_u32 s[86:87], {hex(NP)}, v12") if False else None
            a(f"v_mov_b32 v6, {NP}")
            a("v_cmp_lt_u32 s[86:87], v12, v6")
    VM = lambda j: f"s[{sVAL+2*j}:{sVAL+2*j+1}]"
    def rec_masks():
        a(f"v_lshrrev_b32 v5, 16, v{OFFW}")
        a("v_sub_u32 v2, v5, v3")
        for j in (0, 4, 8):
            a(f"v_cmp_lt_i32 {VM(j)}, {12*(j>>2)+(j&3)}, v2")
    def rec_masks2():
        for j in range(NR):
            if j & 3: a(f"v_cmp_lt_i32 {VM(j)}, {12*(j>>2)+(j&3)}, v2")
    def orm(r, dst):
        a(f"s_or_b64 s[84:85], {VM(4*r)}, {VM(4*r+1)}")
        a(f"s_or_b64 s[84:85], s[84:85], {VM(4*r+2)}")
        a(f"s_or_b64 {dst}, s[84:85], {VM(4*r+3)}")
    def rec_loads(first, lab):
        a(f"v_and_b32 v6, 0xffff, v{OFFW}")
        if not first:
            a(f"v_lshrrev_b32 v5, 16, v{OFFW}")
        a("v_add_u32 v4, v6, v4")
        a("v_add_lshl_u32 v5, v4, v5, 2")
        a("v_add_lshl_u32 v4, v4, v3, 2")
        a("v_add_u32 v5, v5, v3")
        for r in range(3):
            if first: a(f"s_or_b64 exec, {VM(4*r)}, {VM(4*r)}")
            else: orm(r, "exec")
            if r == 2: a(f"s_cbranch_scc0 {lab}")
            a(f"buffer_load_dword v{44+r}, v5, s[{S_REC}:{S_REC+3}], 0 offen offset:{12*r}")
            a(f"buffer_load_dwordx4 v[{32+4*r}:{35+4*r}], v4, s[{S_REC}:{S_REC+3}], 0 offen offset:{48*r}")
        a.label(lab)
        a("s_mov_b64 exec, -1")
    def fixups(static):
        a(f"s_lshl_b32 s3, s{sW}, 5")
        if static:
            a(f"s_lshl_b32 s4, s{sM}, 9")
            a("s_add_u32 s3, s3, s4")
        for r in (VA, VE, VG):
            a(f"v_add_u32 v{r}, s3, v{r}")
        for k in range(4):
            a(f"v_add_u32 v{RA+k}, s{sSLOT}, v{RA+k}")
    def qpoll(lab, off=0):
        a(f"v_mov_b32 v5, {QC+off}")
        a.label(lab)
        a("ds_read_b32 v8, v5")
        a("s_waitcnt lgkmcnt(0)")
        a("v_readfirstlane_b32 s3, v8")
        a("s_cmp_lt_u32 s3, 4")
        a(f"s_cbranch_scc1 {lab}")
    a("s_waitcnt lgkmcnt(0)")
    a(f"s_add_u32 s{S_OFF}, s14, {WS_OFF}")
    a(f"s_addc_u32 s{S_OFF+1}, s15, 0")
    a(f"buffer_load_dword v{OFFW}, v3, s[{S_OFF}:{S_OFF+3}], s3 offen")
    if opt("b0e", 1): a("s_barrier")
    srd(a, S_REC, 14, 15, NP*RSTR, WS_REC)
    rec_prep(True)
    if not opt("b0e", 1): a("s_barrier")
    a("s_waitcnt vmcnt(0)")
    if not opt("stb2", 0): stamp(a, 2)
    if opt("toff", 1):
        a(f"v_cndmask_b32 v{OFFW}, 0, v{OFFW}, s[86:87]")
    rec_masks()
    rec_loads(True, "K2_RL1")
    a(f"s_mov_b32 s{sCHUNK}, 0")
    setup()
    a(f"s_lshr_b32 s{sWB}, s2, 3")
    rec_masks2()
    first_addr(a)
    a(f"v_mov_b32 v{PM}, 0")
    a(f"v_mov_b32 v{PM2}, 0")
    a(f"s_mul_i32 s3, s{sWB}, {W1L_*128}")
    a("v_lshlrev_b32 v17, 7, v0")
    a("v_add_u32 v17, s3, v17")
    a(f"v_lshrrev_b32 v16, 16, v{OFFW}")
    a(f"v_cmp_lt_u32 vcc, {CHK}, v16")
    a("s_nop 1")
    a("s_cbranch_vccz K2_PASS")
    a("s_mov_b64 exec, vcc")
    a(f"v_mov_b32 v3, {FLG}")
    a("ds_max_u32 v3, v16")
    a("s_mov_b64 exec, -1")
    a.label("K2_PASS")
    a("v_mov_b32 v2, 1")
    a("v_min_u32 v18, 48, v1")
    a("v_mul_u32_u24 v19, 12, v18")
    a(f"v_mul_u32_u24 v18, {CAPN}, v18")
    a(f"v_add_u32 v18, {RECS//4 + CAPN}, v18")
    a("v_lshlrev_b32 v3, 4, v1")
    a(f"v_add_u32 v{CADR}, {CONSTL}, v3")
    qpoll("K2_QPOLL0", 4)
    const_read2(a)
    a(f"s_mul_i32 s84, s{sW}, {4*BLK}")
    a(f"s_mul_i32 s85, s{sW}, {4*RS}")
    a("s_waitcnt lgkmcnt(0)")
    a(f"v_add_u32 v{SE}, s84, v{GNR}")
    a(f"v_add_u32 v{FA1}, s85, v{GNR+1}")
    a(f"v_add_u32 v{FA1+1}, {RS}, v{FA1}")
    fixups(True)
    orm(2, "s[84:85]")
    a(f"s_cselect_b32 s{sTN}, 1, 0")
    def warm1():
        a(f"s_cmp_ge_u32 s{sW}, {(W1L_ + 63)//64}")
        a("s_cbranch_scc1 K2_NOWARM")
        a(f"buffer_load_dword v{GBE}, v17, s[{S_TABR}:{S_TABR+3}], 0 offen")
        a.label("K2_NOWARM")
    a("s_waitcnt vmcnt(0)")
    stamp(a, 3)
    for r in range(3):
        if r == 2:
            a(f"s_cbranch_scc0 K2_RK8")
        for j in range(4*r, 4*r+4):
            a(f"v_lshlrev_b32_sdwa v{48+j}, 2, v{44+r} dst_sel:DWORD dst_unused:UNUSED_PAD src0_sel:DWORD src1_sel:BYTE_{j&3}")
        for j in range(4*r, 4*r+4):
            a(f"s_mov_b64 exec, {VM(j)}")
            a(f"ds_add_rtn_u32 v{60+j}, v{48+j}, v2 offset:{CNT}")
        a("s_mov_b64 exec, -1")
    a.label("K2_RK8")
    if WARM:
        warm1()
    a("s_waitcnt lgkmcnt(0)")
    a("s_barrier")
    stamp(a, 4)
    a(f"ds_read2_b32 v[8:9], v19 offset0:{CNT//4+1} offset1:{CNT//4+2}")
    for j in range(NR):
        if j == 8:
            a(f"s_cmp_eq_u32 s{sTN}, 0")
            a("s_cbranch_scc1 K2_PL0")
        if j >= 4: a(f"s_mov_b64 exec, {VM(j)}")
        a(f"ds_read_b32 v{20+j}, v{48+j} offset:{CNT-4}")
    a.label("K2_PL0")
    a("s_mov_b64 exec, -1")
    a("s_waitcnt lgkmcnt(0)")
    a("v_add_u32 v8, v8, v9")
    a("v_cmp_gt_u32 vcc, v8, v18")
    a("s_nop 1")
    a("s_cbranch_vccnz K2_CAREFUL")
    for j in range(NR):
        if j == 8:
            a(f"s_cbranch_scc1 K2_PL4")
        a(f"s_mov_b64 exec, {VM(j)}")
        a(f"v_add_lshl_u32 v{48+j}, v{60+j}, v{20+j}, 2")
        a(f"ds_write_b32 v{48+j}, v{32+j}")
    a.label("K2_PL4")
    a("s_mov_b64 exec, -1")
    a("s_waitcnt lgkmcnt(0)")
    if opt("stb2", 0): stamp(a, 2)
    a("s_barrier")
    stamp(a, 5)
    a(f"s_cmp_lg_u32 s{sMODE}, 0")
    a("s_cbranch_scc1 K2_SLOWHEAD")
    sidx(a, 0)
    a("s_waitcnt lgkmcnt(0)")
    dma4(a)
    stamp(a, 6)
    sidx(a, 1)
    a(f"v_mov_b32 v2, {FLG+8}")
    a("ds_read_b64 v[4:5], v2")
    a(f"ds_read_u16 v{AEXT+2}, v{SE}")
    bext(a, FA1)
    a("s_waitcnt lgkmcnt(5)")
    a(f"v_readfirstlane_b32 s{sT}, v4")
    a(f"v_readfirstlane_b32 s{sOVF}, v5")
    count_tiles(a)
    a(f"s_mov_b32 s{sIT}, 100")
    prio(a, SP0)
    a("s_waitcnt vmcnt(0)")
    stamp(a, 1)
    aread(a)
    a("s_waitcnt lgkmcnt(0)")
    static_phase(a)
    a.label("K2_HELP")
    a(f"s_sub_u32 s{sNT}, s{sW}, 12")
    a("v_lshlrev_b32 v13, 4, v1")
    a("v_lshrrev_b32 v5, 3, v1")
    a("v_and_b32 v6, 7, v1")
    a("v_xor_b32 v6, v6, v5")
    a("v_lshlrev_b32 v6, 4, v6")
    a("v_lshl_add_u32 v6, v5, 7, v6")
    a(f"s_mul_i32 s{sNODE0}, s{sB}, {NPB}")
    a(f"s_lshl_b32 s3, s{sNT}, 11")
    a(f"s_lshl_b32 s84, s{sNODE0}, 7")
    a("s_add_u32 s84, s84, s3")
    a("v_add_u32 v6, s84, v6")
    a("v_mov_b32 v12, v6")
    cnt_init(a, 1)
    a(f"s_add_u32 m0, s3, {CONSTL}")
    a("s_waitcnt lgkmcnt(0)")
    a("s_barrier")
    srd(a, S_CON, 14, 15, 8192*4, WS_CONST)
    a(f"s_cmp_eq_u32 s{sNT}, 3")
    a(f"buffer_load_dwordx4 v13, s[{S_CON}:{S_CON+3}], s3 offen lds")
    a("s_cselect_b32 exec_hi, 0, -1")
    a(f"buffer_load_dwordx4 v13, s[{S_CON}:{S_CON+3}], s3 offen offset:1024 lds")
    a("s_mov_b64 exec, -1")
    a(f"s_add_u32 m0, s3, {PST + 16384}")
    srd(a, S_X, 4, 5, N*128)
    a(f"buffer_load_dwordx4 v12, s[{S_X}:{S_X+3}], 0 offen lds")
    a(f"buffer_load_dwordx4 v12, s[{S_X}:{S_X+3}], 0 offen offset:1024 lds")
    a(f"s_add_u32 m0, s3, {PST}")
    a("s_add_u32 s4, s3, 8192")
    for i in range(2):
        a(f"buffer_load_dwordx4 v13, s[{S_CON}:{S_CON+3}], s4 offen offset:{1024*i} lds")
    setup()
    def hprep():
        first_addr(a)
        for i in range(4): a(f"v_mov_b32 v{RP+2*i}, -1")
        a("v_min_u32 v12, 48, v1")
        a("v_mul_u32_u24 v13, 12, v12")
        a("v_cmp_gt_u32 s[84:85], 48, v1")
        a(f"v_mul_u32_u24 v27, {RS}, v12")
        a(f"v_mul_u32_u24 v26, {BLK}, v12")
        a("v_lshrrev_b32 v28, 2, v26")
        a(f"v_add_u32 v28, {RECS//4}, v28")
        a("v_subrev_u32 v29, 48, v1")
        a(f"v_mov_b32 v11, s{sK}")
        a("v_cndmask_b32 v12, v29, v11, s[84:85]")
        a("v_cndmask_b32 v24, 1, 14, s[84:85]")
        a("v_lshl_add_u32 v26, v12, 5, v26")
        a(f"v_add_u32 v26, s{sRECS}, v26")
        a(f"s_lshl_b32 s60, s{sM}, 4")
        a(f"s_mul_i32 s61, s{sM}, 384")
        a(f"s_add_u32 s61, s61, {GT}")
    def tile_addrs():
        a("v_lshrrev_b32 v7, 4, v1")
        a("v_and_b32 v25, 15, v1")
        a(f"s_lshl_b32 s3, s{sNT}, 4")
        a("v_add_u32 v25, s3, v25")
        a(f"v_mul_u32_u24 v6, {RS}, v25")
        a("v_lshl_add_u32 v6, v7, 5, v6")
        a("v_mul_u32_u24 v10, 12, v25")
        a("v_cmp_gt_u32 s[86:87], 50, v25")
        a("v_lshlrev_b32 v3, 4, v1")
        a(f"v_add_u32 v{CADR}, {CONSTL}, v3")
    hprep()
    a(f"v_mov_b32 v5, {QC+4}")
    a("v_mov_b32 v8, 1")
    a("s_waitcnt vmcnt(4)")
    a("s_mov_b64 exec, 1")
    a("ds_add_u32 v5, v8")
    a("s_mov_b64 exec, -1")
    prefill(a, 1)
    tile_addrs()
    a("v_and_b32 v2, 7, v1")
    a("v_xor_b32 v2, v2, v7")
    a("v_lshlrev_b32 v2, 4, v2")
    a("v_lshl_add_u32 v2, v25, 7, v2")
    a(f"v_add_u32 v2, {PST + 16384}, v2")
    a("v_xor_b32 v4, 64, v2")
    a(f"v_add_u32 v3, {PST}, v3")
    a(f"v_mov_b32 v5, {QC}")
    a("v_mov_b32 v8, 1")
    a("s_waitcnt vmcnt(0)")
    if not opt("stb2", 0): stamp(a, 2)
    a("s_mov_b64 exec, 1")
    a("ds_add_u32 v5, v8")
    a("s_mov_b64 exec, -1")
    qpoll("K2_QPOLL")
    a("ds_read_b128 v[16:19], v2")
    a("ds_read_b128 v[20:23], v4")
    for q in range(8):
        a(f"ds_read_b128 v[{32+4*q}:{35+4*q}], v3 offset:{1024*q}")
    a(f"s_mov_b32 s84, {NLOG2E:#x}")
    a(f"s_mov_b32 s85, {NLOG2E:#x}")
    a("s_mov_b32 s3, 0x05040100")
    a("s_mov_b32 s4, 0x07060302")
    a("s_waitcnt lgkmcnt(0)")
    for ks in range(2):
        for ft in range(4):
            D = 64 + 4*ft; W = 32 + 8*ft + 4*ks
            a(f"v_mfma_f32_16x16x32_bf16 v[{D}:{D+3}], v[{W}:{W+3}], v[{16+4*ks}:{19+4*ks}], " + ("0" if ks == 0 else f"v[{D}:{D+3}]"))
    a("s_nop 4")
    for q in range(8):
        if q == 6: a("s_nop 0")
        a(f"v_pk_mul_f32 {P(64+2*q)}, {P(64+2*q)}, s[84:85]")
    for ft in range(4):
        for h in range(2):
            B = 64 + 4*ft + 2*h; O = 32 + 8*ft + 4*h
            a(f"v_cvt_pk_bf16_f32 v8, v{B}, v{B+1}")
            a("v_lshlrev_b32 v16, 16, v8")
            a("v_and_b32 v17, 0xffff0000, v8")
            a(f"v_pk_add_f32 v[16:17], {P(B)}, v[16:17] neg_lo:[0,1] neg_hi:[0,1]")
            a("v_cvt_pk_bf16_f32 v16, v16, v17")
            a(f"v_perm_b32 v{O}, v16, v8, s3")
            a(f"v_perm_b32 v{O+2}, v16, v8, s4")
        a("s_mov_b64 exec, s[86:87]")
        a(f"ds_write_b128 v6, v[{32+8*ft}:{35+8*ft}] offset:{BP + 128*ft}")
        a(f"ds_write_b128 v6, v[{36+8*ft}:{39+8*ft}] offset:{BP + 128*ft + 16}")
        a("s_mov_b64 exec, -1")
    a(f"v_mov_b32 v{PM}, 0")
    a(f"v_mov_b32 v{PM2}, 0")
    a.label("K2_HPASS")
    a.label("K2_HPASS2")
    a("s_waitcnt vmcnt(0) lgkmcnt(0)")
    stamp(a, 3)
    a("s_barrier")
    stamp(a, 4)
    a(f"ds_read2_b32 v[18:19], v13 offset0:{CNT//4+1} offset1:{CNT//4+2}")
    a(f"ds_read2_b32 v[22:23], v10 offset0:{CNT//4+1} offset1:{CNT//4+2}")
    a("s_waitcnt lgkmcnt(1)")
    a("v_add_u32 v8, v18, v19")
    a("v_sub_u32 v8, v8, v28")
    a(f"v_cmp_lt_u32 vcc, s{sCAPN}, v8")
    a(f"v_min_u32 v8, s{sCAPN}, v8")
    a("v_add_u32 v8, 7, v8")
    a("v_lshrrev_b32 v8, 3, v8")
    a("v_sub_u32 v8, v8, v12 clamp")
    a("v_min_u32 v8, v8, v24")
    a("v_mov_b32 v11, v8")
    a("s_cmp_lg_u64 vcc, 0")
    a(f"s_cselect_b32 s{sOVF}, 1, 0")
    scan64(a, 11)
    a(f"v_readlane_b32 s{sT}, v11, 63")
    a("v_sub_u32 v11, v11, v8")
    a(f"v_add_u32 v11, s{sNT}, v11")
    a(f"s_lshl_b32 s3, s{sNT}, 5")
    a("v_add_u32 v26, s3, v26")
    a(f"v_subrev_u32 v8, s{sNT}, v8")
    def pos():
        a("v_lshlrev_b32 v18, 3, v11")
        a("v_and_b32 v19, 0x78, v18")
        a("v_lshrrev_b32 v20, 4, v11")
        a("v_lshl_add_u32 v19, v20, 9, v19")
        a("v_cmp_gt_u32 s[84:85], s60, v11")
        a(f"v_add_u32 v19, {GT + 384}, v19")
        a("v_add_u32 v18, s61, v18")
        a("v_cndmask_b32 v18, v18, v19, s[84:85]")
    a("v_cmpx_lt_i32 vcc, 0, v8")
    a("s_nop 1")
    a("s_cbranch_execz K2_BLD1")
    a.label("K2_BLD0")
    pos()
    a("ds_write_b64 v18, v[26:27]")
    a("v_add_u32 v26, 128, v26")
    a("v_add_u32 v11, 4, v11")
    a("v_subrev_u32 v8, 4, v8")
    a("v_cmpx_lt_i32 vcc, 0, v8")
    a("s_nop 1")
    a("s_cbranch_execnz K2_BLD0")
    a.label("K2_BLD1")
    a("s_mov_b64 exec, -1")
    a(f"s_add_u32 s3, s{sT}, s{sNT}")
    a("v_mov_b32 v11, s3")
    a(f"v_mov_b32 v26, {RECS + NPB*BLK}")
    a(f"v_mov_b32 v27, {NPB*RS}")
    pos()
    a("ds_write_b64 v18, v[26:27]")
    a(f"s_add_u32 s{sT}, s{sT}, 3")
    a(f"s_lshr_b32 s{sT}, s{sT}, 2")
    a(f"v_mov_b32 v18, s{sT}")
    a(f"v_mov_b32 v19, s{sOVF}")
    a(f"v_mov_b32 v20, {FLG + 8}")
    a("ds_write_b64 v20, v[18:19]")
    count_tiles(a)
    a("s_waitcnt lgkmcnt(0)")
    if opt("stb2", 0): stamp(a, 2)
    a("s_barrier")
    stamp(a, 5)
    a.label("K2_DYNHEAD")
    def corr():
        a(f"s_cmp_eq_u32 s{sDYN}, 0")
        a("s_cbranch_scc1 K2_NOCORR")
        const_read2(a)
        a("v_add_u32 v22, v22, v23")
        a(f"v_mul_u32_u24 v23, {CAPN}, v25")
        a("v_sub_u32 v22, v22, v23")
        a("v_cmp_gt_u32 s[84:85], 48, v25")
        a(f"v_subrev_u32 v22, {RECS//4}, v22")
        a(f"s_lshl_b32 s3, s{sK}, 3")
        a("v_mov_b32 v23, s3")
        a(f"v_min_u32 v22, s{sCAPN}, v22")
        a("v_add_u32 v21, 7, v22")
        a("v_cndmask_b32 v23, 0, v23, s[84:85]")
        a("v_and_b32 v21, -8, v21")
        a("v_max_u32 v21, v21, v23")
        a("v_sub_u32 v21, v22, v21")
        a("v_cvt_f32_i32 v21, v21")
        for r in range(16):
            a(f"v_exp_f32 v{32+r}, v{64+r}")
        for q in range(8):
            a(f"v_pk_add_f32 {P(32+2*q)}, {P(32+2*q)}, s[{sONE}:{sONE+1}]")
        for r in range(16):
            a(f"v_rcp_f32 v{32+r}, v{32+r}")
        for q in range(8):
            a(f"v_pk_mul_f32 {P(64+2*q)}, {P(64+2*q)}, {P(32+2*q)}")
        a("s_mov_b64 exec, s[86:87]")
        for q in range(8):
            a(f"v_pk_mul_f32 {P(64+2*q)}, {P(64+2*q)}, v[20:21] op_sel:[0,1] op_sel_hi:[1,1]")
        for r in range(16):
            a(f"v_cvt_f64_f32 v[{32+2*r}:{33+2*r}], v{64+r}")
            a(f"ds_add_f64 v6, v[{32+2*r}:{33+2*r}] offset:{AGG + 128*(r>>2) + 8*(r&3)}")
        a("s_mov_b64 exec, -1")
        a("s_waitcnt lgkmcnt(15)")
        a("s_waitcnt lgkmcnt(15)") if False else None
        fixups(False)
        a.label("K2_NOCORR")
    if opt("cfirst", 1): corr()
    a(f"s_mov_b32 s{sIT}, 0")
    a(f"s_cmp_eq_u32 s{sREM}, 0")
    a("s_cbranch_scc1 K2_DYN0")
    a(f"ds_read_b32 v{GBA}, v{VA}")
    a(f"ds_read_b32 v{GBE}, v{VE}")
    a(f"ds_read2_b32 {P(GNR)}, v{VG} offset0:0 offset1:2")
    a("s_waitcnt lgkmcnt(2)")
    a(f"v_add_u32 v{GBA}, v{GBA}, v{CA}")
    idxread(a)
    a(f"ds_read_b32 v{GBA}, v{VA} offset:512")
    a("s_waitcnt lgkmcnt(1)")
    dma4(a)
    stamp(a, 6)
    a(f"v_add_u32 v{GBE}, v{GBE}, v{CE}")
    a(f"v_add_u32 v{FA0}, v{GNR}, v{L8}")
    a(f"v_add_u32 v{FA0+1}, v{GNR+1}, v{L8}")
    a(f"v_add_u32 v{VG}, 512, v{VG}")
    a(f"ds_read_u16 v{AEXT+2}, v{GBE}")
    bext(a, FA0)
    a("s_waitcnt lgkmcnt(5)")
    a(f"v_add_u32 v{GBA}, v{GBA}, v{CA}")
    a(f"s_cmp_lt_u32 s{sREM}, 2")
    a("s_cbranch_scc1 K2_DYN0")
    idxread(a)
    a(f"ds_read_b32 v{GBA}, v{VA} offset:1024")
    a.label("K2_DYN0")
    if not opt("cfirst", 1): corr()
    a(f"s_cmp_eq_u32 s{sREM}, 0")
    a("s_cbranch_scc1 K2_LOOPDONE")
    a("s_waitcnt vmcnt(0)")
    stamp(a, 1)
    aread(a)
    a("s_waitcnt lgkmcnt(0)")
    a(f"s_cmp_lt_u32 s{sREM}, 2")
    a("s_cbranch_scc1 K2_DYN1")
    dma4(a)
    a.label("K2_DYN1")
    for m in mfma3(D0, 0): a(m)
    a(f"v_add_u32 v{GBA}, v{GBA}, v{CA}")
    a(f"s_cmp_lg_u32 s{sMODE}, 0")
    a("s_nop 7")
    a("s_nop 1")
    a("s_cbranch_scc1 K2_S_LOOP0")
    dynloop(a, "F", False)
    a.label("K2_LOOPDONE")
    a("v_mov_b32 v2, 0x76800000")
    a("v_mov_b32 v3, 0x5f800000")
    a(f"v_cmp_nlt_f32 vcc, v{PM}, v2")
    a(f"v_cmp_nlt_f32 s[84:85], v{PM2}, v3")
    a("s_or_b64 vcc, vcc, s[84:85]")
    a("s_cbranch_scc0 K2_AFTER")
    a(f"v_mov_b32 v3, {FLG+4}")
    a("v_mov_b32 v2, 1")
    a("ds_write_b32 v3, v2")
    a.label("K2_AFTER")
    stamp(a, 7)
    a(f"v_mov_b32 v3, {FLG}")
    a(f"s_cmp_eq_u32 s{sDYN}, 0")
    a("s_cbranch_scc1 K2_B4")
    a("v_lshrrev_b32 v7, 4, v1")
    a(f"s_lshl_b32 s3, s{sNT}, 4")
    a("v_and_b32 v9, 15, v1")
    a("v_add_u32 v9, s3, v9")
    a(f"v_add_u32 v6, s{sNODE0}, v9")
    a("v_lshlrev_b32 v6, 7, v6")
    a("v_lshl_add_u32 v4, v7, 4, v6")
    a(f"buffer_load_dwordx4 v[16:19], v4, s[{S_X}:{S_X+3}], 0 offen")
    a(f"buffer_load_dwordx4 v[20:23], v4, s[{S_X}:{S_X+3}], 0 offen offset:64")
    a("v_lshlrev_b32 v4, 4, v1")
    for hq in range(4):
        a(f"s_mov_b32 s3, {16384 + 4096*hq}")
        for q in range(4):
            r = (96 if hq < 2 else 48) + 16*(hq & 1) + 4*q if hq >= 2 else (24 + 0)
            r = [96, 112 - 80, 48, 64][hq] + 4*q
            a(f"buffer_load_dwordx4 v[{r}:{r+3}], v4, s[{S_CON}:{S_CON+3}], s3 offen offset:{1024*q}")
    a(f"v_mul_u32_u24 v8, {RS}, v9")
    a("v_lshl_add_u32 v8, v7, 6, v8")
    a("v_lshl_add_u32 v6, v7, 5, v6")
    a("s_mov_b32 s86, 0xbfb8aa3b")
    a("s_mov_b32 s87, 0xbfb8aa3b")
    a("s_waitcnt vmcnt(8)")
    for ks in range(2):
        for ft in range(4):
            W = [96, 104, 32, 40][ft] + 4*ks
            a(f"v_mfma_f32_16x16x32_bf16 v[{80+4*ft}:{83+4*ft}], v[{W}:{W+3}], v[{16+4*ks}:{19+4*ks}], " + ("0" if ks == 0 else f"v[{80+4*ft}:{83+4*ft}]"))
    a("s_nop 4")
    for q in range(8):
        if q == 6: a("s_nop 0")
        a(f"v_pk_mul_f32 {P(80+2*q)}, {P(80+2*q)}, s[86:87]")
    a("s_waitcnt vmcnt(0)")
    a.label("K2_B4")
    a("s_waitcnt lgkmcnt(0)")
    a("s_barrier")
    stamp(a, 8)
    a("ds_read_b64 v[12:13], v3")
    a(f"s_cmp_eq_u32 s{sDYN}, 0")
    a("s_cbranch_scc1 K2_NOAGG")
    for ks in range(2):
        for h in range(4):
            r = 16 + 16*ks + 4*h
            a(f"ds_read_b128 v[{r}:{r+3}], v8 offset:{AGG + 256*ks + 16*h}")
    a("s_waitcnt lgkmcnt(8)")
    a("s_branch K2_FL")
    a.label("K2_NOAGG")
    a("s_waitcnt lgkmcnt(0)")
    a.label("K2_FL")
    a("v_readfirstlane_b32 s84, v12")
    a("v_readfirstlane_b32 s85, v13")
    a(f"s_cmp_lg_u32 s{sOVF}, 0")
    a("s_cbranch_scc1 K2_RETRY")
    a(f"s_add_u32 s3, s{sCHUNK}, {CHK}")
    a("s_cmp_gt_u32 s84, s3")
    a("s_cbranch_scc1 K2_NEXTCHUNK")
    a(f"s_andn2_b32 s85, s85, s{sMODE}")
    a("s_cbranch_scc1 K2_GOSLOW")
    a(f"s_cmp_eq_u32 s{sDYN}, 0")
    a("s_cbranch_scc1 K2_FIN")
    a("s_mov_b32 s86, 0xbfb8aa3b")
    a("s_mov_b32 s87, 0xbfb8aa3b")
    a(f"s_mov_b32 s84, {NLN2:#x}")
    a(f"s_mov_b32 s85, {NLN2:#x}")
    for r in range(16):
        if r % 2 == 0: a(f"s_waitcnt lgkmcnt({7 - r//2})")
        a(f"v_cvt_f32_f64 v{96+r}, v[{16+2*r}:{17+2*r}]")
        if r % 2 == 1:
            a(f"v_pk_mul_f32 {P(95+r)}, {P(95+r)}, s[84:85]")
            a(f"v_cvt_pk_bf16_f32 v{112+r//2}, v{95+r}, v{96+r}")
    a(f"v_cmp_gt_u32 vcc, {NPB}, v9")
    a("v_mov_b32 v12, s86")
    a("v_mov_b32 v13, s86")
    for ks in range(2):
        for ft in range(4):
            a(f"v_mfma_f32_16x16x32_bf16 v[{16+4*ft}:{19+4*ft}], v[{48+8*ft+4*ks}:{51+8*ft+4*ks}], v[{112+4*ks}:{115+4*ks}], " + ("0" if ks == 0 else f"v[{16+4*ft}:{19+4*ft}]"))
    a("s_nop 4")
    for q in range(8):
        if q == 6: a("s_nop 0")
        a(f"v_pk_fma_f32 {P(80+2*q)}, {P(16+2*q)}, s[86:87], {P(80+2*q)}")
    for r in range(16):
        a(f"v_exp_f32 v{16+r}, v{80+r}")
    for q in range(8):
        a(f"v_pk_fma_f32 {P(16+2*q)}, {P(16+2*q)}, s[86:87], v[12:13]")
    for r in range(16):
        a(f"v_rcp_f32 v{16+r}, v{16+r}")
    for q in range(8):
        a(f"v_pk_mul_f32 {P(16+2*q)}, {P(16+2*q)}, {P(80+2*q)}")
    for q in range(8):
        a(f"v_cvt_pk_bf16_f32 v{32+q}, v{16+2*q}, v{17+2*q}")
    a("s_mov_b64 exec, vcc")
    so = ["", " sc1", " nt", " sc0 sc1", " sc1 nt"][opt("osc", 0)]
    a(f"buffer_store_dwordx4 v[32:35], v6, s[{S_OUT}:{S_OUT+3}], 0 offen" + so)
    a(f"buffer_store_dwordx4 v[36:39], v6, s[{S_OUT}:{S_OUT+3}], 0 offen offset:16" + so)
    a.label("K2_FIN")
    stamp_flush(a, 1, 14, 15, sW, sT)
    a.label("K2_END")
    a("s_endpgm")
    dynloop(a, "S", True)
    a.label("K2_SLOWHEAD")
    for i in range(4): a(f"v_mov_b32 v{RP+2*i}, -1")
    a(f"v_mov_b32 v2, {FLG+8}")
    a("ds_read_b64 v[4:5], v2")
    a("s_waitcnt lgkmcnt(0)")
    a(f"v_readfirstlane_b32 s{sT}, v4")
    a(f"v_readfirstlane_b32 s{sOVF}, v5")
    count_tiles(a)
    a("s_branch K2_DYNHEAD")
    a.label("K2_CAREFUL")
    for j in range(NR):
        a(f"s_mov_b64 exec, {VM(j)}")
        a(f"v_mul_u32_u24 v{48+j}, 0x5556, v{48+j}")
        a(f"v_lshrrev_b32 v{48+j}, 18, v{48+j}")
        a(f"v_mul_u32_u24 v{48+j}, {CAPN}, v{48+j}")
        a(f"v_add_u32 v{48+j}, {RECS//4 + CAPN}, v{48+j}")
        a(f"v_add_u32 v{60+j}, v{60+j}, v{20+j}")
        a(f"v_cmpx_lt_u32 vcc, v{60+j}, v{48+j}")
        a(f"v_lshlrev_b32 v{60+j}, 2, v{60+j}")
        a(f"s_andn2_b64 {VM(j)}, {VM(j)}, vcc")
        a(f"ds_write_b32 v{60+j}, v{32+j}")
    a("s_branch K2_PL4")
    a.label("K2_GOSLOW")
    a(f"s_mov_b32 s{sMODE}, 1")
    a(f"s_mov_b32 s{sCHUNK}, {-CHK}")
    a(f"s_mov_b32 s{sK}, 0")
    a(f"s_mov_b32 s{sM}, 0")
    a("s_waitcnt lgkmcnt(0)")
    a("s_barrier")
    a(f"s_cmp_eq_u32 s{sDYN}, 0")
    a("s_cbranch_scc1 K2_NEXTCHUNK")
    prefill(a, 2)
    cnt_init(a, 2)
    a("s_branch K2_HAGAIN")
    a.label("K2_NEXTCHUNK")
    a(f"s_add_u32 s{sCHUNK}, s{sCHUNK}, {CHK}")
    a(f"s_cmp_lg_u32 s{sDYN}, 0")
    a("s_cbranch_scc1 K2_RETRY")
    rec_prep(False)
    rec_masks()
    rec_masks2()
    a.label("K2_RETRY")
    a("s_waitcnt lgkmcnt(0)")
    a(f"s_cmp_lg_u32 s{sDYN}, 0")
    a("s_cbranch_scc1 K2_HRETRY")
    rec_prep(False)
    rec_loads(False, "K2_RL2")
    first_addr(a)
    a("v_bfrev_b32 v17, 1")
    a("s_barrier")
    a("s_branch K2_PASS")
    a.label("K2_HAGAIN")
    a(f"s_add_u32 s{sCHUNK}, s{sCHUNK}, {CHK}")
    a("s_branch K2_HR2")
    a.label("K2_HRETRY")
    prefill(a, 0)
    cnt_init(a, 0)
    a.label("K2_HR2")
    hprep()
    tile_addrs()
    a(f"v_add_u32 v2, {BP}, v6")
    for q in range(8):
        a(f"ds_read2_b32 v[{32+2*q}:{33+2*q}], v2 offset0:{32*(q>>1)+4*(q&1)} offset1:{32*(q>>1)+4*(q&1)+2}")
    a("s_waitcnt lgkmcnt(0)")
    a("s_barrier")
    for r in range(16):
        a(f"v_lshlrev_b32 v{64+r}, 16, v{32+r}")
        a(f"v_and_b32 v{32+r}, 0xffff0000, v{32+r}")
        a(f"v_add_f32 v{64+r}, v{64+r}, v{32+r}")
    a("s_branch K2_HPASS2")

HEAD = open("standalone__mpnn_edge_mlp__graph.s.ref").read().split("; Override launch")[0]

def main(out):
    a = Asm()
    a.lines.append(HEAD.rstrip())
    a.lines.append(f"; @launch kernel=k1_kernel grid=({NP+1},1,1) block=({K1W*64},1,1) lds=90112")
    a.lines.append(f"; @launch kernel=k2_kernel grid=({NB},1,1) block=(1024,1,1) lds={K2_LDS}")
    a('.amdgcn_target "amdgcn-amd-amdhsa--gfx950"')
    a(".text")
    for k, g in (("k1_kernel", gen_k1), ("k2_kernel", gen_k2)):
        a(f".globl {k}")
        a(".p2align 8")
        a(f".type {k},@function")
        g(a)
    a('.section .rodata,"a"')
    a(".p2align 6")
    a.lines.append(desc("k1_kernel", 128, 102).rstrip())
    a(".p2align 6")
    a.lines.append(desc("k2_kernel", 128, 102).rstrip())
    open(out, "w").write(a.text())

if __name__ == "__main__":
    main(sys.argv[1] if len(sys.argv) > 1 else "standalone__mpnn_edge_mlp__graph.s")
```

```python
import sys, os
sys.path.insert(0, os.path.dirname(__file__))
from asmlib import *

CURK = [1]
STK2 = [88, 90, 92, 94, 96, 98, 0, 80, 36, 38]
STAMP = int(os.environ.get("STAMP", "0"))
OPT = dict(kv.split("=") for kv in os.environ.get("OPT", "").split(",") if kv)
def opt(k, d): return int(OPT.get(k, d))

N = 12500; E = 800000
NP = 250; CH = 3200
NPB = 49; NB = 256
TROWS = 50
WS_TAB = 4096; WS_OFF = 0x200000; WS_REC = 0x400000
WS_STAMP = 0x1000000
NLOG2E = 0xbfb8aa3b
NLN2 = 0xbf317218

LOOPST = int(os.environ.get("LOOPST", "0"))
SEEN = set()
def stamp(a, idx, loop=False):
    if not STAMP: return
    if opt("stb0", 0) and CURK[0] == 2:
        if idx in SEEN: return
        SEEN.add(idx)
    if LOOPST and CURK[0] == 2 and not loop and idx not in (0, 8, 9): return
    assert idx < 10
    if CURK[0] == 2:
        a("s_memtime s[88:89]")
        a("s_waitcnt lgkmcnt(0)") if False else None
        a(f"s_memtime s[{STK2[idx]}:{STK2[idx]+1}]") if False else None
        a.lines.pop() if False else None
        a.lines.pop()
        a(f"s_memtime s[{STK2[idx]}:{STK2[idx]+1}]")
        return
    a(f"s_memtime s[{80+2*idx}:{81+2*idx}]")
def stamp_start(a):
    if not STAMP: return
    a("s_memrealtime s[100:101]")
    for i in range(10): a(f"s_mov_b32 s{80+2*i}, 0") if False else None
def stamp_flush(a, kern, wsl, wsh, wave, extra=None):
    if not STAMP: return
    a("s_waitcnt vmcnt(0)")
    stamp(a, 9)
    a(f"s_memrealtime s[76:77]")
    if STAMP == 2:
        lab = f"DBG_{kern}_{len(a.lines)}"
        a("s_load_dwordx2 s[72:73], s[0:1], 56")
        a(f"s_waitcnt lgkmcnt(0)")
        a(f"s_mov_b64 exec, 1")
        if kern == 0:
            a("s_add_u32 s72, s72, 512")
            a("s_addc_u32 s73, s73, 0")
        a("v_mov_b32 v2, 0")
        a("s_cmp_lg_u32 s2, 5")
        a(f"s_cbranch_scc1 {lab}")
        a(f"s_cmp_lg_u32 s{wave}, 0")
        a(f"s_cbranch_scc1 {lab}")
        a("v_mov_b32 v3, s100")
        a(f"global_store_dword v2, v3, s[72:73] offset:{32*kern}")
        a("v_mov_b32 v3, s76")
        a(f"global_store_dword v2, v3, s[72:73] offset:{32*kern+4}")
        idx = (3, 4, 5, 6, 7, 9) if kern == 0 else (2, 4, 6, 7, 8, 9)
        for i, k in enumerate(idx):
            a(f"s_sub_u32 s3, s{80+2*k}, s80")
            a("v_mov_b32 v3, s3")
            a(f"global_store_dword v2, v3, s[72:73] offset:{32*kern+8+4*i}")
        a.label(lab)
        a("s_waitcnt vmcnt(0)")
        return
    a(f"s_lshl_b32 s78, s2, 4")
    a(f"s_add_u32 s78, s78, s{wave}")
    a(f"s_lshl_b32 s78, s78, 6")
    a(f"s_add_u32 s78, s78, {WS_STAMP + kern*0x100000}")
    a(f"s_waitcnt lgkmcnt(0)")
    a(f"s_mov_b64 exec, 1")
    a(f"v_mov_b32 v2, s78")
    srcs = ([80+2*i for i in range(10)] if kern == 0 else STK2) + [100, extra if extra is not None else 100, 100, 100, 100, 76]
    for i in range(16):
        a(f"v_mov_b32 v3, s{srcs[i]}")
        a(f"global_store_dword v2, v3, s[{wsl}:{wsh}] offset:{4*i}")
    a("s_waitcnt vmcnt(0)")
def prio(a, p):
    if opt("prio", 1): a(f"s_setprio {p}")

KS = opt("K", 7); MD = opt("M", 6)
PV = opt("pv", 0)
def _pp(t): return [tuple(int(c) for c in x) for x in t.split("-")]
SP0 = 3
SPRIO = dict(_pp(OPT.get("sprio", "22-41-60")))
DPRIO = tuple(_pp(OPT.get("dprio", "12-21-40")))
SPL = opt("spl", 4200)
W1L_ = (SPL + 31)//32; W2L_ = (N - SPL + 31)//32
RS = 528; CAPN = 112; BLK = CAPN*4
RSTR = 16896
CNT = 16; FLG = 624; QC = 0; AGG = 640; BP = AGG + 50*RS; RECS = BP + 50*RS; GT = RECS + 50*BLK
CONSTL = GT + 5632; STG = (CONSTL + 7680 + 127)//128*128
K2_LDS = STG + 65536
PST = STG
assert K2_LDS <= 163840
D0 = 16; D1 = 32; X = 48; A = 64; AEXT = 80; BX0 = 84; BX1 = 88; I0 = 92; I1 = 96
RA = 100; RP = 104; VA = 112; VE = 113; VG = 114; L8 = 115; CA = 116; CE = 117
FA0 = 118; FA1 = 120; GNR = 122; GBA = 124; GBE = 125; PM = 126; OFFW = 127
NN = 2; PA = 4; PB = 6; RR = 8; OUT = 10; CADR = 14; PM2 = 15
N0 = 2; P0 = 4; N1 = 8; P1 = 10; PT = 6; SA = 12; SE = 13
S_X = 16; S_OUT = 28; S_TAB = 32; S_OFF = 36; S_REC = 40; S_CON = 8; S_TABR = 20
sB = 44; sNODE0 = 45; sW = 46; sSLOT = 47; sREM = 48; sIT = 49; sCHUNK = 50; sMODE = 51; sOVF = 52; sNT = 53; sFT = 54
sMODE2 = 55; sTN = 56; sTMP = 57; sONE = 58
sVAL = 60
sCAPN = 6; sRECS = 7; sK = 24; sM = 25; sT = 26; sDYN = 27; sSC = 12; sWB = 54

K1W = 1 + (CH//4//opt('u', 2) + 63)//64
WS_CONST = 0x280000; WS_FRAG = WS_CONST + 8192
def gen_k1(a):
    HIST = 0; OFFS = 1024; RECS1 = 3072; W1L = RECS1 + RSTR; XL = W1L + 8192
    assert XL % 128 == 0
    st = ["", " sc1", " nt", " sc0 sc1", " sc1 nt"][opt("k1sc", 0)]
    stt = ["", " sc1", " nt", " sc0 sc1", " sc1 nt"][opt("tabsc", 0)]
    nt = " nt" if opt("k1nt", 1) else ""
    a.label("k1_kernel")
    a(f"s_cmp_ge_u32 s2, {NP}")
    a("s_cbranch_scc1 K1_EXTRA")
    a("s_load_dwordx8 s[4:11], s[0:1], 0")
    a("s_load_dwordx2 s[12:13], s[0:1], 32")
    a("s_load_dwordx2 s[14:15], s[0:1], 64")
    stamp_start(a)
    stamp(a, 0)
    a("v_lshrrev_b32 v2, 6, v0")
    a("v_and_b32 v1, 63, v0")
    a("v_readfirstlane_b32 s16, v2")
    U = opt("u", 2)
    NT = CH // 4 // U
    a("v_subrev_u32 v40, 64, v0")
    a(f"v_mov_b32 v41, {NT}")
    a("v_cmp_lt_u32 vcc, v40, v41")
    a(f"s_mul_i32 s17, s2, {CH*4}")
    a("v_lshlrev_b32 v3, 4, v40")
    a("v_add_u32 v2, s17, v3")
    a("s_cmp_eq_u32 s16, 0")
    a("s_cbranch_scc1 K1_TABLE")
    a("s_mov_b64 exec, vcc")
    DST = lambda u, j: 48 + 36*u + j
    SRC = lambda u, j: 52 + 36*u + j
    EE = lambda u: 56 + 36*u
    BK = lambda u, j: 58 + 36*u + j
    HA = lambda u, j: 62 + 36*u + j
    RK = lambda u, j: 66 + 36*u + j
    DL = lambda u, j: 70 + 36*u + j
    OF = lambda u, j: 74 + 36*u + 2*j
    for u in range(U):
        a(f"v_add_u32 v{4+u}, {u*NT*16}, v2")
        a(f"v_lshrrev_b32 v{8+u}, 1, v{4+u}")
    a("v_mov_b32 v35, 1")
    a(f"s_movk_i32 s3, {-NPB*3}")
    a("s_waitcnt lgkmcnt(0)")
    if not opt("k1dbg",0): stamp(a, 1)
    for u in range(U):
        a(f"global_load_dwordx4 v[{DST(u,0)}:{DST(u,3)}], v{4+u}, s[10:11]" + nt)
    a(f"s_mul_i32 s18, s2, {RSTR}")
    a(f"s_add_u32 s18, s18, {WS_REC}")
    if not opt("k1dbg",0): stamp(a, 2)
    a("s_barrier")
    for u in range(U):
        a(f"global_load_dwordx4 v[{SRC(u,0)}:{SRC(u,3)}], v{4+u}, s[8:9]" + nt)
    for u in range(U):
        a(f"global_load_dwordx2 v[{EE(u)}:{EE(u)+1}], v{8+u}, s[6:7]" + nt)
    stamp(a, 3)
    for u in range(U):
        a(f"s_waitcnt vmcnt({2*U + U-1-u})")
        if u == U-1: stamp(a, 4)
        for j in range(4):
            a(f"v_mul_u32_u24 v{BK(u,j)}, 5350, v{DST(u,j)}")
            a(f"v_lshrrev_b32 v{BK(u,j)}, 18, v{BK(u,j)}")
            a(f"v_lshlrev_b32 v{HA(u,j)}, 2, v{BK(u,j)}")
            a(f"ds_add_rtn_u32 v{RK(u,j)}, v{HA(u,j)}, v35 offset:{HIST}")
    a("s_waitcnt lgkmcnt(0)")
    a("s_barrier")
    stamp(a, 5)
    for u in range(U):
        for j in range(4):
            a(f"v_mad_u32_u24 v{DST(u,j)}, v{DST(u,j)}, 3, 1")
            a(f"v_mad_i32_i24 v{DL(u,j)}, v{BK(u,j)}, s3, v{DST(u,j)}")
            a(f"v_lshlrev_b32 v{HA(u,j)}, 1, v{HA(u,j)}")
    a("s_barrier")
    stamp(a, 6)
    for u in range(U):
        for j in range(4):
            a(f"ds_read_b64 v[{OF(u,j)}:{OF(u,j)+1}], v{HA(u,j)} offset:{OFFS}")
    a("s_mov_b32 s3, 0xffff0000")
    a("s_waitcnt lgkmcnt(0)")
    for u in range(U):
        for j in range(4):
            a(f"v_add_u32 v{OF(u,j)+1}, v{OF(u,j)+1}, v{RK(u,j)}")
            a(f"v_lshl_add_u32 v{OF(u,j)}, v{RK(u,j)}, 2, v{OF(u,j)}")
    for u in range(U):
        a(f"s_waitcnt vmcnt({U + U-1-u})")
        for j in range(4):
            a(f"v_add_u32 v{DST(u,j)}, {16384 - SPL}, v{SRC(u,j)}")
            a(f"v_lshrrev_b32 v{DST(u,j)}, 14, v{DST(u,j)}")
            a(f"v_add_u32 v{DL(u,j)}, v{DL(u,j)}, v{DST(u,j)}")
            a(f"ds_write_b8 v{OF(u,j)+1}, v{DL(u,j)} offset:{RECS1}")
    for u in range(U):
        a(f"s_waitcnt vmcnt({U-1-u})")
        if u == U-1 and opt("k1dbg",0): stamp(a, 1)
        a(f"v_lshl_or_b32 v{SRC(u,0)}, v{EE(u)}, 16, v{SRC(u,0)}")
        a(f"v_and_or_b32 v{SRC(u,1)}, v{EE(u)}, s3, v{SRC(u,1)}")
        a(f"v_lshl_or_b32 v{SRC(u,2)}, v{EE(u)+1}, 16, v{SRC(u,2)}")
        a(f"v_and_or_b32 v{SRC(u,3)}, v{EE(u)+1}, s3, v{SRC(u,3)}")
        for j in range(4):
            a(f"ds_write_b32 v{OF(u,j)}, v{SRC(u,j)} offset:{RECS1}")
    a("s_mov_b64 exec, -1")
    NW = K1W - 1
    NCP = (16768//16 + NW*64 - 1) // (NW*64)
    a("v_add_u32 v41, s18, v3")
    a(f"v_mov_b32 v42, {16768//16 - (NCP-1)*NW*64}")
    a("v_cmp_lt_u32 vcc, v40, v42")
    a("s_waitcnt lgkmcnt(0)")
    if opt("k1dbg",0): stamp(a, 2)
    a("s_barrier")
    stamp(a, 7)
    for c in range(NCP):
        a(f"ds_read_b128 v[{4+4*c}:{7+4*c}], v3 offset:{RECS1 + c*NW*1024}")
    for c in range(NCP):
        a(f"s_waitcnt lgkmcnt({NCP-1-c})")
        if c == NCP-1:
            a("s_cbranch_vccz K1_FIN")
            a("s_mov_b64 exec, vcc")
        a(f"global_store_dwordx4 v41, v[{4+4*c}:{7+4*c}], s[14:15]" + st)
        if c < NCP-1: a(f"v_add_u32 v41, {NW*1024}, v41")
    a.label("K1_FIN")
    stamp(a, 8)
    stamp_flush(a, 0, 14, 15, 16)
    a("s_endpgm")
    a.label("K1_TABLE")
    a("v_lshlrev_b32 v4, 4, v1")
    for r in range(4): a(f"v_mov_b32 v{36+r}, 0")
    a(f"ds_write_b128 v4, v[36:39] offset:{HIST}")
    a("v_lshrrev_b32 v5, 3, v1")
    a("v_and_b32 v6, 7, v1")
    a("v_xor_b32 v6, v6, v5")
    a("v_lshlrev_b32 v6, 4, v6")
    a("v_lshl_add_u32 v6, v5, 7, v6")
    a(f"s_mul_i32 s23, s2, {TROWS*128}")
    a("v_add_u32 v6, s23, v6")
    a("v_add_u32 v14, 4096, v6")
    a(f"s_mov_b32 m0, {XL}")
    a("s_waitcnt lgkmcnt(0)")
    stamp(a, 1)
    TF = opt("tfirst", 0)
    XE = opt("xearly", 1) or TF
    if not XE:
        a("s_barrier")
        stamp(a, 3)
    srd(a, 24, 4, 5, N*128)
    xp = " nt" if opt("k1xnt", 0) else ""
    for i in range(4):
        a(f"buffer_load_dwordx4 v6, s[24:27], 0 offen offset:{1024*i}" + xp + " lds")
    a(f"s_mov_b32 m0, {XL + 4096}")
    srd(a, 28, 12, 13, 129*128)
    for i in range(3):
        a(f"buffer_load_dwordx4 v14, s[24:27], 0 offen offset:{1024*i}" + xp + " lds")
    a(f"s_mov_b32 m0, {W1L}")
    a("s_movk_i32 s3, 0x1000")
    for i in range(4):
        a(f"buffer_load_dwordx4 v4, s[28:31], 0 offen offset:{1024*i} lds")
    a(f"s_mov_b32 m0, {W1L + 4096}")
    a("s_nop 0")
    for i in range(4):
        a(f"buffer_load_dwordx4 v4, s[28:31], s3 offen offset:{1024*i} lds")
    stamp(a, 2)
    if XE:
        a("s_barrier")
        stamp(a, 3)
    srd(a, 32, 14, 15, N*128, WS_TAB)
    a("v_lshrrev_b32 v7, 4, v1")
    a("v_bfe_u32 v8, v1, 2, 2")
    a("v_and_b32 v9, 3, v1")
    a("v_lshl_add_u32 v8, v7, 3, v8")
    a("v_lshlrev_b32 v8, 7, v8")
    a("v_lshl_add_u32 v8, v9, 5, v8")
    a("v_and_b32 v10, 15, v1")
    a("v_and_b32 v11, 7, v1")
    a("v_xor_b32 v11, v11, v7")
    a("v_lshlrev_b32 v11, 4, v11")
    a("v_lshl_add_u32 v11, v10, 7, v11")
    a("v_xor_b32 v12, 64, v11")
    a("v_lshlrev_b32 v13, 7, v10")
    a("v_lshl_add_u32 v13, v7, 5, v13")
    a("v_add_u32 v13, s23, v13")
    a("v_add_u32 v15, 4096, v13")
    a(f"s_mov_b32 s40, {NLOG2E:#x}")
    a(f"s_mov_b32 s41, {NLOG2E:#x}")
    a("v_cmp_gt_u32 s[42:43], 2, v10")
    if opt("toff", 1):
        a("s_and_b32 s3, s2, 7")
        a("s_lshl_b32 s3, s3, 5")
        a("s_lshr_b32 s44, s2, 3")
        a("s_add_u32 s3, s3, s44")
        a("s_lshl_b32 s3, s3, 2")
        a(f"s_add_u32 s3, s3, {WS_OFF}")
        a("v_lshlrev_b32 v3, 12, v1")
        a("v_add_u32 v3, s3, v3")
    else:
        a("s_lshl_b32 s3, s2, 10")
        a(f"s_add_u32 s3, s3, {WS_OFF}")
        a("v_add_u32 v3, s3, v4")
    def table():
        for nti in range(4):
            a(f"ds_read_b128 v[{80+8*nti}:{83+8*nti}], v11 offset:{XL + 2048*nti}")
            a(f"ds_read_b128 v[{84+8*nti}:{87+8*nti}], v12 offset:{XL + 2048*nti}")
        for ft in range(4):
            for ks in range(2):
                for h in range(2):
                    r = 16 + 8*ft + 4*ks + 2*h
                    a(f"ds_read_b64_tr_b16 v[{r}:{r+1}], v8 offset:{W1L + (32*ks+4*h)*128 + 8*ft}")
        a("s_waitcnt lgkmcnt(0)")
        def mm(nti):
            D = 48 + 16*(nti & 1); xa = 80 + 8*nti
            for ft in range(4):
                a(f"v_mfma_f32_16x16x32_bf16 v[{D+4*ft}:{D+3+4*ft}], v[{16+8*ft}:{19+8*ft}], v[{xa}:{xa+3}], 0")
            for ft in range(4):
                a(f"v_mfma_f32_16x16x32_bf16 v[{D+4*ft}:{D+3+4*ft}], v[{20+8*ft}:{23+8*ft}], v[{xa+4}:{xa+7}], v[{D+4*ft}:{D+3+4*ft}]")
        def fin(nti):
            D = 48 + 16*(nti & 1); o = 80 + 8*nti
            for q in range(8):
                a(f"v_pk_mul_f32 v[{D+2*q}:{D+1+2*q}], v[{D+2*q}:{D+1+2*q}], s[40:41]")
            for q in range(8):
                a(f"v_cvt_pk_bf16_f32 v{o+q}, v{D+2*q}, v{D+1+2*q}")
            if nti == 3: a("s_mov_b64 exec, s[42:43]")
            ar = 13 if nti < 2 else 15
            a(f"buffer_store_dwordx4 v[{o}:{o+3}], v{ar}, s[32:35], 0 offen offset:{2048*(nti&1)}" + stt)
            a(f"buffer_store_dwordx4 v[{o+4}:{o+7}], v{ar}, s[32:35], 0 offen offset:{2048*(nti&1)+16}" + stt)
            if nti == 3: a("s_mov_b64 exec, -1")
        TB = opt("tb", 4)
        def b3(k):
            if TB == k and not TF:
                a("s_barrier")
                stamp(a, 7)
        b3(0); mm(0); mm(1); fin(0); mm(2); b3(1); fin(1); mm(3); b3(2); fin(2); a("s_nop 7"); b3(3); fin(3); b3(4)
    a("s_setprio 3")
    if TF:
        a("s_waitcnt vmcnt(0)")
        stamp(a, 4)
        table()
    a("s_barrier")
    stamp(a, 5)
    a(f"ds_read_b128 v[56:59], v4 offset:{HIST}")
    a("s_waitcnt lgkmcnt(0)")
    for j in range(4):
        a(f"v_add_u32 v{60+j}, 3, v{56+j}")
        a(f"v_lshrrev_b32 v{60+j}, 2, v{60+j}")
        a(f"v_add_u32 v{60+j}, v{60+j}, v{56+j}")
    a("v_add_u32 v66, v60, v61")
    a("v_add_u32 v67, v66, v62")
    a("v_add_u32 v68, v67, v63")
    a("v_mov_b32 v69, v68")
    a("s_nop 1")
    scan64(a, 69)
    a("v_sub_u32 v72, v69, v68")
    a("v_add_u32 v73, v72, v60")
    a("v_add_u32 v74, v72, v66")
    a("v_add_u32 v75, v72, v67")
    for j in range(4):
        a(f"v_lshlrev_b32 v{60+2*j}, 2, v{72+j}")
        a(f"v_add_lshl_u32 v{61+2*j}, v{72+j}, v{56+j}, 2")
    a("v_lshlrev_b32 v5, 5, v1")
    a(f"ds_write_b128 v5, v[60:63] offset:{OFFS}")
    a(f"ds_write_b128 v5, v[64:67] offset:{OFFS+16}")
    a("s_waitcnt lgkmcnt(0)")
    a("s_barrier")
    stamp(a, 6)
    for j in range(4):
        a(f"v_lshl_or_b32 v{76+j}, v{56+j}, 16, v{72+j}")
    if not TF:
        a("s_waitcnt vmcnt(0)")
        stamp(a, 4)
    if opt("toff", 1):
        for j in range(4):
            a(f"global_store_dword v3, v{76+j}, s[14:15] offset:{1024*j}" + st)
    else:
        a("global_store_dwordx4 v3, v[76:79], s[14:15]" + st)
    if not TF: table()
    stamp(a, 8)
    stamp_flush(a, 0, 14, 15, 16)
    a("s_endpgm")
    a.label("K1_EXTRA")
    a(f"s_cmp_lg_u32 s2, {NP}")
    a("s_cbranch_scc1 K1_END")
    a("s_load_dwordx4 s[8:11], s[0:1], 32")
    a("s_load_dwordx2 s[14:15], s[0:1], 64")
    a("v_lshrrev_b32 v2, 6, v0")
    a("v_and_b32 v1, 63, v0")
    a("v_readfirstlane_b32 s16, v2")
    a("s_waitcnt lgkmcnt(0)")
    srd(a, 20, 8, 9, 129*128)
    srd(a, 24, 10, 11, 128*128)
    a("s_cmp_eq_u32 s16, 0")
    a("s_cbranch_scc1 K1_CONST")
    a("s_sub_u32 s17, s16, 1")
    a.label("K1_FRAG")
    a("s_cmp_gt_u32 s17, 11")
    a("s_cbranch_scc1 K1_END")
    a("s_lshr_b32 s18, s17, 2")
    a("s_and_b32 s19, s17, 3")
    a("v_and_b32 v3, 15, v1")
    a("v_lshrrev_b32 v4, 4, v1")
    a("v_lshlrev_b32 v4, 10, v4")
    a("s_lshl_b32 s3, s19, 4")
    a("v_add_u32 v5, s3, v3")
    a("v_lshrrev_b32 v6, 2, v3")
    a("v_and_b32 v7, 3, v3")
    a("v_lshl_add_u32 v6, v6, 4, v7")
    a("s_lshl_b32 s3, s19, 2")
    a("v_add_u32 v6, s3, v6")
    a("s_cmp_ge_u32 s18, 1")
    a("s_cselect_b64 s[30:31], -1, 0")
    a("v_cndmask_b32 v5, v5, v6, s[30:31]")
    a("v_lshl_add_u32 v4, v5, 1, v4")
    a("s_cmp_eq_u32 s18, 0")
    a("s_cselect_b32 s28, s8, s10")
    a("s_cselect_b32 s29, s9, s11")
    a("s_movk_i32 s30, 0x4000")
    a("s_mov_b32 s31, 0x00020000")
    a("s_cmp_eq_u32 s18, 1")
    a("s_cselect_b32 s3, 0, 0x2000")
    a("s_add_u32 s4, s3, 0x1000")
    for ks in range(2):
        for j in range(8):
            a(f"buffer_load_ushort v{16+8*ks+j}, v4, s[28:31], s{3+ks} offen offset:{128*j}")
    srd(a, 32, 14, 15, 3*8192, WS_FRAG)
    a("s_lshl_b32 s3, s17, 11")
    a("v_lshlrev_b32 v2, 4, v1")
    a("s_waitcnt vmcnt(0)")
    for q in range(8):
        a(f"v_lshl_or_b32 v{8+q}, v{17+2*q}, 16, v{16+2*q}")
    a("buffer_store_dwordx4 v[8:11], v2, s[32:35], s3 offen")
    a("buffer_store_dwordx4 v[12:15], v2, s[32:35], s3 offen offset:1024")
    a(f"s_add_u32 s17, s17, {K1W-1}")
    a("s_branch K1_FRAG")
    a.label("K1_CONST")
    a("v_and_b32 v8, 31, v1")
    a("v_lshlrev_b32 v9, 1, v8")
    a("s_movk_i32 s3, 0x4000")
    a("buffer_load_ushort v24, v9, s[20:23], s3 offen")
    a("buffer_load_ushort v25, v9, s[20:23], s3 offen offset:64")
    a("v_lshrrev_b32 v11, 5, v1")
    a("v_lshlrev_b32 v47, 3, v8")
    a("v_lshlrev_b32 v12, 3, v11")
    a("v_sub_u32 v12, v8, v12")
    a("v_and_b32 v13, 1, v12")
    a("v_lshlrev_b32 v13, 4, v13")
    a("v_mov_b32 v14, 0x3f80")
    a("v_lshlrev_b32 v13, v13, v14")
    a("v_ashrrev_i32 v12, 1, v12")
    for i in range(4):
        a(f"v_cmp_eq_u32 s[{60+4*i}:{61+4*i}], {i}, v12")
        a(f"v_cmp_eq_u32 s[{62+4*i}:{63+4*i}], {8+i}, v12")
    for i in range(4):
        a(f"v_cndmask_b32 v{32+i}, 0, v13, s[{60+4*i}:{61+4*i}]")
        a(f"v_cndmask_b32 v{36+i}, 0, v13, s[{62+4*i}:{63+4*i}]")
    a("v_bfe_u32 v12, v8, 2, 1")
    a("v_and_b32 v13, 1, v8")
    a("v_lshl_or_b32 v14, v12, 1, v13")
    a("v_lshlrev_b32 v15, 1, v11")
    a("v_sub_u32 v15, v14, v15")
    a("v_cmp_eq_u32 s[60:61], 0, v15")
    a("v_cmp_eq_u32 s[62:63], 1, v15")
    a("v_mov_b32 v26, 0x3f803f80")
    a("s_nop 0")
    a("v_cndmask_b32 v56, 0, v26, s[60:61]")
    a("v_cndmask_b32 v57, 0, v26, s[62:63]")
    a("v_bfe_u32 v15, v8, 1, 1")
    a("v_lshrrev_b32 v26, 3, v8")
    a("v_lshl_or_b32 v27, v26, 1, v15")
    a("v_lshl_or_b32 v49, v27, 2, 2")
    a("v_lshl_or_b32 v27, v14, 3, v27")
    a("v_and_b32 v28, 3, v27")
    a("v_lshrrev_b32 v27, 2, v27")
    a("v_lshl_or_b32 v27, v28, 3, v27")
    a("v_and_b32 v28, 7, v8")
    a("v_xor_b32 v28, v28, v11")
    a("v_lshlrev_b32 v28, 4, v28")
    a("v_lshl_add_u32 v40, v27, 7, v28")
    for k in range(1, 4):
        a(f"v_xor_b32 v{40+k}, {32*k}, v40")
    a("v_lshlrev_b32 v48, 1, v1")
    a("v_and_b32 v48, 16, v48")
    a("v_lshrrev_b32 v7, 4, v1")
    a(f"s_mov_b32 s3, {GT}")
    a("v_lshl_add_u32 v44, v7, 3, s3")
    a("v_lshl_add_u32 v45, v14, 3, s3")
    a(f"s_mov_b32 s3, {GT + 4}")
    a("v_lshl_add_u32 v46, v11, 4, s3")
    a("v_and_b32 v5, 15, v1")
    a("v_and_b32 v2, 7, v1")
    a("v_xor_b32 v2, v2, v7")
    a("v_lshlrev_b32 v2, 4, v2")
    a("v_lshl_add_u32 v2, v5, 7, v2")
    a(f"v_add_u32 v52, {PST + 16384}, v2")
    a("v_lshlrev_b32 v3, 4, v1")
    a(f"v_add_u32 v53, {PST}, v3")
    a(f"v_mul_u32_u24 v54, {RS}, v5")
    a("v_lshl_add_u32 v54, v7, 5, v54")
    a("v_mul_u32_u24 v55, 12, v5")
    a(f"v_mul_u32_u24 v62, {BLK}, v14")
    a(f"s_mov_b32 s3, {RECS}")
    a("v_add3_u32 v62, v62, v49, s3")
    a(f"v_mul_u32_u24 v63, {2*RS}, v11")
    a("v_add_u32 v63, v63, v47")
    a(f"s_mov_b32 s3, {NLOG2E:#x}")
    a("v_cmp_gt_u32 s[60:61], 32, v1")
    a("v_mov_b32 v59, 0")
    a("v_mov_b32 v61, 0")
    a("s_waitcnt vmcnt(0)")
    for j in range(2):
        a(f"v_lshlrev_b32 v{24+j}, 16, v{24+j}")
        a(f"v_mul_f32 v{24+j}, s3, v{24+j}")
        a(f"v_cvt_pk_bf16_f32 v26, v{24+j}, v{24+j}")
        a("v_and_b32 v27, 0xffff0000, v26")
        a(f"v_sub_f32 v27, v{24+j}, v27")
        a("v_cvt_pk_bf16_f32 v27, v27, v27")
        a(f"v_cndmask_b32 v26, v27, v26, s[60:61]")
        a(f"v_and_b32 v{58+2*j}, 0xffff, v26")
    srd(a, 28, 14, 15, 8192, WS_CONST)
    a("v_lshlrev_b32 v2, 4, v1")
    a("v_lshlrev_b32 v3, 3, v1")
    a("s_movk_i32 s3, 0x1000")
    for i in range(4):
        a(f"buffer_store_dwordx4 v[{32+4*i}:{35+4*i}], v2, s[28:31], 0 offen offset:{1024*i}")
    a("buffer_store_dwordx4 v[52:55], v2, s[28:31], s3 offen")
    for i in range(4):
        a(f"buffer_store_dwordx2 v[{56+2*i}:{57+2*i}], v3, s[28:31], s3 offen offset:{1024+512*i}")
    a("buffer_store_dwordx2 v[48:49], v3, s[28:31], s3 offen offset:3072")
    a.label("K1_END")
    a("s_endpgm")

def P(r): return f"v[{r}:{r+1}]"

def mfma3(Dn, j):
    bx = BX0 if j == 0 else BX1
    return [f"v_mfma_f32_32x32x16_bf16 {v(Dn,16)}, {v(AEXT,4)}, {v(bx,4)}, 0",
            f"v_mfma_f32_32x32x16_bf16 {v(Dn,16)}, {v(A+8*j,4)}, {v(I0,4)}, {v(Dn,16)}",
            f"v_mfma_f32_32x32x16_bf16 {v(Dn,16)}, {v(A+8*j+4,4)}, {v(I1,4)}, {v(Dn,16)}"]

def xphase(a, Dc, mf):
    ex = [f"v_exp_f32 v{X+r}, v{Dc+r}" for r in range(16)]
    seq = [mf[0]] + ex[0:4] + [mf[1]] + ex[4:8] + [mf[2]] + ex[8:16] if mf else ex
    for l in seq: a(l)

def fphase(a, Dc, off, slow, fa, mids=()):
    mids = dict(mids)
    if not slow:
        a(f"v_pk_add_f32 {P(PA)}, {P(X)}, s[{sONE}:{sONE+1}]")
        cur, nxt = PA, PB
        for q in range(1, 8):
            src = Dc if q == 1 else NN
            a(f"v_pk_fma_f32 {P(NN)}, {P(src)}, {P(X+2*q)}, {P(src)}")
            a(f"v_pk_fma_f32 {P(nxt)}, {P(cur)}, {P(X+2*q)}, {P(cur)}")
            a(f"v_pk_fma_f32 {P(NN)}, {P(Dc+2*q)}, {P(cur)}, {P(NN)}")
            cur, nxt = nxt, cur
            if q in mids: mids[q]()
        a(f"v_rcp_f32 v{RR}, v{cur}")
        a(f"v_rcp_f32 v{RR+1}, v{cur+1}")
        a(f"v_max3_f32 v{PM2}, v{cur}, v{cur+1}, v{PM2}")
        a(f"v_pk_mul_f32 {P(OUT)}, {P(NN)}, {P(RR)}")
    else:
        for q in range(8):
            a(f"v_pk_add_f32 {P(X+2*q)}, {P(X+2*q)}, s[{sONE}:{sONE+1}]")
        for q in sorted(mids): mids[q]()
        for r in range(16):
            a(f"v_rcp_f32 v{X+r}, v{X+r}")
        a("s_nop 0")
        a(f"v_pk_mul_f32 {P(OUT)}, {P(Dc)}, {P(X)}")
        for q in range(1, 8):
            a(f"v_pk_fma_f32 {P(OUT)}, {P(Dc+2*q)}, {P(X+2*q)}, {P(OUT)}")
    a(f"v_cvt_f64_f32 {P(OUT+2)}, v{OUT+1}")
    a(f"v_cvt_f64_f32 {P(OUT)}, v{OUT}")
    a(f"ds_add_f64 v{fa+1}, {P(OUT+2)} offset:{AGG+off}")
    a(f"ds_add_f64 v{fa}, {P(OUT)} offset:{AGG+off}")

SRD4 = opt("srd4", 0) and not STAMP
def dma4(a, first=False):
    if SRD4:
        if first:
            a(f"s_mov_b32 m0, s{sSLOT}")
            a("s_nop 0")
        for i in range(4):
            r = S_TAB if i == 0 else 84 + 4*i
            a(f"buffer_load_dwordx4 {P(RP+2*i)}, s[{r}:{r+3}], 0 idxen offen offset:{1024*i} lds")
        return
    for i in range(4):
        a(f"s_add_u32 m0, s{sSLOT}, {i*1024}" if i else f"s_mov_b32 m0, s{sSLOT}")
        a("s_nop 0")
        a(f"buffer_load_dwordx4 {P(RP+2*i)}, s[{S_TAB}:{S_TAB+3}], 0 idxen offen lds")

def idxread(a):
    for i in range(4):
        a(f"ds_read_u16 v{RP+2*i}, v{GBA} offset:{4*i}")

def aread(a):
    for k in range(4):
        a(f"ds_read_b128 {v(A+4*k,4)}, v{RA+k}")

def bext(a, fa):
    a(f"ds_read_b32 v{BX0}, v{fa} offset:{BP}")
    a(f"ds_read_b32 v{BX0+1}, v{fa+1} offset:{BP}")
    a(f"ds_read_b32 v{BX1}, v{fa} offset:{BP+256}")
    a(f"ds_read_b32 v{BX1+1}, v{fa+1} offset:{BP+256}")

def dynloop(a, tag, slow):
    L = lambda x: f"K2_{tag}_{x}"
    for par in range(2):
        fa, fan = (FA0, FA1) if par == 0 else (FA1, FA0)
        o = 512*par
        a.label(L(f'LOOP{par}'))
        a(f"s_sub_u32 s{sREM}, s{sREM}, 1")
        a(f"s_cmp_eq_u32 s{sREM}, 0")
        a(f"s_cbranch_scc1 {L(f'TAIL{par}')}")
        if not slow and opt("lprio", 1):
            a(f"s_add_u32 s{sIT}, s{sIT}, 1")
            for it, p in DPRIO:
                a(f"s_cmp_lg_u32 s{sIT}, {it}")
                a(f"s_cbranch_scc1 {L(f'PR{par}{it}')}")
                a(f"s_setprio {p}")
                a.label(L(f'PR{par}{it}'))
        a(f"ds_read_b32 v{GBE}, v{VE} offset:{o+512}")
        a(f"ds_read2_b32 {P(GNR)}, v{VG} offset0:{o//4} offset1:{o//4+2}")
        a(f"s_cmp_lt_u32 s{sREM}, 2")
        a(f"s_cbranch_scc1 {L(f'NOI{par}')}")
        idxread(a)
        a(f"ds_read_b32 v{GBA}, v{VA} offset:{o+1536}")
        a.label(L(f'NOI{par}'))
        xphase(a, D0, mfma3(D1, 1))
        a("s_waitcnt vmcnt(0) lgkmcnt(0)")
        aread(a)
        a(f"v_add_u32 v{GBE}, v{GBE}, v{CE}")
        a(f"v_add_u32 v{fan}, v{GNR}, v{L8}")
        a(f"v_add_u32 v{fan+1}, v{GNR+1}, v{L8}")
        a(f"v_add_u32 v{GBA}, v{GBA}, v{CA}")
        a(f"ds_read_u16 v{AEXT+2}, v{GBE}")
        bext(a, fan)
        def mid():
            a(f"s_cmp_lt_u32 s{sREM}, 2")
            a(f"s_cbranch_scc1 {L(f'NOD{par}')}")
            a("s_waitcnt lgkmcnt(5)")
            dma4(a)
            a.label(L(f'NOD{par}'))
        fphase(a, D0, 0, slow, fa, [(opt("dmaq", 2), mid)])
        a("s_waitcnt lgkmcnt(2)")
        xphase(a, D1, mfma3(D0, 0))
        if par == 1:
            for r in (VA, VE, VG):
                a(f"v_add_u32 v{r}, 1024, v{r}")
        fphase(a, D1, 256, slow, fa)
        if par == 1:
            a(f"s_branch {L('LOOP0')}")
    for par in range(2):
        fa = FA0 if par == 0 else FA1
        a.label(L(f'TAIL{par}'))
        xphase(a, D0, mfma3(D1, 1))
        fphase(a, D0, 0, slow, fa)
        xphase(a, D1, None)
        fphase(a, D1, 256, slow, fa)
        a("s_branch K2_LOOPDONE")

def count_tiles(a):
    a(f"s_lshl_b32 s3, s{sM}, 2")
    a(f"s_add_u32 s3, s3, s{sW}")
    a(f"s_sub_i32 s{sREM}, s{sT}, s3")
    a(f"s_add_i32 s{sREM}, s{sREM}, 15")
    a(f"s_max_i32 s{sREM}, s{sREM}, 0")
    a(f"s_lshr_b32 s{sREM}, s{sREM}, 4")
    a(f"s_sub_i32 s3, s{sT}, s{sW}")
    a("s_add_i32 s3, s3, 15")
    a("s_max_i32 s3, s3, 0")
    a("s_lshr_b32 s3, s3, 2")
    a(f"s_min_u32 s3, s3, s{sM}")
    a(f"s_mul_i32 s3, s3, s{sDYN}")
    a(f"s_add_u32 s{sREM}, s{sREM}, s3")

def schain(a, Dc, Nr, Pr, first, mids=()):
    mids = dict(mids)
    if first:
        a(f"v_pk_add_f32 {P(PT)}, {P(X)}, s[{sONE}:{sONE+1}]")
        cur, nxt = PT, Pr
        q0 = 1
    else:
        cur, nxt = Pr, PT
        q0 = 0
    for q in range(q0, 8):
        src = Dc if (first and q == 1) else Nr
        a(f"v_pk_fma_f32 {P(Nr)}, {P(src)}, {P(X+2*q)}, {P(src)}")
        a(f"v_pk_fma_f32 {P(nxt)}, {P(cur)}, {P(X+2*q)}, {P(cur)}")
        a(f"v_pk_fma_f32 {P(Nr)}, {P(Dc+2*q)}, {P(cur)}, {P(Nr)}")
        cur, nxt = nxt, cur
        if q in mids: mids[q]()
    assert cur == Pr

def sidx(a, j):
    for i in range(4):
        a(f"ds_read_u16 v{RP+2*i}, v{SA} offset:{32*j + 4*i}")

def static_phase(a):
    K = KS
    dma4(a)
    for m in mfma3(D0, 0): a(m)
    a("s_nop 7")
    a("s_nop 3")
    for j in range(K):
        last = j == K-1
        if opt("lprio", 1) and j in SPRIO:
            a(f"s_setprio {SPRIO[j]}")
        if STAMP and LOOPST and j < 7: stamp(a, 1+j, True)
        if j+2 < K:
            sidx(a, j+2)
        if j == K-3:
            a(f"ds_read_b32 v{GBA}, v{VA}")
        if j == K-2:
            a(f"s_cmp_eq_u32 s{sREM}, 0")
            a("s_cbranch_scc1 K2_SN0")
            idxread(a)
            a(f"ds_read_b32 v{GBA}, v{VA} offset:512")
            a.label("K2_SN0")
        if last:
            a(f"s_cmp_eq_u32 s{sREM}, 0")
            a("s_cbranch_scc1 K2_SLAST0")
            a(f"ds_read_b32 v{GBE}, v{VE}")
            a(f"ds_read2_b32 {P(GNR)}, v{VG} offset0:0 offset1:2")
            a(f"s_cmp_lt_u32 s{sREM}, 2")
            a("s_cbranch_scc1 K2_SN1")
            idxread(a)
            a(f"ds_read_b32 v{GBA}, v{VA} offset:1024")
            a.label("K2_SN1")
        xphase(a, D0, mfma3(D1, 1))
        if j == opt("w2", -1) + 1 and j > 0:
            a(f"s_cmp_ge_u32 s{sW}, {(W2L_ + 63)//64}")
            a("s_cbranch_scc1 K2_NOW3")
            a("s_waitcnt vmcnt(1) lgkmcnt(0)")
            a("s_branch K2_NOW4")
            a.label("K2_NOW3")
        a("s_waitcnt vmcnt(0) lgkmcnt(0)")
        if j == opt("w2", -1) + 1 and j > 0: a.label("K2_NOW4")
        aread(a)
        nsmall = 1
        if j >= K-3:
            a(f"v_add_u32 v{GBA}, v{GBA}, v{CA}")
        if not last:
            a(f"ds_read_u16 v{AEXT+2}, v{SE} offset:{32*(j+1)}")
        else:
            a(f"v_add_u32 v{GBE}, v{GBE}, v{CE}")
            a(f"v_add_u32 v{FA0}, v{GNR}, v{L8}")
            a(f"v_add_u32 v{FA0+1}, v{GNR+1}, v{L8}")
            a(f"v_add_u32 v{VG}, 512, v{VG}")
            a(f"ds_read_u16 v{AEXT+2}, v{GBE}")
            bext(a, FA0)
            nsmall = 5
        def mid():
            if j >= K-2:
                a(f"s_cmp_lt_u32 s{sREM}, {j-(K-2)+1}")
                a(f"s_cbranch_scc1 K2_SND{j}")
            a(f"s_waitcnt lgkmcnt({nsmall})")
            dma4(a)
            if j == opt("w2", -1):
                a(f"s_cmp_ge_u32 s{sW}, {(W2L_ + 63)//64}")
                a("s_cbranch_scc1 K2_NOW2")
                a(f"v_lshlrev_b32 v{GBE}, 7, v0")
                a(f"s_mul_i32 s3, s{sWB}, {W2L_*128}")
                a(f"s_add_u32 s3, s3, {SPL*128}")
                a(f"buffer_load_dword v{GBE}, v{GBE}, s[{S_TABR}:{S_TABR+3}], s3 offen")
                a.label("K2_NOW2")
            if j >= K-2: a.label(f"K2_SND{j}")
        schain(a, D0, N0, P0, j == 0, [(opt("dmaq", 2), mid)])
        a("s_waitcnt lgkmcnt(0)")
        xphase(a, D1, mfma3(D0, 0))
        schain(a, D1, N1, P1, j == 0)
        if j in ((1, 3) if KS <= 7 else (1, 3, 5)):
            for r in (N0, P0, N1, P1):
                a(f"v_pk_mul_f32 {P(r)}, {P(r)}, s[{sSC}:{sSC+1}]")
    def sflush():
        for h, (Nr, Pr) in enumerate(((N0, P0), (N1, P1))):
            a(f"v_rcp_f32 v{X}, v{Pr}")
            a(f"v_rcp_f32 v{X+1}, v{Pr+1}")
            a(f"v_max3_f32 v{PM}, v{Pr}, v{Pr+1}, v{PM}")
            a(f"v_pk_mul_f32 {P(Nr)}, {P(Nr)}, {P(X)}")
            a(f"v_cvt_f64_f32 {P(X+2+4*h)}, v{Nr}")
            a(f"v_cvt_f64_f32 {P(X+4+4*h)}, v{Nr+1}")
            a(f"ds_add_f64 v{FA1}, {P(X+2+4*h)} offset:{AGG+256*h}")
            a(f"ds_add_f64 v{FA1+1}, {P(X+4+4*h)} offset:{AGG+256*h}")
        a(f"v_add_f32 v{X}, abs(v{N0}), abs(v{N0+1})")
        a(f"v_add_f32 v{X+1}, abs(v{N1}), abs(v{N1+1})")
        a(f"v_add_f32 v{X}, v{X}, v{X+1}")
        a(f"v_mul_f32 v{X}, 0, v{X}")
        a(f"v_add_f32 v{PM}, v{PM}, v{X}")
    sflush()
    a("s_branch K2_F_LOOP0")
    a.label("K2_SLAST0")
    xphase(a, D0, mfma3(D1, 1))
    schain(a, D0, N0, P0, False)
    xphase(a, D1, None)
    schain(a, D1, N1, P1, False)
    sflush()
    a("s_branch K2_LOOPDONE")

def first_addr(a):
    a("v_lshrrev_b32 v8, 4, v1")
    a(f"v_lshl_add_u32 v8, s{sW}, 2, v8")
    a(f"v_mul_u32_u24 v9, {BLK}, v8")
    a("v_lshlrev_b32 v11, 1, v1")
    a("v_and_b32 v11, 16, v11")
    a(f"v_add3_u32 v{SA}, v9, v11, s{sRECS}")
    a("v_bfe_u32 v8, v1, 4, 1")
    a("v_lshrrev_b32 v9, 5, v1")
    a("v_lshl_or_b32 v8, v9, 2, v8")
    a("v_and_b32 v9, 7, v1")
    a("v_xor_b32 v8, v8, v9")
    a(f"v_lshlrev_b32 v{RP+1}, 4, v8")
    a(f"v_xor_b32 v{RP+3}, 32, v{RP+1}")
    a(f"v_mov_b32 v{RP+5}, v{RP+1}")
    a(f"v_mov_b32 v{RP+7}, v{RP+3}")

def const_read2(a):
    a("v_lshlrev_b32 v3, 3, v1")
    a(f"v_add_u32 v3, {CONSTL + 5120}, v3")
    a(f"ds_read_b64 {P(GNR)}, v3 offset:1536")
    a(f"ds_read_b128 {v(VA,4)}, v{CADR} offset:3072")
    a(f"ds_read_b64 {P(CA)}, v3 offset:2048")
    a(f"ds_read_b128 {v(RA,4)}, v{CADR} offset:2048")
    a(f"ds_read_b128 {v(I0,4)}, v{CADR}")
    a(f"ds_read_b128 {v(I1,4)}, v{CADR} offset:1024")
    a(f"ds_read_b64 {P(AEXT)}, v3")
    a(f"ds_read_b64 {P(BX0+2)}, v3 offset:512")
    a(f"ds_read_b64 {P(BX1+2)}, v3 offset:1024")
    a(f"v_mov_b32 v{AEXT+3}, 0")

CHK = 36
NR = 12
def cnt_init(a, first):
    for r in range(4): a(f"v_mov_b32 v{4+r}, 0")
    a("v_mul_u32_u24 v3, 12, v1")
    a(f"v_mul_u32_u24 v8, {CAPN}, v1")
    a(f"v_add_u32 v8, {RECS//4}, v8")
    a("s_mov_b32 exec_lo, -1")
    a(f"s_mov_b32 exec_hi, {hex((1 << 18) - 1)}")
    a(f"ds_write2_b32 v3, v4, v8 offset0:{CNT//4} offset1:{CNT//4+1}")
    a(f"ds_write_b32 v3, v4 offset:{CNT+8}")
    if first == 1:
        a(f"ds_write_b64 v4, v[4:5] offset:{QC}")
    if first == 1:
        a(f"v_mov_b32 v3, {FLG}")
        a("ds_write_b128 v3, v[4:7]")
    a("s_mov_b64 exec, -1")

def prefill(a, first):
    a("v_subrev_u32 v2, 768, v0")
    a("v_lshlrev_b32 v2, 4, v2")
    for r in range(4): a(f"v_mov_b32 v{4+r}, 0xffff")
    for i in range(5):
        a(f"ds_write_b128 v2, v[4:7] offset:{RECS + 4096*i}") if RECS + 4096*i < 65536 else None
        if RECS + 4096*i >= 65536:
            if RECS + 4096*(i-1) < 65536:
                a(f"v_add_u32 v3, {RECS}, v2")
            a(f"ds_write_b128 v3, v[4:7] offset:{4096*i}")
    a(f"v_mov_b32 v8, {50*BLK - 5*4096}")
    a("v_cmpx_lt_u32 vcc, v2, v8")
    a(f"ds_write_b128 v3, v[4:7] offset:{4096*5}")
    a("s_mov_b64 exec, -1")
    for r in range(4): a(f"v_mov_b32 v{4+r}, 0")
    if first:
        for i in range(6):
            a(f"ds_write_b128 v2, v[4:7] offset:{AGG + 4096*i}")
        a(f"v_mov_b32 v8, {50*RS - 6*4096}")
        a("v_cmpx_lt_u32 vcc, v2, v8")
        a(f"ds_write_b128 v2, v[4:7] offset:{AGG + 4096*6}")
        a("s_mov_b64 exec, -1")

def gen_k2(a):
    CURK[0] = 2
    WARM = opt("warm", 1)
    FB = 96
    a.label("k2_kernel")
    a(f"s_cmp_ge_u32 s2, {NB}")
    a("s_cbranch_scc1 K2_END")
    a("s_load_dwordx2 s[14:15], s[0:1], 64")
    a("s_load_dwordx2 s[4:5], s[0:1], 0")
    a("s_load_dwordx2 s[12:13], s[0:1], 48")
    stamp_start(a)
    stamp(a, 0)
    prio(a, 3)
    if opt("rot", 1):
        a("v_add_u32 v0, 768, v0")
        a("v_and_b32 v0, 1023, v0")
    a("v_lshrrev_b32 v2, 6, v0")
    a("v_and_b32 v1, 63, v0")
    a(f"v_readfirstlane_b32 s{sW}, v2")
    a("s_and_b32 s3, s2, 7")
    a("s_lshl_b32 s3, s3, 5")
    a(f"s_lshr_b32 s{sB}, s2, 3")
    a(f"s_add_u32 s{sB}, s{sB}, s3")
    a("v_mul_u32_u24 v12, 0x5556, v0")
    a("v_lshrrev_b32 v12, 16, v12")
    if opt("toff", 1):
        a("v_lshlrev_b32 v3, 2, v12")
        a("v_and_b32 v4, 31, v12")
        a("v_lshrrev_b32 v12, 5, v12")
        a("v_lshl_add_u32 v12, v4, 3, v12")
        a(f"s_lshl_b32 s3, s{sB}, 10")
        a(f"s_mov_b32 s{S_OFF+2}, {NB*1024}")
    else:
        a("v_lshlrev_b32 v3, 10, v12")
        a(f"s_lshl_b32 s3, s{sB}, 2")
        a(f"s_mov_b32 s{S_OFF+2}, {NP*1024}")
    a(f"s_mov_b32 s{S_OFF+3}, 0x00020000")
    a(f"s_cmp_ge_u32 s{sW}, 12")
    a(f"s_cselect_b32 s{sDYN}, 1, 0")
    a("s_cbranch_scc1 K2_HELP")
    def setup():
        srd(a, S_TABR, 14, 15, N*128, WS_TAB)
        a(f"s_mov_b32 s{S_TAB}, s{S_TABR}")
        a(f"s_or_b32 s{S_TAB+1}, s{S_TABR+1}, {128 << 16}")
        a(f"s_mov_b32 s{S_TAB+2}, {N}")
        a(f"s_mov_b32 s{S_TAB+3}, 0x00020000")
        if SRD4:
            for i in range(1, 4):
                r = 84 + 4*i
                a(f"s_sub_u32 s{r}, s{S_TAB}, {1024*i}")
                a(f"s_subb_u32 s{r+1}, s{S_TAB+1}, 0")
                a(f"s_mov_b32 s{r+2}, {N}")
                a(f"s_mov_b32 s{r+3}, 0x00020000")
        srd(a, S_OUT, 12, 13, N*128)
        srd(a, S_REC, 14, 15, NP*RSTR, WS_REC)
        a(f"s_mov_b32 s{sSC}, 0x2d800000")
        a(f"s_mov_b32 s{sSC+1}, 0x2d800000")
        a(f"s_movk_i32 s{sCAPN}, {CAPN}")
        a(f"s_mov_b32 s{sRECS}, {RECS}")
        a(f"s_mov_b32 s{sMODE}, 0")
        a(f"s_mov_b32 s{sMODE2}, 0")
        a(f"s_mov_b32 s{sCHUNK}, 0")
        a(f"s_mov_b32 s{sK}, {KS}")
        a(f"s_mov_b32 s{sM}, {MD}")
        a(f"s_mov_b32 s{sONE}, 1.0")
        a(f"s_mov_b32 s{sONE+1}, 1.0")
        a(f"s_lshl_b32 s{sSLOT}, s{sW}, 12")
        a(f"s_add_u32 s{sSLOT}, s{sSLOT}, {STG}")
        a(f"s_mul_i32 s{sNODE0}, s{sB}, {NPB}")
    def rec_prep(first):
        a("v_mul_u32_u24 v3, 0x5556, v0")
        a("v_lshrrev_b32 v4, 16, v3")
        if not first:
            if opt("toff", 1):
                a("v_and_b32 v3, 31, v4")
                a("v_lshrrev_b32 v12, 5, v4")
                a("v_lshl_add_u32 v12, v3, 3, v12")
            else:
                a("v_mov_b32 v12, v4")
        a("v_mul_u32_u24 v3, 3, v4")
        a("v_sub_u32 v3, v0, v3")
        a("v_lshlrev_b32 v3, 2, v3")
        if not first:
            a(f"v_add_u32 v3, s{sCHUNK}, v3")
        a(f"v_mul_u32_u24 v4, {RSTR//4}, v12")
        if first and opt("toff", 1):
            a(f"v_cmp_gt_u32 s[86:87], {hex(NP)}, v12") if False else None
            a(f"v_mov_b32 v6, {NP}")
            a("v_cmp_lt_u32 s[86:87], v12, v6")
    VM = lambda j: f"s[{sVAL+2*j}:{sVAL+2*j+1}]"
    def rec_masks():
        a(f"v_lshrrev_b32 v5, 16, v{OFFW}")
        a("v_sub_u32 v2, v5, v3")
        for j in (0, 4, 8):
            a(f"v_cmp_lt_i32 {VM(j)}, {12*(j>>2)+(j&3)}, v2")
    def rec_masks2():
        for j in range(NR):
            if j & 3: a(f"v_cmp_lt_i32 {VM(j)}, {12*(j>>2)+(j&3)}, v2")
    def orm(r, dst):
        a(f"s_or_b64 s[84:85], {VM(4*r)}, {VM(4*r+1)}")
        a(f"s_or_b64 s[84:85], s[84:85], {VM(4*r+2)}")
        a(f"s_or_b64 {dst}, s[84:85], {VM(4*r+3)}")
    def rec_loads(first, lab):
        a(f"v_and_b32 v6, 0xffff, v{OFFW}")
        if not first:
            a(f"v_lshrrev_b32 v5, 16, v{OFFW}")
        a("v_add_u32 v4, v6, v4")
        a("v_add_lshl_u32 v5, v4, v5, 2")
        a("v_add_lshl_u32 v4, v4, v3, 2")
        a("v_add_u32 v5, v5, v3")
        for r in range(3):
            if first: a(f"s_or_b64 exec, {VM(4*r)}, {VM(4*r)}")
            else: orm(r, "exec")
            if r == 2: a(f"s_cbranch_scc0 {lab}")
            a(f"buffer_load_dword v{44+r}, v5, s[{S_REC}:{S_REC+3}], 0 offen offset:{12*r}")
            a(f"buffer_load_dwordx4 v[{32+4*r}:{35+4*r}], v4, s[{S_REC}:{S_REC+3}], 0 offen offset:{48*r}")
        a.label(lab)
        a("s_mov_b64 exec, -1")
    def fixups(static):
        a(f"s_lshl_b32 s3, s{sW}, 5")
        if static:
            a(f"s_lshl_b32 s4, s{sM}, 9")
            a("s_add_u32 s3, s3, s4")
        for r in (VA, VE, VG):
            a(f"v_add_u32 v{r}, s3, v{r}")
        for k in range(4):
            a(f"v_add_u32 v{RA+k}, s{sSLOT}, v{RA+k}")
    def qpoll(lab, off=0):
        a(f"v_mov_b32 v5, {QC+off}")
        a.label(lab)
        a("ds_read_b32 v8, v5")
        a("s_waitcnt lgkmcnt(0)")
        a("v_readfirstlane_b32 s3, v8")
        a("s_cmp_lt_u32 s3, 4")
        a(f"s_cbranch_scc1 {lab}")
    a("s_waitcnt lgkmcnt(0)")
    a(f"s_add_u32 s{S_OFF}, s14, {WS_OFF}")
    a(f"s_addc_u32 s{S_OFF+1}, s15, 0")
    a(f"buffer_load_dword v{OFFW}, v3, s[{S_OFF}:{S_OFF+3}], s3 offen")
    if opt("b0e", 1): a("s_barrier")
    srd(a, S_REC, 14, 15, NP*RSTR, WS_REC)
    rec_prep(True)
    if not opt("b0e", 1): a("s_barrier")
    a("s_waitcnt vmcnt(0)")
    if not opt("stb2", 0): stamp(a, 2)
    if opt("toff", 1):
        a("s_nop 0")
        a(f"v_cndmask_b32 v{OFFW}, 0, v{OFFW}, s[86:87]")
    rec_masks()
    rec_loads(True, "K2_RL1")
    a(f"s_mov_b32 s{sCHUNK}, 0")
    setup()
    a(f"s_lshr_b32 s{sWB}, s2, 3")
    rec_masks2()
    first_addr(a)
    a(f"v_mov_b32 v{PM}, 0")
    a(f"v_mov_b32 v{PM2}, 0")
    a(f"s_mul_i32 s3, s{sWB}, {W1L_*128}")
    a("v_lshlrev_b32 v17, 7, v0")
    a("v_add_u32 v17, s3, v17")
    a(f"v_lshrrev_b32 v16, 16, v{OFFW}")
    a(f"v_cmp_lt_u32 vcc, {CHK}, v16")
    a("s_nop 1")
    a("s_cbranch_vccz K2_PASS")
    a("s_mov_b64 exec, vcc")
    a(f"v_mov_b32 v3, {FLG}")
    a("ds_max_u32 v3, v16")
    a("s_mov_b64 exec, -1")
    a.label("K2_PASS")
    a("v_mov_b32 v2, 1")
    a("v_min_u32 v18, 48, v1")
    a("v_mul_u32_u24 v19, 12, v18")
    a(f"v_mul_u32_u24 v18, {CAPN}, v18")
    a(f"v_add_u32 v18, {RECS//4 + CAPN}, v18")
    a("v_lshlrev_b32 v3, 4, v1")
    a(f"v_add_u32 v{CADR}, {CONSTL}, v3")
    qpoll("K2_QPOLL0", 4)
    const_read2(a)
    a(f"s_mul_i32 s84, s{sW}, {4*BLK}")
    a(f"s_mul_i32 s85, s{sW}, {4*RS}")
    a("s_waitcnt lgkmcnt(0)")
    a(f"v_add_u32 v{SE}, s84, v{GNR}")
    a(f"v_add_u32 v{FA1}, s85, v{GNR+1}")
    a(f"v_add_u32 v{FA1+1}, {RS}, v{FA1}")
    fixups(True)
    orm(2, "s[84:85]")
    a(f"s_cselect_b32 s{sTN}, 1, 0")
    def warm1():
        a(f"s_cmp_ge_u32 s{sW}, {(W1L_ + 63)//64}")
        a("s_cbranch_scc1 K2_NOWARM")
        a(f"buffer_load_dword v{GBE}, v17, s[{S_TABR}:{S_TABR+3}], 0 offen")
        a.label("K2_NOWARM")
    a("s_waitcnt vmcnt(0)")
    stamp(a, 3)
    for r in range(3):
        if r == 2:
            a(f"s_cbranch_scc0 K2_RK8")
        for j in range(4*r, 4*r+4):
            a(f"v_lshlrev_b32_sdwa v{48+j}, 2, v{44+r} dst_sel:DWORD dst_unused:UNUSED_PAD src0_sel:DWORD src1_sel:BYTE_{j&3}")
        for j in range(4*r, 4*r+4):
            a(f"s_mov_b64 exec, {VM(j)}")
            a(f"ds_add_rtn_u32 v{60+j}, v{48+j}, v2 offset:{CNT}")
        a("s_mov_b64 exec, -1")
    a.label("K2_RK8")
    if WARM:
        warm1()
    a("s_waitcnt lgkmcnt(0)")
    a("s_barrier")
    stamp(a, 4)
    a(f"ds_read2_b32 v[8:9], v19 offset0:{CNT//4+1} offset1:{CNT//4+2}")
    for j in range(NR):
        if j == 8:
            a(f"s_cmp_eq_u32 s{sTN}, 0")
            a("s_cbranch_scc1 K2_PL0")
        if j >= 4: a(f"s_mov_b64 exec, {VM(j)}")
        a(f"ds_read_b32 v{20+j}, v{48+j} offset:{CNT-4}")
    a.label("K2_PL0")
    a("s_mov_b64 exec, -1")
    a("s_waitcnt lgkmcnt(0)")
    a("v_add_u32 v8, v8, v9")
    a("v_cmp_gt_u32 vcc, v8, v18")
    a("s_nop 1")
    a("s_cbranch_vccnz K2_CAREFUL")
    for j in range(NR):
        if j == 8:
            a(f"s_cbranch_scc1 K2_PL4")
        a(f"s_mov_b64 exec, {VM(j)}")
        a(f"v_add_lshl_u32 v{48+j}, v{60+j}, v{20+j}, 2")
        a(f"ds_write_b32 v{48+j}, v{32+j}")
    a.label("K2_PL4")
    a("s_mov_b64 exec, -1")
    a("s_waitcnt lgkmcnt(0)")
    if opt("stb2", 0): stamp(a, 2)
    a("s_barrier")
    stamp(a, 5)
    a(f"s_cmp_lg_u32 s{sMODE}, 0")
    a("s_cbranch_scc1 K2_SLOWHEAD")
    sidx(a, 0)
    a("s_waitcnt lgkmcnt(0)")
    dma4(a, True)
    stamp(a, 6)
    sidx(a, 1)
    a(f"v_mov_b32 v2, {FLG+8}")
    a("ds_read_b64 v[4:5], v2")
    a(f"ds_read_u16 v{AEXT+2}, v{SE}")
    bext(a, FA1)
    a("s_waitcnt lgkmcnt(5)")
    a(f"v_readfirstlane_b32 s{sT}, v4")
    a(f"v_readfirstlane_b32 s{sOVF}, v5")
    count_tiles(a)
    a(f"s_mov_b32 s{sIT}, 100")
    prio(a, SP0)
    a("s_waitcnt vmcnt(0)")
    stamp(a, 1)
    aread(a)
    a("s_waitcnt lgkmcnt(0)")
    static_phase(a)
    a.label("K2_HELP")
    a(f"s_sub_u32 s{sNT}, s{sW}, 12")
    a("v_lshlrev_b32 v13, 4, v1")
    a("v_lshrrev_b32 v5, 3, v1")
    a("v_and_b32 v6, 7, v1")
    a("v_xor_b32 v6, v6, v5")
    a("v_lshlrev_b32 v6, 4, v6")
    a("v_lshl_add_u32 v6, v5, 7, v6")
    a(f"s_mul_i32 s{sNODE0}, s{sB}, {NPB}")
    a(f"s_lshl_b32 s3, s{sNT}, 11")
    a(f"s_lshl_b32 s84, s{sNODE0}, 7")
    a("s_add_u32 s84, s84, s3")
    a("v_add_u32 v6, s84, v6")
    a("v_mov_b32 v12, v6")
    cnt_init(a, 1)
    a(f"s_add_u32 m0, s3, {CONSTL}")
    a("s_waitcnt lgkmcnt(0)")
    a("s_barrier")
    srd(a, S_CON, 14, 15, 8192*4, WS_CONST)
    a(f"s_cmp_eq_u32 s{sNT}, 3")
    a(f"buffer_load_dwordx4 v13, s[{S_CON}:{S_CON+3}], s3 offen lds")
    a("s_cselect_b32 exec_hi, 0, -1")
    a(f"buffer_load_dwordx4 v13, s[{S_CON}:{S_CON+3}], s3 offen offset:1024 lds")
    a("s_mov_b64 exec, -1")
    a(f"s_add_u32 m0, s3, {PST + 16384}")
    srd(a, S_X, 4, 5, N*128)
    a(f"buffer_load_dwordx4 v12, s[{S_X}:{S_X+3}], 0 offen lds")
    a(f"buffer_load_dwordx4 v12, s[{S_X}:{S_X+3}], 0 offen offset:1024 lds")
    a(f"s_add_u32 m0, s3, {PST}")
    a("s_add_u32 s4, s3, 8192")
    for i in range(2):
        a(f"buffer_load_dwordx4 v13, s[{S_CON}:{S_CON+3}], s4 offen offset:{1024*i} lds")
    setup()
    def hprep():
        first_addr(a)
        for i in range(4): a(f"v_mov_b32 v{RP+2*i}, -1")
        a("v_min_u32 v12, 48, v1")
        a("v_mul_u32_u24 v13, 12, v12")
        a("v_cmp_gt_u32 s[84:85], 48, v1")
        a(f"v_mul_u32_u24 v27, {RS}, v12")
        a(f"v_mul_u32_u24 v26, {BLK}, v12")
        a("v_lshrrev_b32 v28, 2, v26")
        a(f"v_add_u32 v28, {RECS//4}, v28")
        a("v_subrev_u32 v29, 48, v1")
        a(f"v_mov_b32 v11, s{sK}")
        a("v_cndmask_b32 v12, v29, v11, s[84:85]")
        a("v_cndmask_b32 v24, 1, 14, s[84:85]")
        a("v_lshl_add_u32 v26, v12, 5, v26")
        a(f"v_add_u32 v26, s{sRECS}, v26")
        a(f"s_lshl_b32 s60, s{sM}, 4")
        a(f"s_mul_i32 s61, s{sM}, 384")
        a(f"s_add_u32 s61, s61, {GT}")
    def tile_addrs():
        a("v_lshrrev_b32 v7, 4, v1")
        a("v_and_b32 v25, 15, v1")
        a(f"s_lshl_b32 s3, s{sNT}, 4")
        a("v_add_u32 v25, s3, v25")
        a(f"v_mul_u32_u24 v6, {RS}, v25")
        a("v_lshl_add_u32 v6, v7, 5, v6")
        a("v_mul_u32_u24 v10, 12, v25")
        a("v_cmp_gt_u32 s[86:87], 50, v25")
        a("v_lshlrev_b32 v3, 4, v1")
        a(f"v_add_u32 v{CADR}, {CONSTL}, v3")
    hprep()
    a(f"v_mov_b32 v5, {QC+4}")
    a("v_mov_b32 v8, 1")
    a("s_waitcnt vmcnt(4)")
    a("s_mov_b64 exec, 1")
    a("ds_add_u32 v5, v8")
    a("s_mov_b64 exec, -1")
    prefill(a, 1)
    tile_addrs()
    a("v_and_b32 v2, 7, v1")
    a("v_xor_b32 v2, v2, v7")
    a("v_lshlrev_b32 v2, 4, v2")
    a("v_lshl_add_u32 v2, v25, 7, v2")
    a(f"v_add_u32 v2, {PST + 16384}, v2")
    a("v_xor_b32 v4, 64, v2")
    a(f"v_add_u32 v3, {PST}, v3")
    a(f"v_mov_b32 v5, {QC}")
    a("v_mov_b32 v8, 1")
    a("s_waitcnt vmcnt(0)")
    if not opt("stb2", 0): stamp(a, 2)
    a("s_mov_b64 exec, 1")
    a("ds_add_u32 v5, v8")
    a("s_mov_b64 exec, -1")
    qpoll("K2_QPOLL")
    a("ds_read_b128 v[16:19], v2")
    a("ds_read_b128 v[20:23], v4")
    for q in range(8):
        a(f"ds_read_b128 v[{32+4*q}:{35+4*q}], v3 offset:{1024*q}")
    a(f"s_mov_b32 s84, {NLOG2E:#x}")
    a(f"s_mov_b32 s85, {NLOG2E:#x}")
    a("s_mov_b32 s3, 0x05040100")
    a("s_mov_b32 s4, 0x07060302")
    a("s_waitcnt lgkmcnt(0)")
    for ks in range(2):
        for ft in range(4):
            D = 64 + 4*ft; W = 32 + 8*ft + 4*ks
            a(f"v_mfma_f32_16x16x32_bf16 v[{D}:{D+3}], v[{W}:{W+3}], v[{16+4*ks}:{19+4*ks}], " + ("0" if ks == 0 else f"v[{D}:{D+3}]"))
    a("s_nop 4")
    for q in range(8):
        if q == 6: a("s_nop 0")
        a(f"v_pk_mul_f32 {P(64+2*q)}, {P(64+2*q)}, s[84:85]")
    for ft in range(4):
        for h in range(2):
            B = 64 + 4*ft + 2*h; O = 32 + 8*ft + 4*h
            a(f"v_cvt_pk_bf16_f32 v8, v{B}, v{B+1}")
            a("v_lshlrev_b32 v16, 16, v8")
            a("v_and_b32 v17, 0xffff0000, v8")
            a(f"v_pk_add_f32 v[16:17], {P(B)}, v[16:17] neg_lo:[0,1] neg_hi:[0,1]")
            a("v_cvt_pk_bf16_f32 v16, v16, v17")
            a(f"v_perm_b32 v{O}, v16, v8, s3")
            a(f"v_perm_b32 v{O+2}, v16, v8, s4")
        a("s_mov_b64 exec, s[86:87]")
        a(f"ds_write_b128 v6, v[{32+8*ft}:{35+8*ft}] offset:{BP + 128*ft}")
        a(f"ds_write_b128 v6, v[{36+8*ft}:{39+8*ft}] offset:{BP + 128*ft + 16}")
        a("s_mov_b64 exec, -1")
    a(f"v_mov_b32 v{PM}, 0")
    a(f"v_mov_b32 v{PM2}, 0")
    a.label("K2_HPASS")
    a.label("K2_HPASS2")
    a("s_waitcnt vmcnt(0) lgkmcnt(0)")
    stamp(a, 3)
    a("s_barrier")
    stamp(a, 4)
    a(f"ds_read2_b32 v[18:19], v13 offset0:{CNT//4+1} offset1:{CNT//4+2}")
    a(f"ds_read2_b32 v[22:23], v10 offset0:{CNT//4+1} offset1:{CNT//4+2}")
    a("s_waitcnt lgkmcnt(1)")
    a("v_add_u32 v8, v18, v19")
    a("v_sub_u32 v8, v8, v28")
    a(f"v_cmp_lt_u32 vcc, s{sCAPN}, v8")
    a(f"v_min_u32 v8, s{sCAPN}, v8")
    a("v_add_u32 v8, 7, v8")
    a("v_lshrrev_b32 v8, 3, v8")
    a("v_sub_u32 v8, v8, v12 clamp")
    a("v_min_u32 v8, v8, v24")
    a("v_mov_b32 v11, v8")
    a("s_cmp_lg_u64 vcc, 0")
    a(f"s_cselect_b32 s{sOVF}, 1, 0")
    scan64(a, 11)
    a(f"v_readlane_b32 s{sT}, v11, 63")
    a("v_sub_u32 v11, v11, v8")
    a(f"v_add_u32 v11, s{sNT}, v11")
    a(f"s_lshl_b32 s3, s{sNT}, 5")
    a("v_add_u32 v26, s3, v26")
    a(f"v_subrev_u32 v8, s{sNT}, v8")
    def pos():
        a("v_lshlrev_b32 v18, 3, v11")
        a("v_and_b32 v19, 0x78, v18")
        a("v_lshrrev_b32 v20, 4, v11")
        a("v_lshl_add_u32 v19, v20, 9, v19")
        a("v_cmp_gt_u32 s[84:85], s60, v11")
        a(f"v_add_u32 v19, {GT + 384}, v19")
        a("v_add_u32 v18, s61, v18")
        a("v_cndmask_b32 v18, v18, v19, s[84:85]")
    a("v_cmpx_lt_i32 vcc, 0, v8")
    a("s_nop 1")
    a("s_cbranch_execz K2_BLD1")
    a.label("K2_BLD0")
    pos()
    a("ds_write_b64 v18, v[26:27]")
    a("v_add_u32 v26, 128, v26")
    a("v_add_u32 v11, 4, v11")
    a("v_subrev_u32 v8, 4, v8")
    a("v_cmpx_lt_i32 vcc, 0, v8")
    a("s_nop 1")
    a("s_cbranch_execnz K2_BLD0")
    a.label("K2_BLD1")
    a("s_mov_b64 exec, -1")
    a(f"s_add_u32 s3, s{sT}, s{sNT}")
    a("v_mov_b32 v11, s3")
    a(f"v_mov_b32 v26, {RECS + NPB*BLK}")
    a(f"v_mov_b32 v27, {NPB*RS}")
    pos()
    a("ds_write_b64 v18, v[26:27]")
    a(f"s_add_u32 s{sT}, s{sT}, 3")
    a(f"s_lshr_b32 s{sT}, s{sT}, 2")
    a(f"v_mov_b32 v18, s{sT}")
    a(f"v_mov_b32 v19, s{sOVF}")
    a(f"v_mov_b32 v20, {FLG + 8}")
    a("ds_write_b64 v20, v[18:19]")
    count_tiles(a)
    a("s_waitcnt lgkmcnt(0)")
    if opt("stb2", 0): stamp(a, 2)
    a("s_barrier")
    stamp(a, 5)
    a.label("K2_DYNHEAD")
    def corr():
        a(f"s_cmp_eq_u32 s{sDYN}, 0")
        a("s_cbranch_scc1 K2_NOCORR")
        const_read2(a)
        a("v_add_u32 v22, v22, v23")
        a(f"v_mul_u32_u24 v23, {CAPN}, v25")
        a("v_sub_u32 v22, v22, v23")
        a("v_cmp_gt_u32 s[84:85], 48, v25")
        a(f"v_subrev_u32 v22, {RECS//4}, v22")
        a(f"s_lshl_b32 s3, s{sK}, 3")
        a("v_mov_b32 v23, s3")
        a(f"v_min_u32 v22, s{sCAPN}, v22")
        a("v_add_u32 v21, 7, v22")
        a("v_cndmask_b32 v23, 0, v23, s[84:85]")
        a("v_and_b32 v21, -8, v21")
        a("v_max_u32 v21, v21, v23")
        a("v_sub_u32 v21, v22, v21")
        a("v_cvt_f32_i32 v21, v21")
        for r in range(16):
            a(f"v_exp_f32 v{32+r}, v{64+r}")
        for q in range(8):
            a(f"v_pk_add_f32 {P(32+2*q)}, {P(32+2*q)}, s[{sONE}:{sONE+1}]")
        for r in range(16):
            a(f"v_rcp_f32 v{32+r}, v{32+r}")
        for q in range(8):
            a(f"v_pk_mul_f32 {P(64+2*q)}, {P(64+2*q)}, {P(32+2*q)}")
        a("s_mov_b64 exec, s[86:87]")
        for q in range(8):
            a(f"v_pk_mul_f32 {P(64+2*q)}, {P(64+2*q)}, v[20:21] op_sel:[0,1] op_sel_hi:[1,1]")
        for r in range(16):
            a(f"v_cvt_f64_f32 v[{32+2*r}:{33+2*r}], v{64+r}")
            a(f"ds_add_f64 v6, v[{32+2*r}:{33+2*r}] offset:{AGG + 128*(r>>2) + 8*(r&3)}")
        a("s_mov_b64 exec, -1")
        a("s_waitcnt lgkmcnt(15)")
        a("s_waitcnt lgkmcnt(15)") if False else None
        fixups(False)
        a.label("K2_NOCORR")
    if opt("cfirst", 1): corr()
    a(f"s_mov_b32 s{sIT}, 0")
    a(f"s_cmp_eq_u32 s{sREM}, 0")
    a("s_cbranch_scc1 K2_DYN0")
    a(f"ds_read_b32 v{GBA}, v{VA}")
    a(f"ds_read_b32 v{GBE}, v{VE}")
    a(f"ds_read2_b32 {P(GNR)}, v{VG} offset0:0 offset1:2")
    a("s_waitcnt lgkmcnt(2)")
    a(f"v_add_u32 v{GBA}, v{GBA}, v{CA}")
    idxread(a)
    a(f"ds_read_b32 v{GBA}, v{VA} offset:512")
    a("s_waitcnt lgkmcnt(1)")
    dma4(a, True)
    stamp(a, 6)
    a(f"v_add_u32 v{GBE}, v{GBE}, v{CE}")
    a(f"v_add_u32 v{FA0}, v{GNR}, v{L8}")
    a(f"v_add_u32 v{FA0+1}, v{GNR+1}, v{L8}")
    a(f"v_add_u32 v{VG}, 512, v{VG}")
    a(f"ds_read_u16 v{AEXT+2}, v{GBE}")
    bext(a, FA0)
    a("s_waitcnt lgkmcnt(5)")
    a(f"v_add_u32 v{GBA}, v{GBA}, v{CA}")
    a(f"s_cmp_lt_u32 s{sREM}, 2")
    a("s_cbranch_scc1 K2_DYN0")
    idxread(a)
    a(f"ds_read_b32 v{GBA}, v{VA} offset:1024")
    a.label("K2_DYN0")
    if not opt("cfirst", 1): corr()
    a(f"s_cmp_eq_u32 s{sREM}, 0")
    a("s_cbranch_scc1 K2_LOOPDONE")
    a("s_waitcnt vmcnt(0)")
    stamp(a, 1)
    aread(a)
    a("s_waitcnt lgkmcnt(0)")
    a(f"s_cmp_lt_u32 s{sREM}, 2")
    a("s_cbranch_scc1 K2_DYN1")
    dma4(a)
    a.label("K2_DYN1")
    for m in mfma3(D0, 0): a(m)
    a(f"v_add_u32 v{GBA}, v{GBA}, v{CA}")
    a(f"s_cmp_lg_u32 s{sMODE}, 0")
    a("s_nop 7")
    a("s_nop 1")
    a("s_cbranch_scc1 K2_S_LOOP0")
    dynloop(a, "F", False)
    a.label("K2_LOOPDONE")
    a("v_mov_b32 v2, 0x76800000")
    a("v_mov_b32 v3, 0x5f800000")
    a(f"v_cmp_nlt_f32 vcc, v{PM}, v2")
    a(f"v_cmp_nlt_f32 s[84:85], v{PM2}, v3")
    a("s_or_b64 vcc, vcc, s[84:85]")
    a("s_cbranch_scc0 K2_AFTER")
    a(f"v_mov_b32 v3, {FLG+4}")
    a("v_mov_b32 v2, 1")
    a("ds_write_b32 v3, v2")
    a.label("K2_AFTER")
    stamp(a, 7)
    a(f"v_mov_b32 v3, {FLG}")
    a(f"s_cmp_eq_u32 s{sDYN}, 0")
    a("s_cbranch_scc1 K2_B4")
    a("v_lshrrev_b32 v7, 4, v1")
    a(f"s_lshl_b32 s3, s{sNT}, 4")
    a("v_and_b32 v9, 15, v1")
    a("v_add_u32 v9, s3, v9")
    a(f"v_add_u32 v6, s{sNODE0}, v9")
    a("v_lshlrev_b32 v6, 7, v6")
    a("v_lshl_add_u32 v4, v7, 4, v6")
    a(f"buffer_load_dwordx4 v[16:19], v4, s[{S_X}:{S_X+3}], 0 offen")
    a(f"buffer_load_dwordx4 v[20:23], v4, s[{S_X}:{S_X+3}], 0 offen offset:64")
    a("v_lshlrev_b32 v4, 4, v1")
    for hq in range(4):
        a(f"s_mov_b32 s3, {16384 + 4096*hq}")
        for q in range(4):
            r = (96 if hq < 2 else 48) + 16*(hq & 1) + 4*q if hq >= 2 else (24 + 0)
            r = [96, 112 - 80, 48, 64][hq] + 4*q
            a(f"buffer_load_dwordx4 v[{r}:{r+3}], v4, s[{S_CON}:{S_CON+3}], s3 offen offset:{1024*q}")
    a(f"v_mul_u32_u24 v8, {RS}, v9")
    a("v_lshl_add_u32 v8, v7, 6, v8")
    a("v_lshl_add_u32 v6, v7, 5, v6")
    a("s_mov_b32 s86, 0xbfb8aa3b")
    a("s_mov_b32 s87, 0xbfb8aa3b")
    a("s_waitcnt vmcnt(8)")
    for ks in range(2):
        for ft in range(4):
            W = [96, 104, 32, 40][ft] + 4*ks
            a(f"v_mfma_f32_16x16x32_bf16 v[{80+4*ft}:{83+4*ft}], v[{W}:{W+3}], v[{16+4*ks}:{19+4*ks}], " + ("0" if ks == 0 else f"v[{80+4*ft}:{83+4*ft}]"))
    a("s_nop 4")
    for q in range(8):
        if q == 6: a("s_nop 0")
        a(f"v_pk_mul_f32 {P(80+2*q)}, {P(80+2*q)}, s[86:87]")
    a("s_waitcnt vmcnt(0)")
    a.label("K2_B4")
    a("s_waitcnt lgkmcnt(0)")
    a("s_barrier")
    stamp(a, 8)
    a("ds_read_b64 v[12:13], v3")
    a(f"s_cmp_eq_u32 s{sDYN}, 0")
    a("s_cbranch_scc1 K2_NOAGG")
    for ks in range(2):
        for h in range(4):
            r = 16 + 16*ks + 4*h
            a(f"ds_read_b128 v[{r}:{r+3}], v8 offset:{AGG + 256*ks + 16*h}")
    a("s_waitcnt lgkmcnt(8)")
    a("s_branch K2_FL")
    a.label("K2_NOAGG")
    a("s_waitcnt lgkmcnt(0)")
    a.label("K2_FL")
    a("v_readfirstlane_b32 s84, v12")
    a("v_readfirstlane_b32 s85, v13")
    a(f"s_cmp_lg_u32 s{sOVF}, 0")
    a("s_cbranch_scc1 K2_RETRY")
    a(f"s_add_u32 s3, s{sCHUNK}, {CHK}")
    a("s_cmp_gt_u32 s84, s3")
    a("s_cbranch_scc1 K2_NEXTCHUNK")
    a(f"s_andn2_b32 s85, s85, s{sMODE}")
    a("s_cbranch_scc1 K2_GOSLOW")
    a(f"s_cmp_eq_u32 s{sDYN}, 0")
    a("s_cbranch_scc1 K2_FIN")
    a("s_mov_b32 s86, 0xbfb8aa3b")
    a("s_mov_b32 s87, 0xbfb8aa3b")
    a(f"s_mov_b32 s84, {NLN2:#x}")
    a(f"s_mov_b32 s85, {NLN2:#x}")
    for r in range(16):
        if r % 2 == 0: a(f"s_waitcnt lgkmcnt({7 - r//2})")
        a(f"v_cvt_f32_f64 v{96+r}, v[{16+2*r}:{17+2*r}]")
        if r % 2 == 1:
            a(f"v_pk_mul_f32 {P(95+r)}, {P(95+r)}, s[84:85]")
            a(f"v_cvt_pk_bf16_f32 v{112+r//2}, v{95+r}, v{96+r}")
    a(f"v_cmp_gt_u32 vcc, {NPB}, v9")
    a("v_mov_b32 v12, s86")
    a("v_mov_b32 v13, s86")
    for ks in range(2):
        for ft in range(4):
            a(f"v_mfma_f32_16x16x32_bf16 v[{16+4*ft}:{19+4*ft}], v[{48+8*ft+4*ks}:{51+8*ft+4*ks}], v[{112+4*ks}:{115+4*ks}], " + ("0" if ks == 0 else f"v[{16+4*ft}:{19+4*ft}]"))
    a("s_nop 4")
    for q in range(8):
        if q == 6: a("s_nop 0")
        a(f"v_pk_fma_f32 {P(80+2*q)}, {P(16+2*q)}, s[86:87], {P(80+2*q)}")
    for r in range(16):
        a(f"v_exp_f32 v{16+r}, v{80+r}")
    for q in range(8):
        a(f"v_pk_fma_f32 {P(16+2*q)}, {P(16+2*q)}, s[86:87], v[12:13]")
    for r in range(16):
        a(f"v_rcp_f32 v{16+r}, v{16+r}")
    for q in range(8):
        a(f"v_pk_mul_f32 {P(16+2*q)}, {P(16+2*q)}, {P(80+2*q)}")
    for q in range(8):
        a(f"v_cvt_pk_bf16_f32 v{32+q}, v{16+2*q}, v{17+2*q}")
    a("s_mov_b64 exec, vcc")
    so = ["", " sc1", " nt", " sc0 sc1", " sc1 nt"][opt("osc", 0)]
    a(f"buffer_store_dwordx4 v[32:35], v6, s[{S_OUT}:{S_OUT+3}], 0 offen" + so)
    a(f"buffer_store_dwordx4 v[36:39], v6, s[{S_OUT}:{S_OUT+3}], 0 offen offset:16" + so)
    a.label("K2_FIN")
    stamp_flush(a, 1, 14, 15, sW, sT)
    a.label("K2_END")
    a("s_endpgm")
    dynloop(a, "S", True)
    a.label("K2_SLOWHEAD")
    for i in range(4): a(f"v_mov_b32 v{RP+2*i}, -1")
    a(f"v_mov_b32 v2, {FLG+8}")
    a("ds_read_b64 v[4:5], v2")
    a("s_waitcnt lgkmcnt(0)")
    a(f"v_readfirstlane_b32 s{sT}, v4")
    a(f"v_readfirstlane_b32 s{sOVF}, v5")
    count_tiles(a)
    a("s_branch K2_DYNHEAD")
    a.label("K2_CAREFUL")
    for j in range(NR):
        a(f"s_mov_b64 exec, {VM(j)}")
        a(f"v_mul_u32_u24 v{48+j}, 0x5556, v{48+j}")
        a(f"v_lshrrev_b32 v{48+j}, 18, v{48+j}")
        a(f"v_mul_u32_u24 v{48+j}, {CAPN}, v{48+j}")
        a(f"v_add_u32 v{48+j}, {RECS//4 + CAPN}, v{48+j}")
        a(f"v_add_u32 v{60+j}, v{60+j}, v{20+j}")
        a(f"v_cmpx_lt_u32 vcc, v{60+j}, v{48+j}")
        a(f"v_lshlrev_b32 v{60+j}, 2, v{60+j}")
        a(f"s_andn2_b64 {VM(j)}, {VM(j)}, vcc")
        a(f"ds_write_b32 v{60+j}, v{32+j}")
    a("s_branch K2_PL4")
    a.label("K2_GOSLOW")
    a(f"s_mov_b32 s{sMODE}, 1")
    a(f"s_mov_b32 s{sCHUNK}, {-CHK}")
    a(f"s_mov_b32 s{sK}, 0")
    a(f"s_mov_b32 s{sM}, 0")
    a("s_waitcnt lgkmcnt(0)")
    a("s_barrier")
    a(f"s_cmp_eq_u32 s{sDYN}, 0")
    a("s_cbranch_scc1 K2_NEXTCHUNK")
    prefill(a, 2)
    cnt_init(a, 2)
    a("s_branch K2_HAGAIN")
    a.label("K2_NEXTCHUNK")
    a(f"s_add_u32 s{sCHUNK}, s{sCHUNK}, {CHK}")
    a(f"s_cmp_lg_u32 s{sDYN}, 0")
    a("s_cbranch_scc1 K2_RETRY")
    rec_prep(False)
    rec_masks()
    rec_masks2()
    a.label("K2_RETRY")
    a("s_waitcnt lgkmcnt(0)")
    a(f"s_cmp_lg_u32 s{sDYN}, 0")
    a("s_cbranch_scc1 K2_HRETRY")
    rec_prep(False)
    rec_loads(False, "K2_RL2")
    first_addr(a)
    a("v_bfrev_b32 v17, 1")
    a("s_barrier")
    a("s_branch K2_PASS")
    a.label("K2_HAGAIN")
    a(f"s_add_u32 s{sCHUNK}, s{sCHUNK}, {CHK}")
    a("s_branch K2_HR2")
    a.label("K2_HRETRY")
    prefill(a, 0)
    cnt_init(a, 0)
    a.label("K2_HR2")
    hprep()
    tile_addrs()
    a(f"v_add_u32 v2, {BP}, v6")
    for q in range(8):
        a(f"ds_read2_b32 v[{32+2*q}:{33+2*q}], v2 offset0:{32*(q>>1)+4*(q&1)} offset1:{32*(q>>1)+4*(q&1)+2}")
    a("s_waitcnt lgkmcnt(0)")
    a("s_barrier")
    for r in range(16):
        a(f"v_lshlrev_b32 v{64+r}, 16, v{32+r}")
        a(f"v_and_b32 v{32+r}, 0xffff0000, v{32+r}")
        a(f"v_add_f32 v{64+r}, v{64+r}, v{32+r}")
    a("s_branch K2_HPASS2")

HEAD = open("standalone__mpnn_edge_mlp__graph.s.ref").read().split("; Override launch")[0]

def main(out):
    a = Asm()
    a.lines.append(HEAD.rstrip())
    a.lines.append(f"; @launch kernel=k1_kernel grid=({NP+1},1,1) block=({K1W*64},1,1) lds=90112")
    a.lines.append(f"; @launch kernel=k2_kernel grid=({NB},1,1) block=(1024,1,1) lds={K2_LDS}")
    a('.amdgcn_target "amdgcn-amd-amdhsa--gfx950"')
    a(".text")
    for k, g in (("k1_kernel", gen_k1), ("k2_kernel", gen_k2)):
        a(f".globl {k}")
        a(".p2align 8")
        a(f".type {k},@function")
        g(a)
    a('.section .rodata,"a"')
    a(".p2align 6")
    a.lines.append(desc("k1_kernel", max(128, 48 + 36*opt("u", 2) + 4), 102).rstrip())
    a(".p2align 6")
    a.lines.append(desc("k2_kernel", 128, 102).rstrip())
    open(out, "w").write(a.text())

if __name__ == "__main__":
    main(sys.argv[1] if len(sys.argv) > 1 else "standalone__mpnn_edge_mlp__graph.s")
```

```python
import sys, os
sys.path.insert(0, os.path.dirname(__file__))
from asmlib import *

CURK = [1]
STK2 = [88, 90, 92, 94, 96, 98, 0, 80, 36, 38] if not os.environ.get('LOOPST') else [88, 90, 92, 94, 96, 98, 0, 82, 36, 38]
STAMP = int(os.environ.get("STAMP", "0"))
OPT = dict(kv.split("=") for kv in os.environ.get("OPT", "").split(",") if kv)
def opt(k, d): return int(OPT.get(k, d))

N = 12500; E = 800000
NP = 250; CH = 3200
NPB = 49; NB = 256
TROWS = 50
WS_TAB = 4096; WS_OFF = 0x200000; WS_REC = 0x400000
WS_STAMP = 0x1000000
NLOG2E = 0xbfb8aa3b
NLN2 = 0xbf317218

LOOPST = int(os.environ.get("LOOPST", "0"))
SEEN = set()
def stamp(a, idx, loop=False):
    if not STAMP: return
    if opt("stb0", 0) and CURK[0] == 2:
        if idx in SEEN: return
        SEEN.add(idx)
    if LOOPST == 3 and CURK[0] == 2:
        if not loop and idx not in (0, 9): return
    elif LOOPST and CURK[0] == 2 and not loop and idx not in (8, 9) and not (idx == 5): return
    if LOOPST in (1, 2) and CURK[0] == 2 and not loop and idx == 5: idx = 0
    assert idx < 10
    if CURK[0] == 2:
        a("s_memtime s[88:89]")
        a("s_waitcnt lgkmcnt(0)") if False else None
        a(f"s_memtime s[{STK2[idx]}:{STK2[idx]+1}]") if False else None
        a.lines.pop() if False else None
        a.lines.pop()
        a(f"s_memtime s[{STK2[idx]}:{STK2[idx]+1}]")
        return
    a(f"s_memtime s[{80+2*idx}:{81+2*idx}]")
def stamp_start(a):
    if not STAMP: return
    a("s_memrealtime s[100:101]")
    for i in range(10): a(f"s_mov_b32 s{80+2*i}, 0") if False else None
def stamp_flush(a, kern, wsl, wsh, wave, extra=None):
    if not STAMP: return
    a("s_waitcnt vmcnt(0)")
    stamp(a, 9)
    a(f"s_memrealtime s[76:77]")
    if STAMP == 2:
        lab = f"DBG_{kern}_{len(a.lines)}"
        a("s_load_dwordx2 s[72:73], s[0:1], 56")
        a(f"s_waitcnt lgkmcnt(0)")
        a(f"s_mov_b64 exec, 1")
        if kern == 0:
            a("s_add_u32 s72, s72, 512")
            a("s_addc_u32 s73, s73, 0")
        a("v_mov_b32 v2, 0")
        a("s_cmp_lg_u32 s2, 5")
        a(f"s_cbranch_scc1 {lab}")
        a(f"s_cmp_lg_u32 s{wave}, 0")
        a(f"s_cbranch_scc1 {lab}")
        a("v_mov_b32 v3, s100")
        a(f"global_store_dword v2, v3, s[72:73] offset:{32*kern}")
        a("v_mov_b32 v3, s76")
        a(f"global_store_dword v2, v3, s[72:73] offset:{32*kern+4}")
        idx = (3, 4, 5, 6, 7, 9) if kern == 0 else (2, 4, 6, 7, 8, 9)
        for i, k in enumerate(idx):
            a(f"s_sub_u32 s3, s{80+2*k}, s80")
            a("v_mov_b32 v3, s3")
            a(f"global_store_dword v2, v3, s[72:73] offset:{32*kern+8+4*i}")
        a.label(lab)
        a("s_waitcnt vmcnt(0)")
        return
    a(f"s_lshl_b32 s78, s2, 4")
    a(f"s_add_u32 s78, s78, s{wave}")
    a(f"s_lshl_b32 s78, s78, 6")
    a(f"s_add_u32 s78, s78, {WS_STAMP + kern*0x100000}")
    a(f"s_waitcnt lgkmcnt(0)")
    a(f"s_mov_b64 exec, 1")
    a(f"v_mov_b32 v2, s78")
    srcs = ([80+2*i for i in range(10)] if kern == 0 else STK2) + [100, extra if extra is not None else 100, 100, 100, 100, 76]
    for i in range(16):
        a(f"v_mov_b32 v3, s{srcs[i]}")
        a(f"global_store_dword v2, v3, s[{wsl}:{wsh}] offset:{4*i}")
    a("s_waitcnt vmcnt(0)")
def prio(a, p):
    if opt("prio", 1): a(f"s_setprio {p}")

KS = opt("K", 7); MD = opt("M", 6)
PV = opt("pv", 0)
def _pp(t): return [tuple(int(c) for c in x) for x in t.split("-")]
SP0 = 3
SPRIO = dict(_pp(OPT.get("sprio", "22-41-60")))
DPRIO = tuple(_pp(OPT.get("dprio", "12-21-40")))
SPL = opt("spl", 4200)
W1L_ = (SPL + 31)//32; W2L_ = (N - SPL + 31)//32
RS = 528; CAPN = 112; BLK = CAPN*4
RSTR = 16896
CNT = 16; FLG = 624; QC = 0; AGG = 640; BP = AGG + 50*RS; RECS = BP + 50*RS; GT = RECS + 50*BLK
CONSTL = GT + 5632; STG = (CONSTL + 7680 + 127)//128*128
K2_LDS = STG + 65536
PST = STG
assert K2_LDS <= 163840
D0 = 16; D1 = 32; X = 48; A = 64; AEXT = 80; BX0 = 84; BX1 = 88; I0 = 92; I1 = 96
RA = 100; RP = 104; VA = 112; VE = 113; VG = 114; L8 = 115; CA = 116; CE = 117
FA0 = 118; FA1 = 120; GNR = 122; GBA = 124; GBE = 125; PM = 126; OFFW = 127
NN = 2; PA = 4; PB = 6; RR = 8; OUT = 10; CADR = 14; PM2 = 15
N0 = 2; P0 = 4; N1 = 8; P1 = 10; PT = 6; SA = 12; SE = 13
S_X = 16; S_OUT = 28; S_TAB = 32; S_OFF = 36; S_REC = 40; S_CON = 8; S_TABR = 20
sB = 44; sNODE0 = 45; sW = 46; sSLOT = 47; sREM = 48; sIT = 49; sCHUNK = 50; sMODE = 51; sOVF = 52; sNT = 53; sFT = 54
sMODE2 = 55; sTN = 56; sTMP = 57; sONE = 58
sVAL = 60
sCAPN = 6; sRECS = 7; sK = 24; sM = 25; sT = 26; sDYN = 27; sSC = 12; sWB = 54

K1W = 1 + (CH//4//opt('u', 2) + 63)//64
WS_CONST = 0x280000; WS_FRAG = WS_CONST + 8192
def gen_k1(a):
    HIST = 0; OFFS = 1024; RECS1 = 3072; W1L = RECS1 + RSTR; XL = W1L + 8192
    assert XL % 128 == 0
    st = ["", " sc1", " nt", " sc0 sc1", " sc1 nt"][opt("k1sc", 0)]
    stt = ["", " sc1", " nt", " sc0 sc1", " sc1 nt"][opt("tabsc", 0)]
    nt = " nt" if opt("k1nt", 1) else ""
    a.label("k1_kernel")
    a(f"s_cmp_ge_u32 s2, {NP}")
    a("s_cbranch_scc1 K1_EXTRA")
    a("s_load_dwordx8 s[4:11], s[0:1], 0")
    a("s_load_dwordx2 s[12:13], s[0:1], 32")
    a("s_load_dwordx2 s[14:15], s[0:1], 64")
    stamp_start(a)
    stamp(a, 0)
    a("v_lshrrev_b32 v2, 6, v0")
    a("v_and_b32 v1, 63, v0")
    a("v_readfirstlane_b32 s16, v2")
    U = opt("u", 2)
    NT = CH // 4 // U
    a("v_subrev_u32 v40, 64, v0")
    a(f"v_mov_b32 v41, {NT}")
    a("v_cmp_lt_u32 vcc, v40, v41")
    a(f"s_mul_i32 s17, s2, {CH*4}")
    a("v_lshlrev_b32 v3, 4, v40")
    a("v_add_u32 v2, s17, v3")
    a("s_cmp_eq_u32 s16, 0")
    a("s_cbranch_scc1 K1_TABLE")
    a("s_mov_b64 exec, vcc")
    DST = lambda u, j: 48 + 36*u + j
    SRC = lambda u, j: 52 + 36*u + j
    EE = lambda u: 56 + 36*u
    BK = lambda u, j: 58 + 36*u + j
    HA = lambda u, j: 62 + 36*u + j
    RK = lambda u, j: 66 + 36*u + j
    DL = lambda u, j: 70 + 36*u + j
    OF = lambda u, j: 74 + 36*u + 2*j
    for u in range(U):
        a(f"v_add_u32 v{4+u}, {u*NT*16}, v2")
        a(f"v_lshrrev_b32 v{8+u}, 1, v{4+u}")
    a("v_mov_b32 v35, 1")
    a(f"s_movk_i32 s3, {-NPB*3}")
    a("s_waitcnt lgkmcnt(0)")
    if not opt("k1dbg",0): stamp(a, 1)
    for u in range(U):
        a(f"global_load_dwordx4 v[{DST(u,0)}:{DST(u,3)}], v{4+u}, s[10:11]" + nt)
    a(f"s_mul_i32 s18, s2, {RSTR}")
    a(f"s_add_u32 s18, s18, {WS_REC}")
    if not opt("k1dbg",0): stamp(a, 2)
    a("s_barrier")
    for u in range(U):
        a(f"global_load_dwordx4 v[{SRC(u,0)}:{SRC(u,3)}], v{4+u}, s[8:9]" + nt)
    for u in range(U):
        a(f"global_load_dwordx2 v[{EE(u)}:{EE(u)+1}], v{8+u}, s[6:7]" + nt)
    stamp(a, 3)
    for u in range(U):
        a(f"s_waitcnt vmcnt({2*U + U-1-u})")
        if u == U-1: stamp(a, 4)
        for j in range(4):
            a(f"v_mul_u32_u24 v{BK(u,j)}, 5350, v{DST(u,j)}")
            a(f"v_lshrrev_b32 v{BK(u,j)}, 18, v{BK(u,j)}")
            a(f"v_lshlrev_b32 v{HA(u,j)}, 2, v{BK(u,j)}")
            a(f"ds_add_rtn_u32 v{RK(u,j)}, v{HA(u,j)}, v35 offset:{HIST}")
    a("s_waitcnt lgkmcnt(0)")
    a("s_barrier")
    stamp(a, 5)
    for u in range(U):
        for j in range(4):
            a(f"v_mad_u32_u24 v{DST(u,j)}, v{DST(u,j)}, 3, 1")
            a(f"v_mad_i32_i24 v{DL(u,j)}, v{BK(u,j)}, s3, v{DST(u,j)}")
            a(f"v_lshlrev_b32 v{HA(u,j)}, 1, v{HA(u,j)}")
    a("s_barrier")
    stamp(a, 6)
    for u in range(U):
        for j in range(4):
            a(f"ds_read_b64 v[{OF(u,j)}:{OF(u,j)+1}], v{HA(u,j)} offset:{OFFS}")
    a("s_mov_b32 s3, 0xffff0000")
    a("s_waitcnt lgkmcnt(0)")
    for u in range(U):
        for j in range(4):
            a(f"v_add_u32 v{OF(u,j)+1}, v{OF(u,j)+1}, v{RK(u,j)}")
            a(f"v_lshl_add_u32 v{OF(u,j)}, v{RK(u,j)}, 2, v{OF(u,j)}")
    for u in range(U):
        a(f"s_waitcnt vmcnt({U + U-1-u})")
        for j in range(4):
            a(f"v_add_u32 v{DST(u,j)}, {16384 - SPL}, v{SRC(u,j)}")
            a(f"v_lshrrev_b32 v{DST(u,j)}, 14, v{DST(u,j)}")
            a(f"v_add_u32 v{DL(u,j)}, v{DL(u,j)}, v{DST(u,j)}")
            a(f"ds_write_b8 v{OF(u,j)+1}, v{DL(u,j)} offset:{RECS1}")
    for u in range(U):
        a(f"s_waitcnt vmcnt({U-1-u})")
        if u == U-1 and opt("k1dbg",0): stamp(a, 1)
        a(f"v_lshl_or_b32 v{SRC(u,0)}, v{EE(u)}, 16, v{SRC(u,0)}")
        a(f"v_and_or_b32 v{SRC(u,1)}, v{EE(u)}, s3, v{SRC(u,1)}")
        a(f"v_lshl_or_b32 v{SRC(u,2)}, v{EE(u)+1}, 16, v{SRC(u,2)}")
        a(f"v_and_or_b32 v{SRC(u,3)}, v{EE(u)+1}, s3, v{SRC(u,3)}")
        for j in range(4):
            a(f"ds_write_b32 v{OF(u,j)}, v{SRC(u,j)} offset:{RECS1}")
    a("s_mov_b64 exec, -1")
    NW = K1W - 1
    NCP = (16768//16 + NW*64 - 1) // (NW*64)
    a("v_add_u32 v41, s18, v3")
    a(f"v_mov_b32 v42, {16768//16 - (NCP-1)*NW*64}")
    a("v_cmp_lt_u32 vcc, v40, v42")
    a("s_waitcnt lgkmcnt(0)")
    if opt("k1dbg",0): stamp(a, 2)
    a("s_barrier")
    stamp(a, 7)
    for c in range(NCP):
        a(f"ds_read_b128 v[{4+4*c}:{7+4*c}], v3 offset:{RECS1 + c*NW*1024}")
    for c in range(NCP):
        a(f"s_waitcnt lgkmcnt({NCP-1-c})")
        if c == NCP-1:
            a("s_cbranch_vccz K1_FIN")
            a("s_mov_b64 exec, vcc")
        a(f"global_store_dwordx4 v41, v[{4+4*c}:{7+4*c}], s[14:15]" + st)
        if c < NCP-1: a(f"v_add_u32 v41, {NW*1024}, v41")
    a.label("K1_FIN")
    stamp(a, 8)
    stamp_flush(a, 0, 14, 15, 16)
    a("s_endpgm")
    a.label("K1_TABLE")
    a("v_lshlrev_b32 v4, 4, v1")
    for r in range(4): a(f"v_mov_b32 v{36+r}, 0")
    a(f"ds_write_b128 v4, v[36:39] offset:{HIST}")
    a("v_lshrrev_b32 v5, 3, v1")
    a("v_and_b32 v6, 7, v1")
    a("v_xor_b32 v6, v6, v5")
    a("v_lshlrev_b32 v6, 4, v6")
    a("v_lshl_add_u32 v6, v5, 7, v6")
    a(f"s_mul_i32 s23, s2, {TROWS*128}")
    a("v_add_u32 v6, s23, v6")
    a("v_add_u32 v14, 4096, v6")
    a(f"s_mov_b32 m0, {XL}")
    a("s_waitcnt lgkmcnt(0)")
    stamp(a, 1)
    TF = opt("tfirst", 0)
    XE = opt("xearly", 1) or TF
    if not XE:
        a("s_barrier")
        stamp(a, 3)
    srd(a, 24, 4, 5, N*128)
    xp = " nt" if opt("k1xnt", 0) else ""
    for i in range(4):
        a(f"buffer_load_dwordx4 v6, s[24:27], 0 offen offset:{1024*i}" + xp + " lds")
    a(f"s_mov_b32 m0, {XL + 4096}")
    srd(a, 28, 12, 13, 129*128)
    for i in range(3):
        a(f"buffer_load_dwordx4 v14, s[24:27], 0 offen offset:{1024*i}" + xp + " lds")
    a(f"s_mov_b32 m0, {W1L}")
    a("s_movk_i32 s3, 0x1000")
    for i in range(4):
        a(f"buffer_load_dwordx4 v4, s[28:31], 0 offen offset:{1024*i} lds")
    a(f"s_mov_b32 m0, {W1L + 4096}")
    a("s_nop 0")
    for i in range(4):
        a(f"buffer_load_dwordx4 v4, s[28:31], s3 offen offset:{1024*i} lds")
    stamp(a, 2)
    if XE:
        a("s_barrier")
        stamp(a, 3)
    srd(a, 32, 14, 15, N*128, WS_TAB)
    a("v_lshrrev_b32 v7, 4, v1")
    a("v_bfe_u32 v8, v1, 2, 2")
    a("v_and_b32 v9, 3, v1")
    a("v_lshl_add_u32 v8, v7, 3, v8")
    a("v_lshlrev_b32 v8, 7, v8")
    a("v_lshl_add_u32 v8, v9, 5, v8")
    a("v_and_b32 v10, 15, v1")
    a("v_and_b32 v11, 7, v1")
    a("v_xor_b32 v11, v11, v7")
    a("v_lshlrev_b32 v11, 4, v11")
    a("v_lshl_add_u32 v11, v10, 7, v11")
    a("v_xor_b32 v12, 64, v11")
    a("v_lshlrev_b32 v13, 7, v10")
    a("v_lshl_add_u32 v13, v7, 5, v13")
    a("v_add_u32 v13, s23, v13")
    a("v_add_u32 v15, 4096, v13")
    a(f"s_mov_b32 s40, {NLOG2E:#x}")
    a(f"s_mov_b32 s41, {NLOG2E:#x}")
    a("v_cmp_gt_u32 s[42:43], 2, v10")
    if opt("toff", 1):
        a("s_and_b32 s3, s2, 7")
        a("s_lshl_b32 s3, s3, 5")
        a("s_lshr_b32 s44, s2, 3")
        a("s_add_u32 s3, s3, s44")
        a("s_lshl_b32 s3, s3, 2")
        a(f"s_add_u32 s3, s3, {WS_OFF}")
        a("v_lshlrev_b32 v3, 12, v1")
        a("v_add_u32 v3, s3, v3")
    else:
        a("s_lshl_b32 s3, s2, 10")
        a(f"s_add_u32 s3, s3, {WS_OFF}")
        a("v_add_u32 v3, s3, v4")
    def table():
        for nti in range(4):
            a(f"ds_read_b128 v[{80+8*nti}:{83+8*nti}], v11 offset:{XL + 2048*nti}")
            a(f"ds_read_b128 v[{84+8*nti}:{87+8*nti}], v12 offset:{XL + 2048*nti}")
        for ft in range(4):
            for ks in range(2):
                for h in range(2):
                    r = 16 + 8*ft + 4*ks + 2*h
                    a(f"ds_read_b64_tr_b16 v[{r}:{r+1}], v8 offset:{W1L + (32*ks+4*h)*128 + 8*ft}")
        a("s_waitcnt lgkmcnt(0)")
        def mm(nti):
            D = 48 + 16*(nti & 1); xa = 80 + 8*nti
            for ft in range(4):
                a(f"v_mfma_f32_16x16x32_bf16 v[{D+4*ft}:{D+3+4*ft}], v[{16+8*ft}:{19+8*ft}], v[{xa}:{xa+3}], 0")
            for ft in range(4):
                a(f"v_mfma_f32_16x16x32_bf16 v[{D+4*ft}:{D+3+4*ft}], v[{20+8*ft}:{23+8*ft}], v[{xa+4}:{xa+7}], v[{D+4*ft}:{D+3+4*ft}]")
        def fin(nti):
            D = 48 + 16*(nti & 1); o = 80 + 8*nti
            for q in range(8):
                a(f"v_pk_mul_f32 v[{D+2*q}:{D+1+2*q}], v[{D+2*q}:{D+1+2*q}], s[40:41]")
            for q in range(8):
                a(f"v_cvt_pk_bf16_f32 v{o+q}, v{D+2*q}, v{D+1+2*q}")
            if nti == 3: a("s_mov_b64 exec, s[42:43]")
            ar = 13 if nti < 2 else 15
            a(f"buffer_store_dwordx4 v[{o}:{o+3}], v{ar}, s[32:35], 0 offen offset:{2048*(nti&1)}" + stt)
            a(f"buffer_store_dwordx4 v[{o+4}:{o+7}], v{ar}, s[32:35], 0 offen offset:{2048*(nti&1)+16}" + stt)
            if nti == 3: a("s_mov_b64 exec, -1")
        TB = opt("tb", 4)
        def b3(k):
            if TB == k and not TF:
                a("s_barrier")
                stamp(a, 7)
        b3(0); mm(0); mm(1); fin(0); mm(2); b3(1); fin(1); mm(3); b3(2); fin(2); a("s_nop 7"); b3(3); fin(3); b3(4)
    a("s_setprio 3")
    if TF:
        a("s_waitcnt vmcnt(0)")
        stamp(a, 4)
        table()
    a("s_barrier")
    stamp(a, 5)
    a(f"ds_read_b128 v[56:59], v4 offset:{HIST}")
    a("s_waitcnt lgkmcnt(0)")
    for j in range(4):
        a(f"v_add_u32 v{60+j}, 3, v{56+j}")
        a(f"v_lshrrev_b32 v{60+j}, 2, v{60+j}")
        a(f"v_add_u32 v{60+j}, v{60+j}, v{56+j}")
    a("v_add_u32 v66, v60, v61")
    a("v_add_u32 v67, v66, v62")
    a("v_add_u32 v68, v67, v63")
    a("v_mov_b32 v69, v68")
    a("s_nop 1")
    scan64(a, 69)
    a("v_sub_u32 v72, v69, v68")
    a("v_add_u32 v73, v72, v60")
    a("v_add_u32 v74, v72, v66")
    a("v_add_u32 v75, v72, v67")
    for j in range(4):
        a(f"v_lshlrev_b32 v{60+2*j}, 2, v{72+j}")
        a(f"v_add_lshl_u32 v{61+2*j}, v{72+j}, v{56+j}, 2")
    a("v_lshlrev_b32 v5, 5, v1")
    a(f"ds_write_b128 v5, v[60:63] offset:{OFFS}")
    a(f"ds_write_b128 v5, v[64:67] offset:{OFFS+16}")
    a("s_waitcnt lgkmcnt(0)")
    a("s_barrier")
    stamp(a, 6)
    for j in range(4):
        a(f"v_lshl_or_b32 v{76+j}, v{56+j}, 16, v{72+j}")
    if not TF:
        a("s_waitcnt vmcnt(0)")
        stamp(a, 4)
    if opt("toff", 1):
        for j in range(4):
            a(f"global_store_dword v3, v{76+j}, s[14:15] offset:{1024*j}" + st)
    else:
        a("global_store_dwordx4 v3, v[76:79], s[14:15]" + st)
    if not TF: table()
    stamp(a, 8)
    stamp_flush(a, 0, 14, 15, 16)
    a("s_endpgm")
    a.label("K1_EXTRA")
    a(f"s_cmp_lg_u32 s2, {NP}")
    a("s_cbranch_scc1 K1_END")
    a("s_load_dwordx4 s[8:11], s[0:1], 32")
    a("s_load_dwordx2 s[14:15], s[0:1], 64")
    a("v_lshrrev_b32 v2, 6, v0")
    a("v_and_b32 v1, 63, v0")
    a("v_readfirstlane_b32 s16, v2")
    a("s_waitcnt lgkmcnt(0)")
    srd(a, 20, 8, 9, 129*128)
    srd(a, 24, 10, 11, 128*128)
    a("s_cmp_eq_u32 s16, 0")
    a("s_cbranch_scc1 K1_CONST")
    a("s_sub_u32 s17, s16, 1")
    a.label("K1_FRAG")
    a("s_cmp_gt_u32 s17, 11")
    a("s_cbranch_scc1 K1_END")
    a("s_lshr_b32 s18, s17, 2")
    a("s_and_b32 s19, s17, 3")
    a("v_and_b32 v3, 15, v1")
    a("v_lshrrev_b32 v4, 4, v1")
    a("v_lshlrev_b32 v4, 10, v4")
    a("s_lshl_b32 s3, s19, 4")
    a("v_add_u32 v5, s3, v3")
    a("v_lshrrev_b32 v6, 2, v3")
    a("v_and_b32 v7, 3, v3")
    a("v_lshl_add_u32 v6, v6, 4, v7")
    a("s_lshl_b32 s3, s19, 2")
    a("v_add_u32 v6, s3, v6")
    a("s_cmp_ge_u32 s18, 1")
    a("s_cselect_b64 s[30:31], -1, 0")
    a("v_cndmask_b32 v5, v5, v6, s[30:31]")
    a("v_lshl_add_u32 v4, v5, 1, v4")
    a("s_cmp_eq_u32 s18, 0")
    a("s_cselect_b32 s28, s8, s10")
    a("s_cselect_b32 s29, s9, s11")
    a("s_movk_i32 s30, 0x4000")
    a("s_mov_b32 s31, 0x00020000")
    a("s_cmp_eq_u32 s18, 1")
    a("s_cselect_b32 s3, 0, 0x2000")
    a("s_add_u32 s4, s3, 0x1000")
    for ks in range(2):
        for j in range(8):
            a(f"buffer_load_ushort v{16+8*ks+j}, v4, s[28:31], s{3+ks} offen offset:{128*j}")
    srd(a, 32, 14, 15, 3*8192, WS_FRAG)
    a("s_lshl_b32 s3, s17, 11")
    a("v_lshlrev_b32 v2, 4, v1")
    a("s_waitcnt vmcnt(0)")
    for q in range(8):
        a(f"v_lshl_or_b32 v{8+q}, v{17+2*q}, 16, v{16+2*q}")
    a("buffer_store_dwordx4 v[8:11], v2, s[32:35], s3 offen")
    a("buffer_store_dwordx4 v[12:15], v2, s[32:35], s3 offen offset:1024")
    a(f"s_add_u32 s17, s17, {K1W-1}")
    a("s_branch K1_FRAG")
    a.label("K1_CONST")
    a("v_and_b32 v8, 31, v1")
    a("v_lshlrev_b32 v9, 1, v8")
    a("s_movk_i32 s3, 0x4000")
    a("buffer_load_ushort v24, v9, s[20:23], s3 offen")
    a("buffer_load_ushort v25, v9, s[20:23], s3 offen offset:64")
    a("v_lshrrev_b32 v11, 5, v1")
    a("v_lshlrev_b32 v47, 3, v8")
    a("v_lshlrev_b32 v12, 3, v11")
    a("v_sub_u32 v12, v8, v12")
    a("v_and_b32 v13, 1, v12")
    a("v_lshlrev_b32 v13, 4, v13")
    a("v_mov_b32 v14, 0x3f80")
    a("v_lshlrev_b32 v13, v13, v14")
    a("v_ashrrev_i32 v12, 1, v12")
    for i in range(4):
        a(f"v_cmp_eq_u32 s[{60+4*i}:{61+4*i}], {i}, v12")
        a(f"v_cmp_eq_u32 s[{62+4*i}:{63+4*i}], {8+i}, v12")
    for i in range(4):
        a(f"v_cndmask_b32 v{32+i}, 0, v13, s[{60+4*i}:{61+4*i}]")
        a(f"v_cndmask_b32 v{36+i}, 0, v13, s[{62+4*i}:{63+4*i}]")
    a("v_bfe_u32 v12, v8, 2, 1")
    a("v_and_b32 v13, 1, v8")
    a("v_lshl_or_b32 v14, v12, 1, v13")
    a("v_lshlrev_b32 v15, 1, v11")
    a("v_sub_u32 v15, v14, v15")
    a("v_cmp_eq_u32 s[60:61], 0, v15")
    a("v_cmp_eq_u32 s[62:63], 1, v15")
    a("v_mov_b32 v26, 0x3f803f80")
    a("s_nop 0")
    a("v_cndmask_b32 v56, 0, v26, s[60:61]")
    a("v_cndmask_b32 v57, 0, v26, s[62:63]")
    a("v_bfe_u32 v15, v8, 1, 1")
    a("v_lshrrev_b32 v26, 3, v8")
    a("v_lshl_or_b32 v27, v26, 1, v15")
    a("v_lshl_or_b32 v49, v27, 2, 2")
    a("v_lshl_or_b32 v27, v14, 3, v27")
    a("v_and_b32 v28, 3, v27")
    a("v_lshrrev_b32 v27, 2, v27")
    a("v_lshl_or_b32 v27, v28, 3, v27")
    a("v_and_b32 v28, 7, v8")
    a("v_xor_b32 v28, v28, v11")
    a("v_lshlrev_b32 v28, 4, v28")
    a("v_lshl_add_u32 v40, v27, 7, v28")
    for k in range(1, 4):
        a(f"v_xor_b32 v{40+k}, {32*k}, v40")
    a("v_lshlrev_b32 v48, 1, v1")
    a("v_and_b32 v48, 16, v48")
    a("v_lshrrev_b32 v7, 4, v1")
    a(f"s_mov_b32 s3, {GT}")
    a("v_lshl_add_u32 v44, v7, 3, s3")
    a("v_lshl_add_u32 v45, v14, 3, s3")
    a(f"s_mov_b32 s3, {GT + 4}")
    a("v_lshl_add_u32 v46, v11, 4, s3")
    a("v_and_b32 v5, 15, v1")
    a("v_and_b32 v2, 7, v1")
    a("v_xor_b32 v2, v2, v7")
    a("v_lshlrev_b32 v2, 4, v2")
    a("v_lshl_add_u32 v2, v5, 7, v2")
    a(f"v_add_u32 v52, {PST + 16384}, v2")
    a("v_lshlrev_b32 v3, 4, v1")
    a(f"v_add_u32 v53, {PST}, v3")
    a(f"v_mul_u32_u24 v54, {RS}, v5")
    a("v_lshl_add_u32 v54, v7, 5, v54")
    a("v_mul_u32_u24 v55, 12, v5")
    a(f"v_mul_u32_u24 v62, {BLK}, v14")
    a(f"s_mov_b32 s3, {RECS}")
    a("v_add3_u32 v62, v62, v49, s3")
    a(f"v_mul_u32_u24 v63, {2*RS}, v11")
    a("v_add_u32 v63, v63, v47")
    a(f"s_mov_b32 s3, {NLOG2E:#x}")
    a("v_cmp_gt_u32 s[60:61], 32, v1")
    a("v_mov_b32 v59, 0")
    a("v_mov_b32 v61, 0")
    a("s_waitcnt vmcnt(0)")
    for j in range(2):
        a(f"v_lshlrev_b32 v{24+j}, 16, v{24+j}")
        a(f"v_mul_f32 v{24+j}, s3, v{24+j}")
        a(f"v_cvt_pk_bf16_f32 v26, v{24+j}, v{24+j}")
        a("v_and_b32 v27, 0xffff0000, v26")
        a(f"v_sub_f32 v27, v{24+j}, v27")
        a("v_cvt_pk_bf16_f32 v27, v27, v27")
        a(f"v_cndmask_b32 v26, v27, v26, s[60:61]")
        a(f"v_and_b32 v{58+2*j}, 0xffff, v26")
    srd(a, 28, 14, 15, 8192, WS_CONST)
    a("v_lshlrev_b32 v2, 4, v1")
    a("v_lshlrev_b32 v3, 3, v1")
    a("s_movk_i32 s3, 0x1000")
    for i in range(4):
        a(f"buffer_store_dwordx4 v[{32+4*i}:{35+4*i}], v2, s[28:31], 0 offen offset:{1024*i}")
    a("buffer_store_dwordx4 v[52:55], v2, s[28:31], s3 offen")
    for i in range(4):
        a(f"buffer_store_dwordx2 v[{56+2*i}:{57+2*i}], v3, s[28:31], s3 offen offset:{1024+512*i}")
    a("buffer_store_dwordx2 v[48:49], v3, s[28:31], s3 offen offset:3072")
    a.label("K1_END")
    a("s_endpgm")

def P(r): return f"v[{r}:{r+1}]"

def mfma3(Dn, j):
    bx = BX0 if j == 0 else BX1
    return [f"v_mfma_f32_32x32x16_bf16 {v(Dn,16)}, {v(AEXT,4)}, {v(bx,4)}, 0",
            f"v_mfma_f32_32x32x16_bf16 {v(Dn,16)}, {v(A+8*j,4)}, {v(I0,4)}, {v(Dn,16)}",
            f"v_mfma_f32_32x32x16_bf16 {v(Dn,16)}, {v(A+8*j+4,4)}, {v(I1,4)}, {v(Dn,16)}"]

def xphase(a, Dc, mf):
    ex = [f"v_exp_f32 v{X+r}, v{Dc+r}" for r in range(16)]
    seq = [mf[0]] + ex[0:4] + [mf[1]] + ex[4:8] + [mf[2]] + ex[8:16] if mf else ex
    for l in seq: a(l)

def fphase(a, Dc, off, slow, fa, mids=()):
    mids = dict(mids)
    if not slow:
        a(f"v_pk_add_f32 {P(PA)}, {P(X)}, s[{sONE}:{sONE+1}]")
        cur, nxt = PA, PB
        for q in range(1, 8):
            src = Dc if q == 1 else NN
            a(f"v_pk_fma_f32 {P(NN)}, {P(src)}, {P(X+2*q)}, {P(src)}")
            a(f"v_pk_fma_f32 {P(nxt)}, {P(cur)}, {P(X+2*q)}, {P(cur)}")
            a(f"v_pk_fma_f32 {P(NN)}, {P(Dc+2*q)}, {P(cur)}, {P(NN)}")
            cur, nxt = nxt, cur
            if q in mids: mids[q]()
        a(f"v_rcp_f32 v{RR}, v{cur}")
        a(f"v_rcp_f32 v{RR+1}, v{cur+1}")
        a(f"v_max3_f32 v{PM2}, v{cur}, v{cur+1}, v{PM2}")
        a(f"v_pk_mul_f32 {P(OUT)}, {P(NN)}, {P(RR)}")
    else:
        for q in range(8):
            a(f"v_pk_add_f32 {P(X+2*q)}, {P(X+2*q)}, s[{sONE}:{sONE+1}]")
        for q in sorted(mids): mids[q]()
        for r in range(16):
            a(f"v_rcp_f32 v{X+r}, v{X+r}")
        a("s_nop 0")
        a(f"v_pk_mul_f32 {P(OUT)}, {P(Dc)}, {P(X)}")
        for q in range(1, 8):
            a(f"v_pk_fma_f32 {P(OUT)}, {P(Dc+2*q)}, {P(X+2*q)}, {P(OUT)}")
    a(f"v_cvt_f64_f32 {P(OUT+2)}, v{OUT+1}")
    a(f"v_cvt_f64_f32 {P(OUT)}, v{OUT}")
    a(f"ds_add_f64 v{fa+1}, {P(OUT+2)} offset:{AGG+off}")
    a(f"ds_add_f64 v{fa}, {P(OUT)} offset:{AGG+off}")

SRD4 = opt("srd4", 0) and not STAMP
def dma4(a, first=False):
    if SRD4:
        if first:
            a(f"s_mov_b32 m0, s{sSLOT}")
            a("s_nop 0")
        for i in range(4):
            r = S_TAB if i == 0 else 84 + 4*i
            a(f"buffer_load_dwordx4 {P(RP+2*i)}, s[{r}:{r+3}], 0 idxen offen offset:{1024*i} lds")
        return
    for i in range(4):
        a(f"s_add_u32 m0, s{sSLOT}, {i*1024}" if i else f"s_mov_b32 m0, s{sSLOT}")
        a("s_nop 0")
        a(f"buffer_load_dwordx4 {P(RP+2*i)}, s[{S_TAB}:{S_TAB+3}], 0 idxen offen lds")

def idxread(a):
    for i in range(4):
        a(f"ds_read_u16 v{RP+2*i}, v{GBA} offset:{4*i}")

def aread(a):
    for k in range(4):
        a(f"ds_read_b128 {v(A+4*k,4)}, v{RA+k}")

def bext(a, fa):
    a(f"ds_read_b32 v{BX0}, v{fa} offset:{BP}")
    a(f"ds_read_b32 v{BX0+1}, v{fa+1} offset:{BP}")
    a(f"ds_read_b32 v{BX1}, v{fa} offset:{BP+256}")
    a(f"ds_read_b32 v{BX1+1}, v{fa+1} offset:{BP+256}")

def dynloop(a, tag, slow):
    L = lambda x: f"K2_{tag}_{x}"
    for par in range(2):
        fa, fan = (FA0, FA1) if par == 0 else (FA1, FA0)
        o = 512*par
        a.label(L(f'LOOP{par}'))
        if STAMP and LOOPST == 1 and not slow:
            for it in range(par, 6, 2):
                a(f"s_cmp_lg_u32 s{sIT}, {it}")
                a(f"s_cbranch_scc1 K2_LS{it}")
                stamp(a, 1+it, True)
                a.label(f"K2_LS{it}")
        a(f"s_sub_u32 s{sREM}, s{sREM}, 1")
        a(f"s_cmp_eq_u32 s{sREM}, 0")
        a(f"s_cbranch_scc1 {L(f'TAIL{par}')}")
        if not slow and opt("lprio", 1):
            a(f"s_add_u32 s{sIT}, s{sIT}, 1")
            for it, p in DPRIO:
                a(f"s_cmp_lg_u32 s{sIT}, {it}")
                a(f"s_cbranch_scc1 {L(f'PR{par}{it}')}")
                a(f"s_setprio {p}")
                a.label(L(f'PR{par}{it}'))
        a(f"ds_read_b32 v{GBE}, v{VE} offset:{o+512}")
        a(f"ds_read2_b32 {P(GNR)}, v{VG} offset0:{o//4} offset1:{o//4+2}")
        a(f"s_cmp_lt_u32 s{sREM}, 2")
        a(f"s_cbranch_scc1 {L(f'NOI{par}')}")
        idxread(a)
        a(f"ds_read_b32 v{GBA}, v{VA} offset:{o+1536}")
        a.label(L(f'NOI{par}'))
        xphase(a, D0, mfma3(D1, 1))
        a("s_waitcnt vmcnt(0) lgkmcnt(0)")
        aread(a)
        a(f"v_add_u32 v{GBE}, v{GBE}, v{CE}")
        a(f"v_add_u32 v{fan}, v{GNR}, v{L8}")
        a(f"v_add_u32 v{fan+1}, v{GNR+1}, v{L8}")
        a(f"v_add_u32 v{GBA}, v{GBA}, v{CA}")
        a(f"ds_read_u16 v{AEXT+2}, v{GBE}")
        bext(a, fan)
        def mid():
            a(f"s_cmp_lt_u32 s{sREM}, 2")
            a(f"s_cbranch_scc1 {L(f'NOD{par}')}")
            a("s_waitcnt lgkmcnt(5)")
            dma4(a)
            a.label(L(f'NOD{par}'))
        fphase(a, D0, 0, slow, fa, [(opt("dmaq", 2), mid)])
        a("s_waitcnt lgkmcnt(2)")
        xphase(a, D1, mfma3(D0, 0))
        if par == 1:
            for r in (VA, VE, VG):
                a(f"v_add_u32 v{r}, 1024, v{r}")
        fphase(a, D1, 256, slow, fa)
        if par == 1:
            a(f"s_branch {L('LOOP0')}")
    for par in range(2):
        fa = FA0 if par == 0 else FA1
        a.label(L(f'TAIL{par}'))
        xphase(a, D0, mfma3(D1, 1))
        fphase(a, D0, 0, slow, fa)
        xphase(a, D1, None)
        fphase(a, D1, 256, slow, fa)
        a("s_branch K2_LOOPDONE")

def count_tiles(a):
    a(f"s_lshl_b32 s3, s{sM}, 2")
    a(f"s_add_u32 s3, s3, s{sW}")
    a(f"s_sub_i32 s{sREM}, s{sT}, s3")
    a(f"s_add_i32 s{sREM}, s{sREM}, 15")
    a(f"s_max_i32 s{sREM}, s{sREM}, 0")
    a(f"s_lshr_b32 s{sREM}, s{sREM}, 4")
    a(f"s_sub_i32 s3, s{sT}, s{sW}")
    a("s_add_i32 s3, s3, 15")
    a("s_max_i32 s3, s3, 0")
    a("s_lshr_b32 s3, s3, 2")
    a(f"s_min_u32 s3, s3, s{sM}")
    a(f"s_mul_i32 s3, s3, s{sDYN}")
    a(f"s_add_u32 s{sREM}, s{sREM}, s3")

def schain(a, Dc, Nr, Pr, first, mids=()):
    mids = dict(mids)
    if first:
        a(f"v_pk_add_f32 {P(PT)}, {P(X)}, s[{sONE}:{sONE+1}]")
        cur, nxt = PT, Pr
        q0 = 1
    else:
        cur, nxt = Pr, PT
        q0 = 0
    for q in range(q0, 8):
        src = Dc if (first and q == 1) else Nr
        a(f"v_pk_fma_f32 {P(Nr)}, {P(src)}, {P(X+2*q)}, {P(src)}")
        a(f"v_pk_fma_f32 {P(nxt)}, {P(cur)}, {P(X+2*q)}, {P(cur)}")
        a(f"v_pk_fma_f32 {P(Nr)}, {P(Dc+2*q)}, {P(cur)}, {P(Nr)}")
        cur, nxt = nxt, cur
        if q in mids: mids[q]()
    assert cur == Pr

def sidx(a, j):
    for i in range(4):
        a(f"ds_read_u16 v{RP+2*i}, v{SA} offset:{32*j + 4*i}")

def static_phase(a):
    K = KS
    if LOOPST == 2: stamp(a, 3, True)
    E2 = opt("e2", 0)
    if E2 == 0:
        dma4(a)
        if LOOPST == 2: stamp(a, 4, True)
        for m in mfma3(D0, 0): a(m)
        a("s_nop 7")
        a("s_nop 3")
    else:
        for m in mfma3(D0, 0): a(m)
        dma4(a)
        if LOOPST == 2: stamp(a, 4, True)
    for j in range(K):
        last = j == K-1
        if opt("lprio", 1) and j in SPRIO:
            a(f"s_setprio {SPRIO[j]}")
        if STAMP and LOOPST == 1 and j < 7: stamp(a, 1+j, True)
        if STAMP and LOOPST == 2 and j < 2: stamp(a, 5+2*j, True)
        if j+2 < K:
            sidx(a, j+2)
        if j == K-3:
            a(f"ds_read_b32 v{GBA}, v{VA}")
            a(f"v_mov_b32 v{GBE}, {QC+8}")
            a(f"ds_read_b32 v{GNR}, v{GBE}")
        if j == K-2:
            a(f"s_cmp_eq_u32 s{sREM}, 0")
            a("s_cbranch_scc1 K2_SN0")
            idxread(a)
            a(f"ds_read_b32 v{GBA}, v{VA} offset:512")
            a.label("K2_SN0")
        if last:
            a(f"s_cmp_eq_u32 s{sREM}, 0")
            a("s_cbranch_scc1 K2_SLAST0")
            a(f"ds_read_b32 v{GBE}, v{VE}")
            a(f"ds_read2_b32 {P(GNR)}, v{VG} offset0:0 offset1:2")
            a(f"s_cmp_lt_u32 s{sREM}, 2")
            a("s_cbranch_scc1 K2_SN1")
            idxread(a)
            a(f"ds_read_b32 v{GBA}, v{VA} offset:1024")
            a.label("K2_SN1")
        xphase(a, D0, mfma3(D1, 1))
        if j == opt("w2", -1) + 1 and j > 0:
            a(f"s_cmp_ge_u32 s{sW}, {(W2L_ + 63)//64}")
            a("s_cbranch_scc1 K2_NOW3")
            a("s_waitcnt vmcnt(1) lgkmcnt(0)")
            a("s_branch K2_NOW4")
            a.label("K2_NOW3")
        a("s_waitcnt vmcnt(0) lgkmcnt(0)")
        if j == opt("w2", -1) + 1 and j > 0: a.label("K2_NOW4")
        if STAMP and LOOPST == 2 and j == 0: stamp(a, 6, True)
        aread(a)
        nsmall = 1
        if j == K-3:
            a(f"v_readfirstlane_b32 s3, v{GNR}")
            a("s_cmp_lt_u32 s3, 4")
            a("s_cbranch_scc1 K2_NOTINIT")
            a.label("K2_INITOK")
        if j >= K-3:
            a(f"v_add_u32 v{GBA}, v{GBA}, v{CA}")
        if not last:
            a(f"ds_read_u16 v{AEXT+2}, v{SE} offset:{32*(j+1)}")
        else:
            a(f"v_add_u32 v{GBE}, v{GBE}, v{CE}")
            a(f"v_add_u32 v{FA0}, v{GNR}, v{L8}")
            a(f"v_add_u32 v{FA0+1}, v{GNR+1}, v{L8}")
            a(f"v_add_u32 v{VG}, 512, v{VG}")
            a(f"ds_read_u16 v{AEXT+2}, v{GBE}")
            bext(a, FA0)
            nsmall = 5
        def mid():
            if j >= K-2:
                a(f"s_cmp_lt_u32 s{sREM}, {j-(K-2)+1}")
                a(f"s_cbranch_scc1 K2_SND{j}")
            a(f"s_waitcnt lgkmcnt({nsmall})")
            dma4(a)
            if j == opt("w2", -1):
                a(f"s_cmp_ge_u32 s{sW}, {(W2L_ + 63)//64}")
                a("s_cbranch_scc1 K2_NOW2")
                a(f"v_lshlrev_b32 v{GBE}, 7, v0")
                a(f"s_mul_i32 s3, s{sWB}, {W2L_*128}")
                a(f"s_add_u32 s3, s3, {SPL*128}")
                a(f"buffer_load_dword v{GBE}, v{GBE}, s[{S_TABR}:{S_TABR+3}], s3 offen")
                a.label("K2_NOW2")
            if j >= K-2: a.label(f"K2_SND{j}")
        schain(a, D0, N0, P0, j == 0, [(opt("dmaq", 2), mid)])
        a("s_waitcnt lgkmcnt(0)")
        xphase(a, D1, mfma3(D0, 0))
        schain(a, D1, N1, P1, j == 0)
        if j in ((1, 3) if KS <= 7 else (1, 3, 5)):
            for r in (N0, P0, N1, P1):
                a(f"v_pk_mul_f32 {P(r)}, {P(r)}, s[{sSC}:{sSC+1}]")
    def sflush():
        for h, (Nr, Pr) in enumerate(((N0, P0), (N1, P1))):
            a(f"v_rcp_f32 v{X}, v{Pr}")
            a(f"v_rcp_f32 v{X+1}, v{Pr+1}")
            a(f"v_max3_f32 v{PM}, v{Pr}, v{Pr+1}, v{PM}")
            a(f"v_pk_mul_f32 {P(Nr)}, {P(Nr)}, {P(X)}")
            a(f"v_cvt_f64_f32 {P(X+2+4*h)}, v{Nr}")
            a(f"v_cvt_f64_f32 {P(X+4+4*h)}, v{Nr+1}")
            a(f"ds_add_f64 v{FA1}, {P(X+2+4*h)} offset:{AGG+256*h}")
            a(f"ds_add_f64 v{FA1+1}, {P(X+4+4*h)} offset:{AGG+256*h}")
        a(f"v_add_f32 v{X}, abs(v{N0}), abs(v{N0+1})")
        a(f"v_add_f32 v{X+1}, abs(v{N1}), abs(v{N1+1})")
        a(f"v_add_f32 v{X}, v{X}, v{X+1}")
        a(f"v_mul_f32 v{X}, 0, v{X}")
        a(f"v_add_f32 v{PM}, v{PM}, v{X}")
    sflush()
    a("s_branch K2_F_LOOP0")
    a.label("K2_SLAST0")
    xphase(a, D0, mfma3(D1, 1))
    schain(a, D0, N0, P0, False)
    xphase(a, D1, None)
    schain(a, D1, N1, P1, False)
    sflush()
    a("s_branch K2_LOOPDONE")

def first_addr(a):
    a("v_lshrrev_b32 v8, 4, v1")
    a(f"v_lshl_add_u32 v8, s{sW}, 2, v8")
    a(f"v_mul_u32_u24 v9, {BLK}, v8")
    a("v_lshlrev_b32 v11, 1, v1")
    a("v_and_b32 v11, 16, v11")
    a(f"v_add3_u32 v{SA}, v9, v11, s{sRECS}")
    a("v_bfe_u32 v8, v1, 4, 1")
    a("v_lshrrev_b32 v9, 5, v1")
    a("v_lshl_or_b32 v8, v9, 2, v8")
    a("v_and_b32 v9, 7, v1")
    a("v_xor_b32 v8, v8, v9")
    a(f"v_lshlrev_b32 v{RP+1}, 4, v8")
    a(f"v_xor_b32 v{RP+3}, 32, v{RP+1}")
    a(f"v_mov_b32 v{RP+5}, v{RP+1}")
    a(f"v_mov_b32 v{RP+7}, v{RP+3}")

def const_read2(a):
    a("v_lshlrev_b32 v3, 3, v1")
    a(f"v_add_u32 v3, {CONSTL + 5120}, v3")
    a(f"ds_read_b64 {P(GNR)}, v3 offset:1536")
    a(f"ds_read_b128 {v(VA,4)}, v{CADR} offset:3072")
    a(f"ds_read_b64 {P(CA)}, v3 offset:2048")
    a(f"ds_read_b128 {v(RA,4)}, v{CADR} offset:2048")
    a(f"ds_read_b128 {v(I0,4)}, v{CADR}")
    a(f"ds_read_b128 {v(I1,4)}, v{CADR} offset:1024")
    a(f"ds_read_b64 {P(AEXT)}, v3")
    a(f"ds_read_b64 {P(BX0+2)}, v3 offset:512")
    a(f"ds_read_b64 {P(BX1+2)}, v3 offset:1024")
    a(f"v_mov_b32 v{AEXT+3}, 0")

CHK = 36
NR = 12
def cnt_init(a, first):
    for r in range(4): a(f"v_mov_b32 v{4+r}, 0")
    a("v_mul_u32_u24 v3, 12, v1")
    a(f"v_mul_u32_u24 v8, {CAPN}, v1")
    a(f"v_add_u32 v8, {RECS//4}, v8")
    a("s_mov_b32 exec_lo, -1")
    a(f"s_mov_b32 exec_hi, {hex((1 << 18) - 1)}")
    a(f"ds_write2_b32 v3, v4, v8 offset0:{CNT//4} offset1:{CNT//4+1}")
    a(f"ds_write_b32 v3, v4 offset:{CNT+8}")
    if first == 1:
        a(f"ds_write_b128 v4, v[4:7] offset:{QC}")
    if first == 1:
        a(f"v_mov_b32 v3, {FLG}")
        a("ds_write_b128 v3, v[4:7]")
    a("s_mov_b64 exec, -1")

def prefill(a, first):
    a("v_subrev_u32 v2, 768, v0")
    a("v_lshlrev_b32 v2, 4, v2")
    for r in range(4): a(f"v_mov_b32 v{4+r}, 0xffff")
    for i in range(5):
        a(f"ds_write_b128 v2, v[4:7] offset:{RECS + 4096*i}") if RECS + 4096*i < 65536 else None
        if RECS + 4096*i >= 65536:
            if RECS + 4096*(i-1) < 65536:
                a(f"v_add_u32 v3, {RECS}, v2")
            a(f"ds_write_b128 v3, v[4:7] offset:{4096*i}")
    a(f"v_mov_b32 v8, {50*BLK - 5*4096}")
    a("v_cmpx_lt_u32 vcc, v2, v8")
    a(f"ds_write_b128 v3, v[4:7] offset:{4096*5}")
    a("s_mov_b64 exec, -1")
    for r in range(4): a(f"v_mov_b32 v{4+r}, 0")
    if first == 2:
        for i in range(6):
            a(f"ds_write_b128 v2, v[4:7] offset:{AGG + 4096*i}")
        a(f"v_mov_b32 v8, {50*RS - 6*4096}")
        a("v_cmpx_lt_u32 vcc, v2, v8")
        a(f"ds_write_b128 v2, v[4:7] offset:{AGG + 4096*6}")
        a("s_mov_b64 exec, -1")

def gen_k2(a):
    CURK[0] = 2
    WARM = opt("warm", 1)
    FB = 96
    a.label("k2_kernel")
    a(f"s_cmp_ge_u32 s2, {NB}")
    a("s_cbranch_scc1 K2_END")
    a("s_load_dwordx2 s[14:15], s[0:1], 64")
    a("s_load_dwordx2 s[4:5], s[0:1], 0")
    a("s_load_dwordx2 s[12:13], s[0:1], 48")
    stamp_start(a)
    stamp(a, 0)
    prio(a, 3)
    if opt("rot", 1):
        a("v_add_u32 v0, 768, v0")
        a("v_and_b32 v0, 1023, v0")
    a("v_lshrrev_b32 v2, 6, v0")
    a("v_and_b32 v1, 63, v0")
    a(f"v_readfirstlane_b32 s{sW}, v2")
    a("s_and_b32 s3, s2, 7")
    a("s_lshl_b32 s3, s3, 5")
    a(f"s_lshr_b32 s{sB}, s2, 3")
    a(f"s_add_u32 s{sB}, s{sB}, s3")
    a("v_mul_u32_u24 v12, 0x5556, v0")
    a("v_lshrrev_b32 v12, 16, v12")
    if opt("toff", 1):
        a("v_lshlrev_b32 v3, 2, v12")
        a("v_and_b32 v4, 31, v12")
        a("v_lshrrev_b32 v12, 5, v12")
        a("v_lshl_add_u32 v12, v4, 3, v12")
        a(f"s_lshl_b32 s3, s{sB}, 10")
        a(f"s_mov_b32 s{S_OFF+2}, {NB*1024}")
    else:
        a("v_lshlrev_b32 v3, 10, v12")
        a(f"s_lshl_b32 s3, s{sB}, 2")
        a(f"s_mov_b32 s{S_OFF+2}, {NP*1024}")
    a(f"s_mov_b32 s{S_OFF+3}, 0x00020000")
    a(f"s_cmp_ge_u32 s{sW}, 12")
    a(f"s_cselect_b32 s{sDYN}, 1, 0")
    a("s_cbranch_scc1 K2_HELP")
    def setup():
        srd(a, S_TABR, 14, 15, N*128, WS_TAB)
        a(f"s_mov_b32 s{S_TAB}, s{S_TABR}")
        a(f"s_or_b32 s{S_TAB+1}, s{S_TABR+1}, {128 << 16}")
        a(f"s_mov_b32 s{S_TAB+2}, {N}")
        a(f"s_mov_b32 s{S_TAB+3}, 0x00020000")
        if SRD4:
            for i in range(1, 4):
                r = 84 + 4*i
                a(f"s_sub_u32 s{r}, s{S_TAB}, {1024*i}")
                a(f"s_subb_u32 s{r+1}, s{S_TAB+1}, 0")
                a(f"s_mov_b32 s{r+2}, {N}")
                a(f"s_mov_b32 s{r+3}, 0x00020000")
        srd(a, S_OUT, 12, 13, N*128)
        srd(a, S_REC, 14, 15, NP*RSTR, WS_REC)
        a(f"s_mov_b32 s{sSC}, 0x2d800000")
        a(f"s_mov_b32 s{sSC+1}, 0x2d800000")
        a(f"s_movk_i32 s{sCAPN}, {CAPN}")
        a(f"s_mov_b32 s{sRECS}, {RECS}")
        a(f"s_mov_b32 s{sMODE}, 0")
        a(f"s_mov_b32 s{sMODE2}, 0")
        a(f"s_mov_b32 s{sCHUNK}, 0")
        a(f"s_mov_b32 s{sK}, {KS}")
        a(f"s_mov_b32 s{sM}, {MD}")
        a(f"s_mov_b32 s{sONE}, 1.0")
        a(f"s_mov_b32 s{sONE+1}, 1.0")
        a(f"s_lshl_b32 s{sSLOT}, s{sW}, 12")
        a(f"s_add_u32 s{sSLOT}, s{sSLOT}, {STG}")
        a(f"s_mul_i32 s{sNODE0}, s{sB}, {NPB}")
    def rec_prep(first):
        a("v_mul_u32_u24 v3, 0x5556, v0")
        a("v_lshrrev_b32 v4, 16, v3")
        if not first:
            if opt("toff", 1):
                a("v_and_b32 v3, 31, v4")
                a("v_lshrrev_b32 v12, 5, v4")
                a("v_lshl_add_u32 v12, v3, 3, v12")
            else:
                a("v_mov_b32 v12, v4")
        a("v_mul_u32_u24 v3, 3, v4")
        a("v_sub_u32 v3, v0, v3")
        a("v_lshlrev_b32 v3, 2, v3")
        if not first:
            a(f"v_add_u32 v3, s{sCHUNK}, v3")
        a(f"v_mul_u32_u24 v4, {RSTR//4}, v12")
        if first and opt("toff", 1):
            a(f"v_cmp_gt_u32 s[86:87], {hex(NP)}, v12") if False else None
            a(f"v_mov_b32 v6, {NP}")
            a("v_cmp_lt_u32 s[86:87], v12, v6")
    VM = lambda j: f"s[{sVAL+2*j}:{sVAL+2*j+1}]"
    def rec_masks():
        a(f"v_lshrrev_b32 v5, 16, v{OFFW}")
        a("v_sub_u32 v2, v5, v3")
        for j in (0, 4, 8):
            a(f"v_cmp_lt_i32 {VM(j)}, {12*(j>>2)+(j&3)}, v2")
    def rec_masks2():
        for j in range(NR):
            if j & 3: a(f"v_cmp_lt_i32 {VM(j)}, {12*(j>>2)+(j&3)}, v2")
    def orm(r, dst):
        a(f"s_or_b64 s[84:85], {VM(4*r)}, {VM(4*r+1)}")
        a(f"s_or_b64 s[84:85], s[84:85], {VM(4*r+2)}")
        a(f"s_or_b64 {dst}, s[84:85], {VM(4*r+3)}")
    def rec_loads(first, lab):
        a(f"v_and_b32 v6, 0xffff, v{OFFW}")
        if not first:
            a(f"v_lshrrev_b32 v5, 16, v{OFFW}")
        a("v_add_u32 v4, v6, v4")
        a("v_add_lshl_u32 v5, v4, v5, 2")
        a("v_add_lshl_u32 v4, v4, v3, 2")
        a("v_add_u32 v5, v5, v3")
        for r in range(3):
            if first: a(f"s_or_b64 exec, {VM(4*r)}, {VM(4*r)}")
            else: orm(r, "exec")
            if r == 2: a(f"s_cbranch_scc0 {lab}")
            a(f"buffer_load_dword v{44+r}, v5, s[{S_REC}:{S_REC+3}], 0 offen offset:{12*r}")
            a(f"buffer_load_dwordx4 v[{32+4*r}:{35+4*r}], v4, s[{S_REC}:{S_REC+3}], 0 offen offset:{48*r}")
        a.label(lab)
        a("s_mov_b64 exec, -1")
    def fixups(static):
        a(f"s_lshl_b32 s3, s{sW}, 5")
        if static:
            a(f"s_lshl_b32 s4, s{sM}, 9")
            a("s_add_u32 s3, s3, s4")
        for r in (VA, VE, VG):
            a(f"v_add_u32 v{r}, s3, v{r}")
        for k in range(4):
            a(f"v_add_u32 v{RA+k}, s{sSLOT}, v{RA+k}")
    def qpoll(lab, off=0):
        a(f"v_mov_b32 v5, {QC+off}")
        a.label(lab)
        a("ds_read_b32 v8, v5")
        a("s_waitcnt lgkmcnt(0)")
        a("v_readfirstlane_b32 s3, v8")
        a("s_cmp_lt_u32 s3, 4")
        a(f"s_cbranch_scc1 {lab}")
    a("s_waitcnt lgkmcnt(0)")
    a(f"s_add_u32 s{S_OFF}, s14, {WS_OFF}")
    a(f"s_addc_u32 s{S_OFF+1}, s15, 0")
    a(f"buffer_load_dword v{OFFW}, v3, s[{S_OFF}:{S_OFF+3}], s3 offen")
    if opt("b0e", 1): a("s_barrier")
    srd(a, S_REC, 14, 15, NP*RSTR, WS_REC)
    rec_prep(True)
    if not opt("b0e", 1): a("s_barrier")
    a("s_waitcnt vmcnt(0)")
    if not opt("stb2", 0): stamp(a, 2)
    if opt("toff", 1):
        a("s_nop 0")
        a(f"v_cndmask_b32 v{OFFW}, 0, v{OFFW}, s[86:87]")
    rec_masks()
    rec_loads(True, "K2_RL1")
    if LOOPST == 3: stamp(a, 1, True)
    a(f"s_mov_b32 s{sCHUNK}, 0")
    setup()
    a(f"s_lshr_b32 s{sWB}, s2, 3")
    rec_masks2()
    first_addr(a)
    a(f"v_mov_b32 v{PM}, 0")
    a(f"v_mov_b32 v{PM2}, 0")
    a(f"s_mul_i32 s3, s{sWB}, {W1L_*128}")
    a("v_lshlrev_b32 v17, 7, v0")
    a("v_add_u32 v17, s3, v17")
    a(f"v_lshrrev_b32 v16, 16, v{OFFW}")
    a(f"v_cmp_lt_u32 vcc, {CHK}, v16")
    a("s_nop 1")
    a("s_cbranch_vccz K2_PASS")
    a("s_mov_b64 exec, vcc")
    a(f"v_mov_b32 v3, {FLG}")
    a("ds_max_u32 v3, v16")
    a("s_mov_b64 exec, -1")
    a.label("K2_PASS")
    a("v_mov_b32 v2, 1")
    a("v_min_u32 v18, 48, v1")
    a("v_mul_u32_u24 v19, 12, v18")
    a(f"v_mul_u32_u24 v18, {CAPN}, v18")
    a(f"v_add_u32 v18, {RECS//4 + CAPN}, v18")
    a("v_lshlrev_b32 v3, 4, v1")
    a(f"v_add_u32 v{CADR}, {CONSTL}, v3")
    qpoll("K2_QPOLL0", 4)
    if LOOPST == 3: stamp(a, 2, True)
    const_read2(a)
    a(f"s_mul_i32 s84, s{sW}, {4*BLK}")
    a(f"s_mul_i32 s85, s{sW}, {4*RS}")
    a("s_waitcnt lgkmcnt(0)")
    a(f"v_add_u32 v{SE}, s84, v{GNR}")
    a(f"v_add_u32 v{FA1}, s85, v{GNR+1}")
    a(f"v_add_u32 v{FA1+1}, {RS}, v{FA1}")
    fixups(True)
    orm(2, "s[84:85]")
    a(f"s_cselect_b32 s{sTN}, 1, 0")
    def warm1():
        a(f"s_cmp_ge_u32 s{sW}, {(W1L_ + 63)//64}")
        a("s_cbranch_scc1 K2_NOWARM")
        a(f"buffer_load_dword v{GBE}, v17, s[{S_TABR}:{S_TABR+3}], 0 offen")
        a.label("K2_NOWARM")
    if LOOPST == 3: stamp(a, 3, True)
    a("s_waitcnt vmcnt(0)")
    if LOOPST == 3: stamp(a, 4, True)
    stamp(a, 3)
    if WARM == 2:
        warm1()
        a(f"s_cmp_lg_u32 s{sTN}, 0")
    for r in range(3):
        if r == 2:
            a(f"s_cbranch_scc0 K2_RK8")
        for j in range(4*r, 4*r+4):
            a(f"v_lshlrev_b32_sdwa v{48+j}, 2, v{44+r} dst_sel:DWORD dst_unused:UNUSED_PAD src0_sel:DWORD src1_sel:BYTE_{j&3}")
        for j in range(4*r, 4*r+4):
            a(f"s_mov_b64 exec, {VM(j)}")
            a(f"ds_add_rtn_u32 v{60+j}, v{48+j}, v2 offset:{CNT}")
        a("s_mov_b64 exec, -1")
    a.label("K2_RK8")
    if WARM == 1:
        warm1()
    a("s_waitcnt lgkmcnt(0)")
    if LOOPST == 3: stamp(a, 5, True)
    a("s_barrier")
    if LOOPST == 3: stamp(a, 6, True)
    stamp(a, 4)
    a(f"ds_read2_b32 v[8:9], v19 offset0:{CNT//4+1} offset1:{CNT//4+2}")
    for j in range(NR):
        if j == 8:
            a(f"s_cmp_eq_u32 s{sTN}, 0")
            a("s_cbranch_scc1 K2_PL0")
        if j >= 4: a(f"s_mov_b64 exec, {VM(j)}")
        a(f"ds_read_b32 v{20+j}, v{48+j} offset:{CNT-4}")
    a.label("K2_PL0")
    a("s_mov_b64 exec, -1")
    a("s_waitcnt lgkmcnt(0)")
    if LOOPST == 3: stamp(a, 7, True)
    a("v_add_u32 v8, v8, v9")
    a("v_cmp_gt_u32 vcc, v8, v18")
    a("s_nop 1")
    a("s_cbranch_vccnz K2_CAREFUL")
    for j in range(NR):
        if j == 8:
            a(f"s_cbranch_scc1 K2_PL4")
        a(f"s_mov_b64 exec, {VM(j)}")
        a(f"v_add_lshl_u32 v{48+j}, v{60+j}, v{20+j}, 2")
        a(f"ds_write_b32 v{48+j}, v{32+j}")
    a.label("K2_PL4")
    a("s_mov_b64 exec, -1")
    a("s_waitcnt lgkmcnt(0)")
    if LOOPST == 3: stamp(a, 8, True)
    if opt("stb2", 0): stamp(a, 2)
    a("s_barrier")
    stamp(a, 5)
    a(f"s_cmp_lg_u32 s{sMODE}, 0")
    a("s_cbranch_scc1 K2_SLOWHEAD")
    sidx(a, 0)
    a("s_waitcnt lgkmcnt(0)")
    dma4(a, True)
    stamp(a, 6)
    if LOOPST == 2: stamp(a, 1, True)
    sidx(a, 1)
    a(f"v_mov_b32 v2, {FLG+8}")
    a("ds_read_b64 v[4:5], v2")
    a(f"ds_read_u16 v{AEXT+2}, v{SE}")
    bext(a, FA1)
    a("s_waitcnt lgkmcnt(5)")
    a(f"v_readfirstlane_b32 s{sT}, v4")
    a(f"v_readfirstlane_b32 s{sOVF}, v5")
    count_tiles(a)
    a(f"s_mov_b32 s{sIT}, 100")
    prio(a, SP0)
    a("s_waitcnt vmcnt(0)")
    if LOOPST == 2: stamp(a, 2, True)
    stamp(a, 1)
    aread(a)
    a("s_waitcnt lgkmcnt(0)")
    static_phase(a)
    a.label("K2_HELP")
    a(f"s_sub_u32 s{sNT}, s{sW}, 12")
    a("v_lshlrev_b32 v13, 4, v1")
    a("v_lshrrev_b32 v5, 3, v1")
    a("v_and_b32 v6, 7, v1")
    a("v_xor_b32 v6, v6, v5")
    a("v_lshlrev_b32 v6, 4, v6")
    a("v_lshl_add_u32 v6, v5, 7, v6")
    a(f"s_mul_i32 s{sNODE0}, s{sB}, {NPB}")
    a(f"s_lshl_b32 s3, s{sNT}, 11")
    a(f"s_lshl_b32 s84, s{sNODE0}, 7")
    a("s_add_u32 s84, s84, s3")
    a("v_add_u32 v6, s84, v6")
    a("v_mov_b32 v12, v6")
    cnt_init(a, 1)
    a(f"s_add_u32 m0, s3, {CONSTL}")
    a("s_waitcnt lgkmcnt(0)")
    if not opt("hd", 1): a("s_barrier")
    srd(a, S_CON, 14, 15, 8192*4, WS_CONST)
    a(f"s_cmp_eq_u32 s{sNT}, 3")
    a(f"buffer_load_dwordx4 v13, s[{S_CON}:{S_CON+3}], s3 offen lds")
    a("s_cselect_b32 exec_hi, 0, -1")
    a(f"buffer_load_dwordx4 v13, s[{S_CON}:{S_CON+3}], s3 offen offset:1024 lds")
    a("s_mov_b64 exec, -1")
    a(f"s_add_u32 m0, s3, {PST + 16384}")
    srd(a, S_X, 4, 5, N*128)
    a(f"buffer_load_dwordx4 v12, s[{S_X}:{S_X+3}], 0 offen lds")
    a(f"buffer_load_dwordx4 v12, s[{S_X}:{S_X+3}], 0 offen offset:1024 lds")
    a(f"s_add_u32 m0, s3, {PST}")
    a("s_add_u32 s4, s3, 8192")
    for i in range(2):
        a(f"buffer_load_dwordx4 v13, s[{S_CON}:{S_CON+3}], s4 offen offset:{1024*i} lds")
    if opt("hd", 1): a("s_barrier")
    setup()
    if opt("pf", 1): prefill(a, 1)
    def hprep():
        first_addr(a)
        for i in range(4): a(f"v_mov_b32 v{RP+2*i}, -1")
        a("v_min_u32 v12, 48, v1")
        a("v_mul_u32_u24 v13, 12, v12")
        a("v_cmp_gt_u32 s[84:85], 48, v1")
        a(f"v_mul_u32_u24 v27, {RS}, v12")
        a(f"v_mul_u32_u24 v26, {BLK}, v12")
        a("v_lshrrev_b32 v28, 2, v26")
        a(f"v_add_u32 v28, {RECS//4}, v28")
        a("v_subrev_u32 v29, 48, v1")
        a(f"v_mov_b32 v11, s{sK}")
        a("v_cndmask_b32 v12, v29, v11, s[84:85]")
        a("v_cndmask_b32 v24, 1, 14, s[84:85]")
        a("v_lshl_add_u32 v26, v12, 5, v26")
        a(f"v_add_u32 v26, s{sRECS}, v26")
        a(f"s_lshl_b32 s60, s{sM}, 4")
        a(f"s_mul_i32 s61, s{sM}, 384")
        a(f"s_add_u32 s61, s61, {GT}")
    def tile_addrs():
        a("v_lshrrev_b32 v7, 4, v1")
        a("v_and_b32 v25, 15, v1")
        a(f"s_lshl_b32 s3, s{sNT}, 4")
        a("v_add_u32 v25, s3, v25")
        a(f"v_mul_u32_u24 v6, {RS}, v25")
        a("v_lshl_add_u32 v6, v7, 5, v6")
        a("v_mul_u32_u24 v10, 12, v25")
        a("v_cmp_gt_u32 s[86:87], 50, v25")
        a("v_lshlrev_b32 v3, 4, v1")
        a(f"v_add_u32 v{CADR}, {CONSTL}, v3")
    hprep()
    a(f"v_mov_b32 v5, {QC+4}")
    a("v_mov_b32 v8, 1")
    a("s_waitcnt vmcnt(4)")
    a("s_mov_b64 exec, 1")
    a("ds_add_u32 v5, v8")
    a("s_mov_b64 exec, -1")
    if WARM == 4:
        a(f"s_lshr_b32 s3, s2, 3")
        a(f"s_mul_i32 s3, s3, {W1L_*128}")
        a("v_subrev_u32 v30, 768, v0")
        a(f"v_min_u32 v30, {W1L_-1}, v30")
        a("v_lshlrev_b32 v30, 7, v30")
        a(f"buffer_load_dword v31, v30, s[{S_TABR}:{S_TABR+3}], s3 offen")
    if LOOPST == 3: stamp(a, 1, True)
    if not opt("pf", 1): prefill(a, 1)
    if LOOPST == 3: stamp(a, 2, True)
    tile_addrs()
    a("v_and_b32 v2, 7, v1")
    a("v_xor_b32 v2, v2, v7")
    a("v_lshlrev_b32 v2, 4, v2")
    a("v_lshl_add_u32 v2, v25, 7, v2")
    a(f"v_add_u32 v2, {PST + 16384}, v2")
    a("v_xor_b32 v4, 64, v2")
    a(f"v_add_u32 v3, {PST}, v3")
    a(f"v_mov_b32 v5, {QC}")
    a("v_mov_b32 v8, 1")
    a(f"s_waitcnt vmcnt({1 if WARM == 4 else 0})")
    if not opt("stb2", 0): stamp(a, 2)
    a("s_mov_b64 exec, 1")
    a("ds_add_u32 v5, v8")
    a("s_mov_b64 exec, -1")
    def hwarm():
        a(f"s_lshr_b32 s3, s2, 3")
        a(f"s_mul_i32 s3, s3, {W1L_*128}")
        a("v_subrev_u32 v30, 768, v0")
        a(f"v_min_u32 v30, {W1L_-1}, v30")
        a("v_lshlrev_b32 v30, 7, v30")
        a(f"buffer_load_dword v31, v30, s[{S_TABR}:{S_TABR+3}], s3 offen")
    if LOOPST == 3: stamp(a, 3, True)
    if WARM == 3: hwarm()
    qpoll("K2_QPOLL")
    if LOOPST == 3: stamp(a, 4, True)
    a("ds_read_b128 v[16:19], v2")
    a("ds_read_b128 v[20:23], v4")
    for q in range(8):
        a(f"ds_read_b128 v[{32+4*q}:{35+4*q}], v3 offset:{1024*q}")
    a(f"s_mov_b32 s84, {NLOG2E:#x}")
    a(f"s_mov_b32 s85, {NLOG2E:#x}")
    a("s_mov_b32 s3, 0x05040100")
    a("s_mov_b32 s4, 0x07060302")
    a("s_waitcnt lgkmcnt(0)")
    for ks in range(2):
        for ft in range(4):
            D = 64 + 4*ft; W = 32 + 8*ft + 4*ks
            a(f"v_mfma_f32_16x16x32_bf16 v[{D}:{D+3}], v[{W}:{W+3}], v[{16+4*ks}:{19+4*ks}], " + ("0" if ks == 0 else f"v[{D}:{D+3}]"))
    a("s_nop 4")
    for q in range(8):
        if q == 6: a("s_nop 0")
        a(f"v_pk_mul_f32 {P(64+2*q)}, {P(64+2*q)}, s[84:85]")
    NLATE = opt("late", 2)
    def split(fts):
        a("s_mov_b32 s3, 0x05040100")
        a("s_mov_b32 s4, 0x07060302")
        for ft in fts:
            for h in range(2):
                B = 64 + 4*ft + 2*h; O = 32 + 8*ft + 4*h
                a(f"v_cvt_pk_bf16_f32 v30, v{B}, v{B+1}")
                a("v_lshlrev_b32 v16, 16, v30")
                a("v_and_b32 v17, 0xffff0000, v30")
                a(f"v_pk_add_f32 v[16:17], {P(B)}, v[16:17] neg_lo:[0,1] neg_hi:[0,1]")
                a("v_cvt_pk_bf16_f32 v16, v16, v17")
                a(f"v_perm_b32 v{O}, v16, v30, s3")
                a(f"v_perm_b32 v{O+2}, v16, v30, s4")
            a("s_mov_b64 exec, s[86:87]")
            a(f"ds_write_b128 v6, v[{32+8*ft}:{35+8*ft}] offset:{BP + 128*ft}")
            a(f"ds_write_b128 v6, v[{36+8*ft}:{39+8*ft}] offset:{BP + 128*ft + 16}")
            a("s_mov_b64 exec, -1")
    split(range(4 - NLATE))
    a(f"v_mov_b32 v{PM}, 0")
    a(f"v_mov_b32 v{PM2}, 0")
    a.label("K2_HPASS")
    a.label("K2_HPASS2")
    a("s_waitcnt lgkmcnt(0)")
    stamp(a, 3)
    if LOOPST == 3: stamp(a, 5, True)
    a("s_barrier")
    if LOOPST == 3: stamp(a, 6, True)
    stamp(a, 4)
    a(f"ds_read2_b32 v[18:19], v13 offset0:{CNT//4+1} offset1:{CNT//4+2}")
    a(f"ds_read2_b32 v[22:23], v10 offset0:{CNT//4+1} offset1:{CNT//4+2}")
    a("s_waitcnt lgkmcnt(1)")
    a("v_add_u32 v8, v18, v19")
    a("v_sub_u32 v8, v8, v28")
    a(f"v_cmp_lt_u32 vcc, s{sCAPN}, v8")
    a(f"v_min_u32 v8, s{sCAPN}, v8")
    a("v_add_u32 v8, 7, v8")
    a("v_lshrrev_b32 v8, 3, v8")
    a("v_sub_u32 v8, v8, v12 clamp")
    a("v_min_u32 v8, v8, v24")
    a("v_mov_b32 v11, v8")
    a("s_cmp_lg_u64 vcc, 0")
    a(f"s_cselect_b32 s{sOVF}, 1, 0")
    scan64(a, 11)
    a(f"v_readlane_b32 s{sT}, v11, 63")
    a("v_sub_u32 v11, v11, v8")
    a(f"v_add_u32 v11, s{sNT}, v11")
    a(f"s_lshl_b32 s3, s{sNT}, 5")
    a("v_add_u32 v26, s3, v26")
    a(f"v_subrev_u32 v8, s{sNT}, v8")
    def pos():
        a("v_lshlrev_b32 v18, 3, v11")
        a("v_and_b32 v19, 0x78, v18")
        a("v_lshrrev_b32 v20, 4, v11")
        a("v_lshl_add_u32 v19, v20, 9, v19")
        a("v_cmp_gt_u32 s[84:85], s60, v11")
        a(f"v_add_u32 v19, {GT + 384}, v19")
        a("v_add_u32 v18, s61, v18")
        a("v_cndmask_b32 v18, v18, v19, s[84:85]")
    a("v_cmpx_lt_i32 vcc, 0, v8")
    a("s_nop 1")
    a("s_cbranch_execz K2_BLD1")
    a.label("K2_BLD0")
    pos()
    a("ds_write_b64 v18, v[26:27]")
    a("v_add_u32 v26, 128, v26")
    a("v_add_u32 v11, 4, v11")
    a("v_subrev_u32 v8, 4, v8")
    a("v_cmpx_lt_i32 vcc, 0, v8")
    a("s_nop 1")
    a("s_cbranch_execnz K2_BLD0")
    a.label("K2_BLD1")
    if LOOPST == 3: stamp(a, 7, True)
    a("s_mov_b64 exec, -1")
    a(f"s_add_u32 s3, s{sT}, s{sNT}")
    a("v_mov_b32 v11, s3")
    a(f"v_mov_b32 v26, {RECS + NPB*BLK}")
    a(f"v_mov_b32 v27, {NPB*RS}")
    pos()
    a("ds_write_b64 v18, v[26:27]")
    a(f"s_add_u32 s{sT}, s{sT}, 3")
    a(f"s_lshr_b32 s{sT}, s{sT}, 2")
    a(f"v_mov_b32 v18, s{sT}")
    a(f"v_mov_b32 v19, s{sOVF}")
    a(f"v_mov_b32 v20, {FLG + 8}")
    a("ds_write_b64 v20, v[18:19]")
    count_tiles(a)
    if NLATE:
        a(f"s_cmp_lg_u32 s{sMODE2}, 0")
        a("s_cbranch_scc1 K2_NOLATE")
        split(range(4 - NLATE, 4))
        a.label("K2_NOLATE")
    a("s_waitcnt lgkmcnt(0)")
    if LOOPST == 3: stamp(a, 8, True)
    if opt("stb2", 0): stamp(a, 2)
    a("s_barrier")
    stamp(a, 5)
    a.label("K2_DYNHEAD")
    def corr():
        a(f"s_cmp_eq_u32 s{sDYN}, 0")
        a("s_cbranch_scc1 K2_NOCORR")
        if opt("e1", 3): a("s_setprio 0")
        if opt("e3", 0) == 0: const_read2(a)
        a("v_add_u32 v22, v22, v23")
        a(f"v_mul_u32_u24 v23, {CAPN}, v25")
        a("v_sub_u32 v22, v22, v23")
        a("v_cmp_gt_u32 s[84:85], 48, v25")
        a(f"v_subrev_u32 v22, {RECS//4}, v22")
        a(f"s_lshl_b32 s3, s{sK}, 3")
        a("v_mov_b32 v23, s3")
        a(f"v_min_u32 v22, s{sCAPN}, v22")
        a("v_add_u32 v21, 7, v22")
        a("v_cndmask_b32 v23, 0, v23, s[84:85]")
        a("v_and_b32 v21, -8, v21")
        a("v_max_u32 v21, v21, v23")
        a("v_sub_u32 v21, v22, v21")
        a("v_cvt_f32_i32 v21, v21")
        for r in range(16):
            a(f"v_exp_f32 v{32+r}, v{64+r}")
        for q in range(8):
            a(f"v_pk_add_f32 {P(32+2*q)}, {P(32+2*q)}, s[{sONE}:{sONE+1}]")
        for r in range(16):
            a(f"v_rcp_f32 v{32+r}, v{32+r}")
        for q in range(8):
            a(f"v_pk_mul_f32 {P(64+2*q)}, {P(64+2*q)}, {P(32+2*q)}")
        a("s_mov_b64 exec, s[86:87]")
        for q in range(8):
            a(f"v_pk_mul_f32 {P(64+2*q)}, {P(64+2*q)}, v[20:21] op_sel:[0,1] op_sel_hi:[1,1]")
        for r in range(16):
            a(f"v_cvt_f64_f32 v[{32+2*r}:{33+2*r}], v{64+r}")
        if opt("e3", 0) == 1: const_read2(a)
        a(f"s_cmp_lg_u32 s{sMODE2}, 0")
        a("s_cbranch_scc1 K2_CORRADD")
        for q in range(8):
            a(f"ds_write_b128 v6, v[{32+4*q}:{35+4*q}] offset:{AGG + 128*(q>>1) + 16*(q&1)}")
        a(f"v_mov_b32 v5, {QC+8}")
        a("v_mov_b32 v8, 1")
        a("s_mov_b64 exec, 1")
        a("ds_add_u32 v5, v8")
        a.label("K2_CORRDONE")
        a("s_mov_b64 exec, -1")
        a("s_waitcnt lgkmcnt(9)")
        fixups(False)
        if opt("e1", 3): a("s_setprio %d" % opt("e1", 3))
        a.label("K2_NOCORR")
    corr()
    a(f"s_mov_b32 s{sIT}, 0")
    a(f"s_cmp_eq_u32 s{sREM}, 0")
    a("s_cbranch_scc1 K2_DYN0")
    a(f"ds_read_b32 v{GBA}, v{VA}")
    a(f"ds_read_b32 v{GBE}, v{VE}")
    a(f"ds_read2_b32 {P(GNR)}, v{VG} offset0:0 offset1:2")
    a("s_waitcnt lgkmcnt(2)")
    a(f"v_add_u32 v{GBA}, v{GBA}, v{CA}")
    idxread(a)
    a(f"ds_read_b32 v{GBA}, v{VA} offset:512")
    a("s_waitcnt lgkmcnt(1)")
    dma4(a, True)
    stamp(a, 6)
    a(f"v_add_u32 v{GBE}, v{GBE}, v{CE}")
    a(f"v_add_u32 v{FA0}, v{GNR}, v{L8}")
    a(f"v_add_u32 v{FA0+1}, v{GNR+1}, v{L8}")
    a(f"v_add_u32 v{VG}, 512, v{VG}")
    a(f"ds_read_u16 v{AEXT+2}, v{GBE}")
    bext(a, FA0)
    a("s_waitcnt lgkmcnt(5)")
    a(f"v_add_u32 v{GBA}, v{GBA}, v{CA}")
    a(f"s_cmp_lt_u32 s{sREM}, 2")
    a("s_cbranch_scc1 K2_DYN0")
    idxread(a)
    a(f"ds_read_b32 v{GBA}, v{VA} offset:1024")
    a.label("K2_DYN0")
    pass
    a(f"s_cmp_eq_u32 s{sREM}, 0")
    a("s_cbranch_scc1 K2_LOOPDONE")
    a("s_waitcnt vmcnt(0)")
    stamp(a, 1)
    aread(a)
    a("s_waitcnt lgkmcnt(0)")
    qpoll("K2_QPOLL3", 8)
    a(f"s_cmp_lt_u32 s{sREM}, 2")
    a("s_cbranch_scc1 K2_DYN1")
    dma4(a)
    a.label("K2_DYN1")
    for m in mfma3(D0, 0): a(m)
    a(f"v_add_u32 v{GBA}, v{GBA}, v{CA}")
    a(f"s_cmp_lg_u32 s{sMODE}, 0")
    a("s_nop 7")
    a("s_nop 1")
    a("s_cbranch_scc1 K2_S_LOOP0")
    dynloop(a, "F", False)
    a.label("K2_LOOPDONE")
    a("v_mov_b32 v2, 0x76800000")
    a("v_mov_b32 v3, 0x5f800000")
    a(f"v_cmp_nlt_f32 vcc, v{PM}, v2")
    a(f"v_cmp_nlt_f32 s[84:85], v{PM2}, v3")
    a("s_or_b64 vcc, vcc, s[84:85]")
    a("s_cbranch_scc0 K2_AFTER")
    a(f"v_mov_b32 v3, {FLG+4}")
    a("v_mov_b32 v2, 1")
    a("ds_write_b32 v3, v2")
    a.label("K2_AFTER")
    stamp(a, 7)
    if STAMP and LOOPST == 1:
        a(f"s_cmp_eq_u32 s{sDYN}, 0")
        a("s_cbranch_scc1 K2_LSX")
        stamp(a, 7, True)
        a.label("K2_LSX")
    a(f"v_mov_b32 v3, {FLG}")
    a(f"s_cmp_eq_u32 s{sDYN}, 0")
    a("s_cbranch_scc1 K2_B4")
    a("v_lshrrev_b32 v7, 4, v1")
    a(f"s_lshl_b32 s3, s{sNT}, 4")
    a("v_and_b32 v9, 15, v1")
    a("v_add_u32 v9, s3, v9")
    a(f"v_add_u32 v6, s{sNODE0}, v9")
    a("v_lshlrev_b32 v6, 7, v6")
    a("v_lshl_add_u32 v4, v7, 4, v6")
    a(f"buffer_load_dwordx4 v[16:19], v4, s[{S_X}:{S_X+3}], 0 offen")
    a(f"buffer_load_dwordx4 v[20:23], v4, s[{S_X}:{S_X+3}], 0 offen offset:64")
    a("v_lshlrev_b32 v4, 4, v1")
    for hq in range(4):
        a(f"s_mov_b32 s3, {16384 + 4096*hq}")
        for q in range(4):
            r = (96 if hq < 2 else 48) + 16*(hq & 1) + 4*q if hq >= 2 else (24 + 0)
            r = [96, 112 - 80, 48, 64][hq] + 4*q
            a(f"buffer_load_dwordx4 v[{r}:{r+3}], v4, s[{S_CON}:{S_CON+3}], s3 offen offset:{1024*q}")
    a(f"v_mul_u32_u24 v8, {RS}, v9")
    a("v_lshl_add_u32 v8, v7, 6, v8")
    a("v_lshl_add_u32 v6, v7, 5, v6")
    a("s_mov_b32 s86, 0xbfb8aa3b")
    a("s_mov_b32 s87, 0xbfb8aa3b")
    a("s_waitcnt vmcnt(8)")
    for ks in range(2):
        for ft in range(4):
            W = [96, 104, 32, 40][ft] + 4*ks
            a(f"v_mfma_f32_16x16x32_bf16 v[{80+4*ft}:{83+4*ft}], v[{W}:{W+3}], v[{16+4*ks}:{19+4*ks}], " + ("0" if ks == 0 else f"v[{80+4*ft}:{83+4*ft}]"))
    a("s_nop 4")
    for q in range(8):
        if q == 6: a("s_nop 0")
        a(f"v_pk_mul_f32 {P(80+2*q)}, {P(80+2*q)}, s[86:87]")
    a("s_waitcnt vmcnt(0)")
    a.label("K2_B4")
    a("s_waitcnt lgkmcnt(0)")
    a("s_barrier")
    stamp(a, 8)
    a("ds_read_b64 v[12:13], v3")
    a(f"s_cmp_eq_u32 s{sDYN}, 0")
    a("s_cbranch_scc1 K2_NOAGG")
    for ks in range(2):
        for h in range(4):
            r = 16 + 16*ks + 4*h
            a(f"ds_read_b128 v[{r}:{r+3}], v8 offset:{AGG + 256*ks + 16*h}")
    a("s_waitcnt lgkmcnt(8)")
    a("s_branch K2_FL")
    a.label("K2_NOAGG")
    a("s_waitcnt lgkmcnt(0)")
    a.label("K2_FL")
    a("v_readfirstlane_b32 s84, v12")
    a("v_readfirstlane_b32 s85, v13")
    a(f"s_cmp_lg_u32 s{sOVF}, 0")
    a("s_cbranch_scc1 K2_RETRY")
    a(f"s_add_u32 s3, s{sCHUNK}, {CHK}")
    a("s_cmp_gt_u32 s84, s3")
    a("s_cbranch_scc1 K2_NEXTCHUNK")
    a(f"s_andn2_b32 s85, s85, s{sMODE}")
    a("s_cbranch_scc1 K2_GOSLOW")
    a(f"s_cmp_eq_u32 s{sDYN}, 0")
    a("s_cbranch_scc1 K2_FIN")
    a("s_mov_b32 s86, 0xbfb8aa3b")
    a("s_mov_b32 s87, 0xbfb8aa3b")
    a(f"s_mov_b32 s84, {NLN2:#x}")
    a(f"s_mov_b32 s85, {NLN2:#x}")
    for r in range(16):
        if r % 2 == 0: a(f"s_waitcnt lgkmcnt({7 - r//2})")
        a(f"v_cvt_f32_f64 v{96+r}, v[{16+2*r}:{17+2*r}]")
        if r % 2 == 1:
            a(f"v_pk_mul_f32 {P(95+r)}, {P(95+r)}, s[84:85]")
            a(f"v_cvt_pk_bf16_f32 v{112+r//2}, v{95+r}, v{96+r}")
    a(f"v_cmp_gt_u32 vcc, {NPB}, v9")
    a("v_mov_b32 v12, s86")
    a("v_mov_b32 v13, s86")
    for ks in range(2):
        for ft in range(4):
            a(f"v_mfma_f32_16x16x32_bf16 v[{16+4*ft}:{19+4*ft}], v[{48+8*ft+4*ks}:{51+8*ft+4*ks}], v[{112+4*ks}:{115+4*ks}], " + ("0" if ks == 0 else f"v[{16+4*ft}:{19+4*ft}]"))
    a("s_nop 4")
    for q in range(8):
        if q == 6: a("s_nop 0")
        a(f"v_pk_fma_f32 {P(80+2*q)}, {P(16+2*q)}, s[86:87], {P(80+2*q)}")
    for r in range(16):
        a(f"v_exp_f32 v{16+r}, v{80+r}")
    for q in range(8):
        a(f"v_pk_fma_f32 {P(16+2*q)}, {P(16+2*q)}, s[86:87], v[12:13]")
    for r in range(16):
        a(f"v_rcp_f32 v{16+r}, v{16+r}")
    for q in range(8):
        a(f"v_pk_mul_f32 {P(16+2*q)}, {P(16+2*q)}, {P(80+2*q)}")
    for q in range(8):
        a(f"v_cvt_pk_bf16_f32 v{32+q}, v{16+2*q}, v{17+2*q}")
    a("s_mov_b64 exec, vcc")
    so = ["", " sc1", " nt", " sc0 sc1", " sc1 nt"][opt("osc", 0)]
    a(f"buffer_store_dwordx4 v[32:35], v6, s[{S_OUT}:{S_OUT+3}], 0 offen" + so)
    a(f"buffer_store_dwordx4 v[36:39], v6, s[{S_OUT}:{S_OUT+3}], 0 offen offset:16" + so)
    a.label("K2_FIN")
    stamp_flush(a, 1, 14, 15, sW, sT)
    a.label("K2_END")
    a("s_endpgm")
    dynloop(a, "S", True)
    a.label("K2_CORRADD")
    for r in range(16):
        a(f"ds_add_f64 v6, v[{32+2*r}:{33+2*r}] offset:{AGG + 128*(r>>2) + 8*(r&3)}")
    a("s_waitcnt lgkmcnt(0)")
    a("s_branch K2_CORRDONE")
    a.label("K2_NOTINIT")
    a(f"ds_read_b32 v{GNR}, v{GBE}")
    a("s_waitcnt lgkmcnt(0)")
    a(f"v_readfirstlane_b32 s3, v{GNR}")
    a("s_cmp_lt_u32 s3, 4")
    a("s_cbranch_scc1 K2_NOTINIT")
    a("s_branch K2_INITOK")
    a.label("K2_SLOWHEAD")
    for i in range(4): a(f"v_mov_b32 v{RP+2*i}, -1")
    a(f"v_mov_b32 v2, {FLG+8}")
    a("ds_read_b64 v[4:5], v2")
    a("s_waitcnt lgkmcnt(0)")
    a(f"v_readfirstlane_b32 s{sT}, v4")
    a(f"v_readfirstlane_b32 s{sOVF}, v5")
    count_tiles(a)
    a("s_branch K2_DYNHEAD")
    a.label("K2_CAREFUL")
    for j in range(NR):
        a(f"s_mov_b64 exec, {VM(j)}")
        a(f"v_mul_u32_u24 v{48+j}, 0x5556, v{48+j}")
        a(f"v_lshrrev_b32 v{48+j}, 18, v{48+j}")
        a(f"v_mul_u32_u24 v{48+j}, {CAPN}, v{48+j}")
        a(f"v_add_u32 v{48+j}, {RECS//4 + CAPN}, v{48+j}")
        a(f"v_add_u32 v{60+j}, v{60+j}, v{20+j}")
        a(f"v_cmpx_lt_u32 vcc, v{60+j}, v{48+j}")
        a(f"v_lshlrev_b32 v{60+j}, 2, v{60+j}")
        a(f"s_andn2_b64 {VM(j)}, {VM(j)}, vcc")
        a(f"ds_write_b32 v{60+j}, v{32+j}")
    a("s_branch K2_PL4")
    a.label("K2_GOSLOW")
    a(f"s_mov_b32 s{sMODE}, 1")
    a(f"s_mov_b32 s{sCHUNK}, {-CHK}")
    a(f"s_mov_b32 s{sK}, 0")
    a(f"s_mov_b32 s{sM}, 0")
    a("s_waitcnt lgkmcnt(0)")
    a("s_barrier")
    a(f"s_cmp_eq_u32 s{sDYN}, 0")
    a("s_cbranch_scc1 K2_NEXTCHUNK")
    prefill(a, 2)
    cnt_init(a, 2)
    a("s_branch K2_HAGAIN")
    a.label("K2_NEXTCHUNK")
    a(f"s_add_u32 s{sCHUNK}, s{sCHUNK}, {CHK}")
    a(f"s_cmp_lg_u32 s{sDYN}, 0")
    a("s_cbranch_scc1 K2_RETRY")
    rec_prep(False)
    rec_masks()
    rec_masks2()
    a.label("K2_RETRY")
    a(f"s_mov_b32 s{sMODE2}, 1")
    a("s_waitcnt lgkmcnt(0)")
    a(f"s_cmp_lg_u32 s{sDYN}, 0")
    a("s_cbranch_scc1 K2_HRETRY")
    rec_prep(False)
    rec_loads(False, "K2_RL2")
    first_addr(a)
    a("v_bfrev_b32 v17, 1")
    a("s_barrier")
    a("s_branch K2_PASS")
    a.label("K2_HAGAIN")
    a(f"s_mov_b32 s{sMODE2}, 1")
    a(f"s_add_u32 s{sCHUNK}, s{sCHUNK}, {CHK}")
    a("s_branch K2_HR2")
    a.label("K2_HRETRY")
    prefill(a, 0)
    cnt_init(a, 0)
    a.label("K2_HR2")
    hprep()
    tile_addrs()
    a(f"v_add_u32 v2, {BP}, v6")
    for q in range(8):
        a(f"ds_read2_b32 v[{32+2*q}:{33+2*q}], v2 offset0:{32*(q>>1)+4*(q&1)} offset1:{32*(q>>1)+4*(q&1)+2}")
    a("s_waitcnt lgkmcnt(0)")
    a("s_barrier")
    for r in range(16):
        a(f"v_lshlrev_b32 v{64+r}, 16, v{32+r}")
        a(f"v_and_b32 v{32+r}, 0xffff0000, v{32+r}")
        a(f"v_add_f32 v{64+r}, v{64+r}, v{32+r}")
    a("s_branch K2_HPASS2")

HEAD = open("standalone__mpnn_edge_mlp__graph.s.ref").read().split("; Override launch")[0]

def main(out):
    a = Asm()
    a.lines.append(HEAD.rstrip())
    a.lines.append(f"; @launch kernel=k1_kernel grid=({NP+1},1,1) block=({K1W*64},1,1) lds=90112")
    a.lines.append(f"; @launch kernel=k2_kernel grid=({NB},1,1) block=(1024,1,1) lds={K2_LDS}")
    a('.amdgcn_target "amdgcn-amd-amdhsa--gfx950"')
    a(".text")
    for k, g in (("k1_kernel", gen_k1), ("k2_kernel", gen_k2)):
        a(f".globl {k}")
        a(".p2align 8")
        a(f".type {k},@function")
        g(a)
    a('.section .rodata,"a"')
    a(".p2align 6")
    a.lines.append(desc("k1_kernel", max(128, 48 + 36*opt("u", 2) + 4), 102).rstrip())
    a(".p2align 6")
    a.lines.append(desc("k2_kernel", 128, 102).rstrip())
    open(out, "w").write(a.text())

if __name__ == "__main__":
    main(sys.argv[1] if len(sys.argv) > 1 else "standalone__mpnn_edge_mlp__graph.s")
```

```python
import sys, os
sys.path.insert(0, os.path.dirname(__file__))
from asmlib import *

CURK = [1]
STK2 = [88, 90, 92, 94, 96, 98, 0, 80, 36, 38] if not os.environ.get('LOOPST') else [88, 90, 92, 94, 96, 98, 0, 82, 36, 38]
STAMP = int(os.environ.get("STAMP", "0"))
OPT = dict(kv.split("=") for kv in os.environ.get("OPT", "").split(",") if kv)
def opt(k, d): return int(OPT.get(k, d))

N = 12500; E = 800000
NP = 250; CH = 3200
NPB = 49; NB = 256
TROWS = 50
WS_TAB = 4096; WS_OFF = 0x200000; WS_REC = 0x400000
WS_STAMP = 0x1000000
NLOG2E = 0xbfb8aa3b
NLN2 = 0xbf317218

LOOPST = int(os.environ.get("LOOPST", "0"))
SEEN = set()
def stamp(a, idx, loop=False):
    if not STAMP: return
    if opt("stb0", 0) and CURK[0] == 2:
        if idx in SEEN: return
        SEEN.add(idx)
    if LOOPST == 4 and CURK[0] == 2:
        if not loop and idx not in (7, 8, 9): return
        if not loop and idx == 7: idx = 0
    elif LOOPST == 3 and CURK[0] == 2:
        if not loop and idx not in (0, 9): return
    elif LOOPST and CURK[0] == 2 and not loop and idx not in (8, 9) and not (idx == 5): return
    if LOOPST in (1, 2) and CURK[0] == 2 and not loop and idx == 5: idx = 0
    assert idx < 10
    if CURK[0] == 2:
        a("s_memtime s[88:89]")
        a("s_waitcnt lgkmcnt(0)") if False else None
        a(f"s_memtime s[{STK2[idx]}:{STK2[idx]+1}]") if False else None
        a.lines.pop() if False else None
        a.lines.pop()
        a(f"s_memtime s[{STK2[idx]}:{STK2[idx]+1}]")
        return
    a(f"s_memtime s[{80+2*idx}:{81+2*idx}]")
def stamp_start(a):
    if not STAMP: return
    a("s_memrealtime s[100:101]")
    for i in range(10): a(f"s_mov_b32 s{80+2*i}, 0") if False else None
def stamp_flush(a, kern, wsl, wsh, wave, extra=None):
    if not STAMP: return
    a("s_waitcnt vmcnt(0)")
    stamp(a, 9)
    a(f"s_memrealtime s[76:77]")
    if STAMP == 2:
        lab = f"DBG_{kern}_{len(a.lines)}"
        a("s_load_dwordx2 s[72:73], s[0:1], 56")
        a(f"s_waitcnt lgkmcnt(0)")
        a(f"s_mov_b64 exec, 1")
        if kern == 0:
            a("s_add_u32 s72, s72, 512")
            a("s_addc_u32 s73, s73, 0")
        a("v_mov_b32 v2, 0")
        a("s_cmp_lg_u32 s2, 5")
        a(f"s_cbranch_scc1 {lab}")
        a(f"s_cmp_lg_u32 s{wave}, 0")
        a(f"s_cbranch_scc1 {lab}")
        a("v_mov_b32 v3, s100")
        a(f"global_store_dword v2, v3, s[72:73] offset:{32*kern}")
        a("v_mov_b32 v3, s76")
        a(f"global_store_dword v2, v3, s[72:73] offset:{32*kern+4}")
        idx = (3, 4, 5, 6, 7, 9) if kern == 0 else (2, 4, 6, 7, 8, 9)
        for i, k in enumerate(idx):
            a(f"s_sub_u32 s3, s{80+2*k}, s80")
            a("v_mov_b32 v3, s3")
            a(f"global_store_dword v2, v3, s[72:73] offset:{32*kern+8+4*i}")
        a.label(lab)
        a("s_waitcnt vmcnt(0)")
        return
    a(f"s_lshl_b32 s78, s2, 4")
    a(f"s_add_u32 s78, s78, s{wave}")
    a(f"s_lshl_b32 s78, s78, 6")
    a(f"s_add_u32 s78, s78, {WS_STAMP + kern*0x100000}")
    a(f"s_waitcnt lgkmcnt(0)")
    a(f"s_mov_b64 exec, 1")
    a(f"v_mov_b32 v2, s78")
    srcs = ([80+2*i for i in range(10)] if kern == 0 else STK2) + [100, extra if extra is not None else 100, 100, 100, 100, 76]
    for i in range(16):
        a(f"v_mov_b32 v3, s{srcs[i]}")
        a(f"global_store_dword v2, v3, s[{wsl}:{wsh}] offset:{4*i}")
    a("s_waitcnt vmcnt(0)")
def prio(a, p):
    if opt("prio", 1): a(f"s_setprio {p}")

KS = opt("K", 7); MD = opt("M", 6)
PV = opt("pv", 0)
def _pp(t): return [tuple(int(c) for c in x) for x in t.split("-")]
SP0 = 3
SPRIO = dict(_pp(OPT.get("sprio", "22-41-60")))
DPRIO = tuple(_pp(OPT.get("dprio", "12-21-40")))
SPL = opt("spl", 4200)
W1L_ = (SPL + 31)//32; W2L_ = (N - SPL + 31)//32
RS = 528; CAPN = 112; BLK = CAPN*4
RSTR = 16896
CNT = 16; FLG = 624; QC = 0; AGG = 640; BP = AGG + 50*RS; RECS = BP + 50*RS; GT = RECS + 50*BLK
CONSTL = GT + 5632; STG = (CONSTL + 7680 + 127)//128*128
K2_LDS = STG + 65536
PST = STG
assert K2_LDS <= 163840
D0 = 16; D1 = 32; X = 48; A = 64; AEXT = 80; BX0 = 84; BX1 = 88; I0 = 92; I1 = 96
RA = 100; RP = 104; VA = 112; VE = 113; VG = 114; L8 = 115; CA = 116; CE = 117
FA0 = 118; FA1 = 120; GNR = 122; GBA = 124; GBE = 125; PM = 126; OFFW = 127
NN = 2; PA = 4; PB = 6; RR = 8; OUT = 10; CADR = 14; PM2 = 15
N0 = 2; P0 = 4; N1 = 8; P1 = 10; PT = 6; SA = 12; SE = 13
S_X = 16; S_OUT = 28; S_TAB = 32; S_OFF = 36; S_REC = 40; S_CON = 8; S_TABR = 20
sB = 44; sNODE0 = 45; sW = 46; sSLOT = 47; sREM = 48; sIT = 49; sCHUNK = 50; sMODE = 51; sOVF = 52; sNT = 53; sFT = 54
sMODE2 = 55; sTN = 56; sTMP = 57; sONE = 58
sVAL = 60
sCAPN = 6; sRECS = 7; sK = 24; sM = 25; sT = 26; sDYN = 27; sSC = 12; sWB = 54

K1W = 1 + (CH//4//opt('u', 2) + 63)//64
NX = opt('nx', 2)
WS_CONST = 0x280000; WS_FRAG = WS_CONST + 8192
def gen_k1(a):
    HIST = 0; OFFS = 1024; RECS1 = 3072; W1L = RECS1 + RSTR; XL = W1L + 8192
    assert XL % 128 == 0
    st = ["", " sc1", " nt", " sc0 sc1", " sc1 nt"][opt("k1sc", 0)]
    stt = ["", " sc1", " nt", " sc0 sc1", " sc1 nt"][opt("tabsc", 0)]
    nt = " nt" if opt("k1nt", 1) else ""
    a.label("k1_kernel")
    a(f"s_cmp_ge_u32 s2, {NP}")
    a("s_cbranch_scc1 K1_EXTRA")
    a("s_load_dwordx8 s[4:11], s[0:1], 0")
    a("s_load_dwordx2 s[12:13], s[0:1], 32")
    a("s_load_dwordx2 s[14:15], s[0:1], 64")
    stamp_start(a)
    stamp(a, 0)
    a("v_lshrrev_b32 v2, 6, v0")
    a("v_and_b32 v1, 63, v0")
    a("v_readfirstlane_b32 s16, v2")
    U = opt("u", 2)
    NT = CH // 4 // U
    a("v_subrev_u32 v40, 64, v0")
    a(f"v_mov_b32 v41, {NT}")
    a("v_cmp_lt_u32 vcc, v40, v41")
    a(f"s_mul_i32 s17, s2, {CH*4}")
    a("v_lshlrev_b32 v3, 4, v40")
    a("v_add_u32 v2, s17, v3")
    a("s_cmp_eq_u32 s16, 0")
    a("s_cbranch_scc1 K1_TABLE")
    a("s_mov_b64 exec, vcc")
    DST = lambda u, j: 48 + 36*u + j
    SRC = lambda u, j: 52 + 36*u + j
    EE = lambda u: 56 + 36*u
    BK = lambda u, j: 58 + 36*u + j
    HA = lambda u, j: 62 + 36*u + j
    RK = lambda u, j: 66 + 36*u + j
    DL = lambda u, j: 70 + 36*u + j
    OF = lambda u, j: 74 + 36*u + 2*j
    for u in range(U):
        a(f"v_add_u32 v{4+u}, {u*NT*16}, v2")
        a(f"v_lshrrev_b32 v{8+u}, 1, v{4+u}")
    a("v_mov_b32 v35, 1")
    a(f"s_movk_i32 s3, {-NPB*3}")
    a("s_waitcnt lgkmcnt(0)")
    if not opt("k1dbg",0): stamp(a, 1)
    for u in range(U):
        a(f"global_load_dwordx4 v[{DST(u,0)}:{DST(u,3)}], v{4+u}, s[10:11]" + nt)
    a(f"s_mul_i32 s18, s2, {RSTR}")
    a(f"s_add_u32 s18, s18, {WS_REC}")
    if not opt("k1dbg",0): stamp(a, 2)
    a("s_barrier")
    for u in range(U):
        a(f"global_load_dwordx4 v[{SRC(u,0)}:{SRC(u,3)}], v{4+u}, s[8:9]" + nt)
    for u in range(U):
        a(f"global_load_dwordx2 v[{EE(u)}:{EE(u)+1}], v{8+u}, s[6:7]" + nt)
    stamp(a, 3)
    for u in range(U):
        a(f"s_waitcnt vmcnt({2*U + U-1-u})")
        if u == U-1: stamp(a, 4)
        for j in range(4):
            a(f"v_mul_u32_u24 v{BK(u,j)}, 5350, v{DST(u,j)}")
            a(f"v_lshrrev_b32 v{BK(u,j)}, 18, v{BK(u,j)}")
            a(f"v_lshlrev_b32 v{HA(u,j)}, 2, v{BK(u,j)}")
            a(f"ds_add_rtn_u32 v{RK(u,j)}, v{HA(u,j)}, v35 offset:{HIST}")
    a("s_waitcnt lgkmcnt(0)")
    a("s_barrier")
    stamp(a, 5)
    for u in range(U):
        for j in range(4):
            a(f"v_mad_u32_u24 v{DST(u,j)}, v{DST(u,j)}, 3, 1")
            a(f"v_mad_i32_i24 v{DL(u,j)}, v{BK(u,j)}, s3, v{DST(u,j)}")
            a(f"v_lshlrev_b32 v{HA(u,j)}, 1, v{HA(u,j)}")
    a("s_barrier")
    stamp(a, 6)
    for u in range(U):
        for j in range(4):
            a(f"ds_read_b64 v[{OF(u,j)}:{OF(u,j)+1}], v{HA(u,j)} offset:{OFFS}")
    a("s_mov_b32 s3, 0xffff0000")
    a("s_waitcnt lgkmcnt(0)")
    for u in range(U):
        for j in range(4):
            a(f"v_add_u32 v{OF(u,j)+1}, v{OF(u,j)+1}, v{RK(u,j)}")
            a(f"v_lshl_add_u32 v{OF(u,j)}, v{RK(u,j)}, 2, v{OF(u,j)}")
    for u in range(U):
        a(f"s_waitcnt vmcnt({U + U-1-u})")
        for j in range(4):
            a(f"v_add_u32 v{DST(u,j)}, {16384 - SPL}, v{SRC(u,j)}")
            a(f"v_lshrrev_b32 v{DST(u,j)}, 14, v{DST(u,j)}")
            a(f"v_add_u32 v{DL(u,j)}, v{DL(u,j)}, v{DST(u,j)}")
            a(f"ds_write_b8 v{OF(u,j)+1}, v{DL(u,j)} offset:{RECS1}")
    for u in range(U):
        a(f"s_waitcnt vmcnt({U-1-u})")
        if u == U-1 and opt("k1dbg",0): stamp(a, 1)
        a(f"v_lshl_or_b32 v{SRC(u,0)}, v{EE(u)}, 16, v{SRC(u,0)}")
        a(f"v_and_or_b32 v{SRC(u,1)}, v{EE(u)}, s3, v{SRC(u,1)}")
        a(f"v_lshl_or_b32 v{SRC(u,2)}, v{EE(u)+1}, 16, v{SRC(u,2)}")
        a(f"v_and_or_b32 v{SRC(u,3)}, v{EE(u)+1}, s3, v{SRC(u,3)}")
        for j in range(4):
            a(f"ds_write_b32 v{OF(u,j)}, v{SRC(u,j)} offset:{RECS1}")
    a("s_mov_b64 exec, -1")
    NW = K1W - 1
    NCP = (16768//16 + NW*64 - 1) // (NW*64)
    a("v_add_u32 v41, s18, v3")
    a(f"v_mov_b32 v42, {16768//16 - (NCP-1)*NW*64}")
    a("v_cmp_lt_u32 vcc, v40, v42")
    a("s_waitcnt lgkmcnt(0)")
    if opt("k1dbg",0): stamp(a, 2)
    a("s_barrier")
    stamp(a, 7)
    for c in range(NCP):
        a(f"ds_read_b128 v[{4+4*c}:{7+4*c}], v3 offset:{RECS1 + c*NW*1024}")
    for c in range(NCP):
        a(f"s_waitcnt lgkmcnt({NCP-1-c})")
        if c == NCP-1:
            a("s_cbranch_vccz K1_FIN")
            a("s_mov_b64 exec, vcc")
        a(f"global_store_dwordx4 v41, v[{4+4*c}:{7+4*c}], s[14:15]" + st)
        if c < NCP-1: a(f"v_add_u32 v41, {NW*1024}, v41")
    a.label("K1_FIN")
    if opt("wb", 0):
        a("s_cmp_lg_u32 s16, 1")
        a("s_cbranch_scc1 K1_NOWB")
        a(f"s_cmp_ge_u32 s2, {8*opt('wb', 0)}")
        a("s_cbranch_scc1 K1_NOWB")
        a("s_waitcnt vmcnt(0)")
        a("buffer_wbl2 sc1")
        a.label("K1_NOWB")
    stamp(a, 8)
    stamp_flush(a, 0, 14, 15, 16)
    a("s_endpgm")
    a.label("K1_TABLE")
    a("v_lshlrev_b32 v4, 4, v1")
    for r in range(4): a(f"v_mov_b32 v{36+r}, 0")
    a(f"ds_write_b128 v4, v[36:39] offset:{HIST}")
    a("v_lshrrev_b32 v5, 3, v1")
    a("v_and_b32 v6, 7, v1")
    a("v_xor_b32 v6, v6, v5")
    a("v_lshlrev_b32 v6, 4, v6")
    a("v_lshl_add_u32 v6, v5, 7, v6")
    a(f"s_mul_i32 s23, s2, {TROWS*128}")
    a("v_add_u32 v6, s23, v6")
    a("v_add_u32 v14, 4096, v6")
    a(f"s_mov_b32 m0, {XL}")
    a("s_waitcnt lgkmcnt(0)")
    stamp(a, 1)
    TF = opt("tfirst", 0)
    XE = opt("xearly", 1) or TF
    if not XE:
        a("s_barrier")
        stamp(a, 3)
    srd(a, 24, 4, 5, N*128)
    xp = " nt" if opt("k1xnt", 0) else ""
    for i in range(4):
        a(f"buffer_load_dwordx4 v6, s[24:27], 0 offen offset:{1024*i}" + xp + " lds")
    a(f"s_mov_b32 m0, {XL + 4096}")
    srd(a, 28, 12, 13, 129*128)
    for i in range(3):
        a(f"buffer_load_dwordx4 v14, s[24:27], 0 offen offset:{1024*i}" + xp + " lds")
    a(f"s_mov_b32 m0, {W1L}")
    a("s_movk_i32 s3, 0x1000")
    for i in range(4):
        a(f"buffer_load_dwordx4 v4, s[28:31], 0 offen offset:{1024*i} lds")
    a(f"s_mov_b32 m0, {W1L + 4096}")
    a("s_nop 0")
    for i in range(4):
        a(f"buffer_load_dwordx4 v4, s[28:31], s3 offen offset:{1024*i} lds")
    stamp(a, 2)
    if XE:
        a("s_barrier")
        stamp(a, 3)
    srd(a, 32, 14, 15, N*128, WS_TAB)
    a("v_lshrrev_b32 v7, 4, v1")
    a("v_bfe_u32 v8, v1, 2, 2")
    a("v_and_b32 v9, 3, v1")
    a("v_lshl_add_u32 v8, v7, 3, v8")
    a("v_lshlrev_b32 v8, 7, v8")
    a("v_lshl_add_u32 v8, v9, 5, v8")
    a("v_and_b32 v10, 15, v1")
    a("v_and_b32 v11, 7, v1")
    a("v_xor_b32 v11, v11, v7")
    a("v_lshlrev_b32 v11, 4, v11")
    a("v_lshl_add_u32 v11, v10, 7, v11")
    a("v_xor_b32 v12, 64, v11")
    a("v_lshlrev_b32 v13, 7, v10")
    a("v_lshl_add_u32 v13, v7, 5, v13")
    a("v_add_u32 v13, s23, v13")
    a("v_add_u32 v15, 4096, v13")
    a(f"s_mov_b32 s40, {NLOG2E:#x}")
    a(f"s_mov_b32 s41, {NLOG2E:#x}")
    a("v_cmp_gt_u32 s[42:43], 2, v10")
    if opt("toff", 1):
        a("s_and_b32 s3, s2, 7")
        a("s_lshl_b32 s3, s3, 5")
        a("s_lshr_b32 s44, s2, 3")
        a("s_add_u32 s3, s3, s44")
        a("s_lshl_b32 s3, s3, 2")
        a(f"s_add_u32 s3, s3, {WS_OFF}")
        a("v_lshlrev_b32 v3, 12, v1")
        a("v_add_u32 v3, s3, v3")
    else:
        a("s_lshl_b32 s3, s2, 10")
        a(f"s_add_u32 s3, s3, {WS_OFF}")
        a("v_add_u32 v3, s3, v4")
    def table():
        for nti in range(4):
            a(f"ds_read_b128 v[{80+8*nti}:{83+8*nti}], v11 offset:{XL + 2048*nti}")
            a(f"ds_read_b128 v[{84+8*nti}:{87+8*nti}], v12 offset:{XL + 2048*nti}")
        for ft in range(4):
            for ks in range(2):
                for h in range(2):
                    r = 16 + 8*ft + 4*ks + 2*h
                    a(f"ds_read_b64_tr_b16 v[{r}:{r+1}], v8 offset:{W1L + (32*ks+4*h)*128 + 8*ft}")
        a("s_waitcnt lgkmcnt(0)")
        def mm(nti):
            D = 48 + 16*(nti & 1); xa = 80 + 8*nti
            for ft in range(4):
                a(f"v_mfma_f32_16x16x32_bf16 v[{D+4*ft}:{D+3+4*ft}], v[{16+8*ft}:{19+8*ft}], v[{xa}:{xa+3}], 0")
            for ft in range(4):
                a(f"v_mfma_f32_16x16x32_bf16 v[{D+4*ft}:{D+3+4*ft}], v[{20+8*ft}:{23+8*ft}], v[{xa+4}:{xa+7}], v[{D+4*ft}:{D+3+4*ft}]")
        def fin(nti):
            D = 48 + 16*(nti & 1); o = 80 + 8*nti
            for q in range(8):
                a(f"v_pk_mul_f32 v[{D+2*q}:{D+1+2*q}], v[{D+2*q}:{D+1+2*q}], s[40:41]")
            for q in range(8):
                a(f"v_cvt_pk_bf16_f32 v{o+q}, v{D+2*q}, v{D+1+2*q}")
            if nti == 3: a("s_mov_b64 exec, s[42:43]")
            ar = 13 if nti < 2 else 15
            a(f"buffer_store_dwordx4 v[{o}:{o+3}], v{ar}, s[32:35], 0 offen offset:{2048*(nti&1)}" + stt)
            a(f"buffer_store_dwordx4 v[{o+4}:{o+7}], v{ar}, s[32:35], 0 offen offset:{2048*(nti&1)+16}" + stt)
            if nti == 3: a("s_mov_b64 exec, -1")
        TB = opt("tb", 4)
        def b3(k):
            if TB == k and not TF:
                a("s_barrier")
                stamp(a, 7)
        b3(0); mm(0); mm(1); fin(0); mm(2); b3(1); fin(1); mm(3); b3(2); fin(2); a("s_nop 7"); b3(3); fin(3); b3(4)
    a("s_setprio 3")
    if TF:
        a("s_waitcnt vmcnt(0)")
        stamp(a, 4)
        table()
    a("s_barrier")
    stamp(a, 5)
    a(f"ds_read_b128 v[56:59], v4 offset:{HIST}")
    a("s_waitcnt lgkmcnt(0)")
    for j in range(4):
        a(f"v_add_u32 v{60+j}, 3, v{56+j}")
        a(f"v_lshrrev_b32 v{60+j}, 2, v{60+j}")
        a(f"v_add_u32 v{60+j}, v{60+j}, v{56+j}")
    a("v_add_u32 v66, v60, v61")
    a("v_add_u32 v67, v66, v62")
    a("v_add_u32 v68, v67, v63")
    a("v_mov_b32 v69, v68")
    a("s_nop 1")
    scan64(a, 69)
    a("v_sub_u32 v72, v69, v68")
    a("v_add_u32 v73, v72, v60")
    a("v_add_u32 v74, v72, v66")
    a("v_add_u32 v75, v72, v67")
    for j in range(4):
        a(f"v_lshlrev_b32 v{60+2*j}, 2, v{72+j}")
        a(f"v_add_lshl_u32 v{61+2*j}, v{72+j}, v{56+j}, 2")
    a("v_lshlrev_b32 v5, 5, v1")
    a(f"ds_write_b128 v5, v[60:63] offset:{OFFS}")
    a(f"ds_write_b128 v5, v[64:67] offset:{OFFS+16}")
    a("s_waitcnt lgkmcnt(0)")
    a("s_barrier")
    stamp(a, 6)
    for j in range(4):
        a(f"v_lshl_or_b32 v{76+j}, v{56+j}, 16, v{72+j}")
    if not TF:
        a("s_waitcnt vmcnt(0)")
        stamp(a, 4)
    if opt("toff", 1):
        for j in range(4):
            a(f"global_store_dword v3, v{76+j}, s[14:15] offset:{1024*j}" + st)
    else:
        a("global_store_dwordx4 v3, v[76:79], s[14:15]" + st)
    if not TF: table()
    stamp(a, 8)
    stamp_flush(a, 0, 14, 15, 16)
    a("s_endpgm")
    a.label("K1_EXTRA")
    a(f"s_cmp_ge_u32 s2, {NP + NX}")
    a("s_cbranch_scc1 K1_END")
    a("s_load_dwordx4 s[8:11], s[0:1], 32")
    a("s_load_dwordx2 s[14:15], s[0:1], 64")
    a("v_lshrrev_b32 v2, 6, v0")
    a("v_and_b32 v1, 63, v0")
    a("v_readfirstlane_b32 s16, v2")
    a("s_waitcnt lgkmcnt(0)")
    srd(a, 20, 8, 9, 129*128)
    srd(a, 24, 10, 11, 128*128)
    a(f"s_sub_u32 s3, s2, {NP}")
    a(f"s_mul_i32 s3, s3, {K1W}")
    a("s_add_u32 s16, s16, s3")
    a("s_cmp_eq_u32 s16, 0")
    a("s_cbranch_scc1 K1_CONST")
    a("s_sub_u32 s17, s16, 1")
    a.label("K1_FRAG")
    a("s_cmp_gt_u32 s17, 11")
    a("s_cbranch_scc1 K1_END")
    a("s_lshr_b32 s18, s17, 2")
    a("s_and_b32 s19, s17, 3")
    a("v_and_b32 v3, 15, v1")
    a("v_lshrrev_b32 v4, 4, v1")
    a("v_lshlrev_b32 v4, 10, v4")
    a("s_lshl_b32 s3, s19, 4")
    a("v_add_u32 v5, s3, v3")
    a("v_lshrrev_b32 v6, 2, v3")
    a("v_and_b32 v7, 3, v3")
    a("v_lshl_add_u32 v6, v6, 4, v7")
    a("s_lshl_b32 s3, s19, 2")
    a("v_add_u32 v6, s3, v6")
    a("s_cmp_ge_u32 s18, 1")
    a("s_cselect_b64 s[30:31], -1, 0")
    a("v_cndmask_b32 v5, v5, v6, s[30:31]")
    a("v_lshl_add_u32 v4, v5, 1, v4")
    a("s_cmp_eq_u32 s18, 0")
    a("s_cselect_b32 s28, s8, s10")
    a("s_cselect_b32 s29, s9, s11")
    a("s_movk_i32 s30, 0x4000")
    a("s_mov_b32 s31, 0x00020000")
    a("s_cmp_eq_u32 s18, 1")
    a("s_cselect_b32 s3, 0, 0x2000")
    a("s_add_u32 s4, s3, 0x1000")
    for ks in range(2):
        for j in range(8):
            a(f"buffer_load_ushort v{16+8*ks+j}, v4, s[28:31], s{3+ks} offen offset:{128*j}")
    srd(a, 32, 14, 15, 3*8192, WS_FRAG)
    a("s_lshl_b32 s3, s17, 11")
    a("v_lshlrev_b32 v2, 4, v1")
    a("s_waitcnt vmcnt(0)")
    for q in range(8):
        a(f"v_lshl_or_b32 v{8+q}, v{17+2*q}, 16, v{16+2*q}")
    a("buffer_store_dwordx4 v[8:11], v2, s[32:35], s3 offen")
    a("buffer_store_dwordx4 v[12:15], v2, s[32:35], s3 offen offset:1024")
    a(f"s_add_u32 s17, s17, {NX*K1W-1}")
    a("s_branch K1_FRAG")
    a.label("K1_CONST")
    a("v_and_b32 v8, 31, v1")
    a("v_lshlrev_b32 v9, 1, v8")
    a("s_movk_i32 s3, 0x4000")
    a("buffer_load_ushort v24, v9, s[20:23], s3 offen")
    a("buffer_load_ushort v25, v9, s[20:23], s3 offen offset:64")
    a("v_lshrrev_b32 v11, 5, v1")
    a("v_lshlrev_b32 v47, 3, v8")
    a("v_lshlrev_b32 v12, 3, v11")
    a("v_sub_u32 v12, v8, v12")
    a("v_and_b32 v13, 1, v12")
    a("v_lshlrev_b32 v13, 4, v13")
    a("v_mov_b32 v14, 0x3f80")
    a("v_lshlrev_b32 v13, v13, v14")
    a("v_ashrrev_i32 v12, 1, v12")
    for i in range(4):
        a(f"v_cmp_eq_u32 s[{60+4*i}:{61+4*i}], {i}, v12")
        a(f"v_cmp_eq_u32 s[{62+4*i}:{63+4*i}], {8+i}, v12")
    for i in range(4):
        a(f"v_cndmask_b32 v{32+i}, 0, v13, s[{60+4*i}:{61+4*i}]")
        a(f"v_cndmask_b32 v{36+i}, 0, v13, s[{62+4*i}:{63+4*i}]")
    a("v_bfe_u32 v12, v8, 2, 1")
    a("v_and_b32 v13, 1, v8")
    a("v_lshl_or_b32 v14, v12, 1, v13")
    a("v_lshlrev_b32 v15, 1, v11")
    a("v_sub_u32 v15, v14, v15")
    a("v_cmp_eq_u32 s[60:61], 0, v15")
    a("v_cmp_eq_u32 s[62:63], 1, v15")
    a("v_mov_b32 v26, 0x3f803f80")
    a("s_nop 0")
    a("v_cndmask_b32 v56, 0, v26, s[60:61]")
    a("v_cndmask_b32 v57, 0, v26, s[62:63]")
    a("v_bfe_u32 v15, v8, 1, 1")
    a("v_lshrrev_b32 v26, 3, v8")
    a("v_lshl_or_b32 v27, v26, 1, v15")
    a("v_lshl_or_b32 v49, v27, 2, 2")
    a("v_lshl_or_b32 v27, v14, 3, v27")
    a("v_and_b32 v28, 3, v27")
    a("v_lshrrev_b32 v27, 2, v27")
    a("v_lshl_or_b32 v27, v28, 3, v27")
    a("v_and_b32 v28, 7, v8")
    a("v_xor_b32 v28, v28, v11")
    a("v_lshlrev_b32 v28, 4, v28")
    a("v_lshl_add_u32 v40, v27, 7, v28")
    for k in range(1, 4):
        a(f"v_xor_b32 v{40+k}, {32*k}, v40")
    a("v_lshlrev_b32 v48, 1, v1")
    a("v_and_b32 v48, 16, v48")
    a("v_lshrrev_b32 v7, 4, v1")
    a(f"s_mov_b32 s3, {GT}")
    a("v_lshl_add_u32 v44, v7, 3, s3")
    a("v_lshl_add_u32 v45, v14, 3, s3")
    a(f"s_mov_b32 s3, {GT + 4}")
    a("v_lshl_add_u32 v46, v11, 4, s3")
    a("v_and_b32 v5, 15, v1")
    a("v_and_b32 v2, 7, v1")
    a("v_xor_b32 v2, v2, v7")
    a("v_lshlrev_b32 v2, 4, v2")
    a("v_lshl_add_u32 v2, v5, 7, v2")
    a(f"v_add_u32 v52, {PST + 16384}, v2")
    a("v_lshlrev_b32 v3, 4, v1")
    a(f"v_add_u32 v53, {PST}, v3")
    a(f"v_mul_u32_u24 v54, {RS}, v5")
    a("v_lshl_add_u32 v54, v7, 5, v54")
    a("v_mul_u32_u24 v55, 12, v5")
    a(f"v_mul_u32_u24 v62, {BLK}, v14")
    a(f"s_mov_b32 s3, {RECS}")
    a("v_add3_u32 v62, v62, v49, s3")
    a(f"v_mul_u32_u24 v63, {2*RS}, v11")
    a("v_add_u32 v63, v63, v47")
    a(f"s_mov_b32 s3, {NLOG2E:#x}")
    a("v_cmp_gt_u32 s[60:61], 32, v1")
    a("v_mov_b32 v59, 0")
    a("v_mov_b32 v61, 0")
    a("s_waitcnt vmcnt(0)")
    for j in range(2):
        a(f"v_lshlrev_b32 v{24+j}, 16, v{24+j}")
        a(f"v_mul_f32 v{24+j}, s3, v{24+j}")
        a(f"v_cvt_pk_bf16_f32 v26, v{24+j}, v{24+j}")
        a("v_and_b32 v27, 0xffff0000, v26")
        a(f"v_sub_f32 v27, v{24+j}, v27")
        a("v_cvt_pk_bf16_f32 v27, v27, v27")
        a(f"v_cndmask_b32 v26, v27, v26, s[60:61]")
        a(f"v_and_b32 v{58+2*j}, 0xffff, v26")
    srd(a, 28, 14, 15, 8192, WS_CONST)
    a("v_lshlrev_b32 v2, 4, v1")
    a("v_lshlrev_b32 v3, 3, v1")
    a("s_movk_i32 s3, 0x1000")
    for i in range(4):
        a(f"buffer_store_dwordx4 v[{32+4*i}:{35+4*i}], v2, s[28:31], 0 offen offset:{1024*i}")
    a("buffer_store_dwordx4 v[52:55], v2, s[28:31], s3 offen")
    for i in range(4):
        a(f"buffer_store_dwordx2 v[{56+2*i}:{57+2*i}], v3, s[28:31], s3 offen offset:{1024+512*i}")
    a("buffer_store_dwordx2 v[48:49], v3, s[28:31], s3 offen offset:3072")
    a.label("K1_END")
    a("s_endpgm")

def P(r): return f"v[{r}:{r+1}]"

def mfma3(Dn, j):
    bx = BX0 if j == 0 else BX1
    return [f"v_mfma_f32_32x32x16_bf16 {v(Dn,16)}, {v(AEXT,4)}, {v(bx,4)}, 0",
            f"v_mfma_f32_32x32x16_bf16 {v(Dn,16)}, {v(A+8*j,4)}, {v(I0,4)}, {v(Dn,16)}",
            f"v_mfma_f32_32x32x16_bf16 {v(Dn,16)}, {v(A+8*j+4,4)}, {v(I1,4)}, {v(Dn,16)}"]

def xphase(a, Dc, mf):
    ex = [f"v_exp_f32 v{X+r}, v{Dc+r}" for r in range(16)]
    seq = [mf[0]] + ex[0:4] + [mf[1]] + ex[4:8] + [mf[2]] + ex[8:16] if mf else ex
    for l in seq: a(l)

def fphase(a, Dc, off, slow, fa, mids=()):
    mids = dict(mids)
    if not slow:
        a(f"v_pk_add_f32 {P(PA)}, {P(X)}, s[{sONE}:{sONE+1}]")
        cur, nxt = PA, PB
        for q in range(1, 8):
            src = Dc if q == 1 else NN
            a(f"v_pk_fma_f32 {P(NN)}, {P(src)}, {P(X+2*q)}, {P(src)}")
            a(f"v_pk_fma_f32 {P(nxt)}, {P(cur)}, {P(X+2*q)}, {P(cur)}")
            a(f"v_pk_fma_f32 {P(NN)}, {P(Dc+2*q)}, {P(cur)}, {P(NN)}")
            cur, nxt = nxt, cur
            if q in mids: mids[q]()
        a(f"v_rcp_f32 v{RR}, v{cur}")
        a(f"v_rcp_f32 v{RR+1}, v{cur+1}")
        a(f"v_max3_f32 v{PM2}, v{cur}, v{cur+1}, v{PM2}")
        a(f"v_pk_mul_f32 {P(OUT)}, {P(NN)}, {P(RR)}")
    else:
        for q in range(8):
            a(f"v_pk_add_f32 {P(X+2*q)}, {P(X+2*q)}, s[{sONE}:{sONE+1}]")
        for q in sorted(mids): mids[q]()
        for r in range(16):
            a(f"v_rcp_f32 v{X+r}, v{X+r}")
        a("s_nop 0")
        a(f"v_pk_mul_f32 {P(OUT)}, {P(Dc)}, {P(X)}")
        for q in range(1, 8):
            a(f"v_pk_fma_f32 {P(OUT)}, {P(Dc+2*q)}, {P(X+2*q)}, {P(OUT)}")
    a(f"v_cvt_f64_f32 {P(OUT+2)}, v{OUT+1}")
    a(f"v_cvt_f64_f32 {P(OUT)}, v{OUT}")
    a(f"ds_add_f64 v{fa+1}, {P(OUT+2)} offset:{AGG+off}")
    a(f"ds_add_f64 v{fa}, {P(OUT)} offset:{AGG+off}")

SRD4 = opt("srd4", 0) and not STAMP
def dma4(a, first=False):
    if SRD4:
        if first:
            a(f"s_mov_b32 m0, s{sSLOT}")
            a("s_nop 0")
        for i in range(4):
            r = S_TAB if i == 0 else 84 + 4*i
            a(f"buffer_load_dwordx4 {P(RP+2*i)}, s[{r}:{r+3}], 0 idxen offen offset:{1024*i} lds")
        return
    for i in range(4):
        a(f"s_add_u32 m0, s{sSLOT}, {i*1024}" if i else f"s_mov_b32 m0, s{sSLOT}")
        a("s_nop 0")
        a(f"buffer_load_dwordx4 {P(RP+2*i)}, s[{S_TAB}:{S_TAB+3}], 0 idxen offen lds")

def idxread(a):
    for i in range(4):
        a(f"ds_read_u16 v{RP+2*i}, v{GBA} offset:{4*i}")

def aread(a):
    for k in range(4):
        a(f"ds_read_b128 {v(A+4*k,4)}, v{RA+k}")

def bext(a, fa):
    a(f"ds_read_b32 v{BX0}, v{fa} offset:{BP}")
    a(f"ds_read_b32 v{BX0+1}, v{fa+1} offset:{BP}")
    a(f"ds_read_b32 v{BX1}, v{fa} offset:{BP+256}")
    a(f"ds_read_b32 v{BX1+1}, v{fa+1} offset:{BP+256}")

def dynloop(a, tag, slow):
    L = lambda x: f"K2_{tag}_{x}"
    for par in range(2):
        fa, fan = (FA0, FA1) if par == 0 else (FA1, FA0)
        o = 512*par
        a.label(L(f'LOOP{par}'))
        if STAMP and LOOPST == 1 and not slow:
            for it in range(par, 6, 2):
                a(f"s_cmp_lg_u32 s{sIT}, {it}")
                a(f"s_cbranch_scc1 K2_LS{it}")
                stamp(a, 1+it, True)
                a.label(f"K2_LS{it}")
        a(f"s_sub_u32 s{sREM}, s{sREM}, 1")
        a(f"s_cmp_eq_u32 s{sREM}, 0")
        a(f"s_cbranch_scc1 {L(f'TAIL{par}')}")
        if not slow and opt("lprio", 1):
            a(f"s_add_u32 s{sIT}, s{sIT}, 1")
            for it, p in DPRIO:
                a(f"s_cmp_lg_u32 s{sIT}, {it}")
                a(f"s_cbranch_scc1 {L(f'PR{par}{it}')}")
                a(f"s_setprio {p}")
                a.label(L(f'PR{par}{it}'))
        a(f"ds_read_b32 v{GBE}, v{VE} offset:{o+512}")
        a(f"ds_read2_b32 {P(GNR)}, v{VG} offset0:{o//4} offset1:{o//4+2}")
        a(f"s_cmp_lt_u32 s{sREM}, 2")
        a(f"s_cbranch_scc1 {L(f'NOI{par}')}")
        idxread(a)
        a(f"ds_read_b32 v{GBA}, v{VA} offset:{o+1536}")
        a.label(L(f'NOI{par}'))
        xphase(a, D0, mfma3(D1, 1))
        a("s_waitcnt vmcnt(0) lgkmcnt(0)")
        aread(a)
        a(f"v_add_u32 v{GBE}, v{GBE}, v{CE}")
        a(f"v_add_u32 v{fan}, v{GNR}, v{L8}")
        a(f"v_add_u32 v{fan+1}, v{GNR+1}, v{L8}")
        a(f"v_add_u32 v{GBA}, v{GBA}, v{CA}")
        a(f"ds_read_u16 v{AEXT+2}, v{GBE}")
        bext(a, fan)
        def mid():
            a(f"s_cmp_lt_u32 s{sREM}, 2")
            a(f"s_cbranch_scc1 {L(f'NOD{par}')}")
            a("s_waitcnt lgkmcnt(5)")
            dma4(a)
            a.label(L(f'NOD{par}'))
        fphase(a, D0, 0, slow, fa, [(opt("dmaq", 2), mid)])
        a("s_waitcnt lgkmcnt(2)")
        xphase(a, D1, mfma3(D0, 0))
        if par == 1:
            for r in (VA, VE, VG):
                a(f"v_add_u32 v{r}, 1024, v{r}")
        fphase(a, D1, 256, slow, fa)
        if par == 1:
            a(f"s_branch {L('LOOP0')}")
    for par in range(2):
        fa = FA0 if par == 0 else FA1
        a.label(L(f'TAIL{par}'))
        xphase(a, D0, mfma3(D1, 1))
        fphase(a, D0, 0, slow, fa)
        xphase(a, D1, None)
        fphase(a, D1, 256, slow, fa)
        a("s_branch K2_LOOPDONE")

def count_tiles(a):
    a(f"s_lshl_b32 s3, s{sM}, 2")
    a(f"s_add_u32 s3, s3, s{sW}")
    a(f"s_sub_i32 s{sREM}, s{sT}, s3")
    a(f"s_add_i32 s{sREM}, s{sREM}, 15")
    a(f"s_max_i32 s{sREM}, s{sREM}, 0")
    a(f"s_lshr_b32 s{sREM}, s{sREM}, 4")
    a(f"s_sub_i32 s3, s{sT}, s{sW}")
    a("s_add_i32 s3, s3, 15")
    a("s_max_i32 s3, s3, 0")
    a("s_lshr_b32 s3, s3, 2")
    a(f"s_min_u32 s3, s3, s{sM}")
    a(f"s_mul_i32 s3, s3, s{sDYN}")
    a(f"s_add_u32 s{sREM}, s{sREM}, s3")

def schain(a, Dc, Nr, Pr, first, mids=()):
    mids = dict(mids)
    if first:
        a(f"v_pk_add_f32 {P(PT)}, {P(X)}, s[{sONE}:{sONE+1}]")
        cur, nxt = PT, Pr
        q0 = 1
    else:
        cur, nxt = Pr, PT
        q0 = 0
    for q in range(q0, 8):
        src = Dc if (first and q == 1) else Nr
        a(f"v_pk_fma_f32 {P(Nr)}, {P(src)}, {P(X+2*q)}, {P(src)}")
        a(f"v_pk_fma_f32 {P(nxt)}, {P(cur)}, {P(X+2*q)}, {P(cur)}")
        a(f"v_pk_fma_f32 {P(Nr)}, {P(Dc+2*q)}, {P(cur)}, {P(Nr)}")
        cur, nxt = nxt, cur
        if q in mids: mids[q]()
    assert cur == Pr

def sidx(a, j):
    for i in range(4):
        a(f"ds_read_u16 v{RP+2*i}, v{SA} offset:{32*j + 4*i}")

def static_phase(a):
    K = KS
    if LOOPST == 2: stamp(a, 3, True)
    E2 = opt("e2", 0)
    if E2 == 0:
        dma4(a)
        if LOOPST == 2: stamp(a, 4, True)
        for m in mfma3(D0, 0): a(m)
        a("s_nop 7")
        a("s_nop 3")
    else:
        for m in mfma3(D0, 0): a(m)
        dma4(a)
        if LOOPST == 2: stamp(a, 4, True)
    for j in range(K):
        last = j == K-1
        if opt("lprio", 1) and j in SPRIO:
            a(f"s_setprio {SPRIO[j]}")
        if STAMP and LOOPST == 1 and j < 7: stamp(a, 1+j, True)
        if STAMP and LOOPST == 2 and j < 2: stamp(a, 5+2*j, True)
        if j+2 < K:
            sidx(a, j+2)
        if j == K-3:
            a(f"ds_read_b32 v{GBA}, v{VA}")
            a(f"v_mov_b32 v{GBE}, {QC+8}")
            a(f"ds_read_b32 v{GNR}, v{GBE}")
        if j == K-2:
            a(f"s_cmp_eq_u32 s{sREM}, 0")
            a("s_cbranch_scc1 K2_SN0")
            idxread(a)
            a(f"ds_read_b32 v{GBA}, v{VA} offset:512")
            a.label("K2_SN0")
        if last:
            a(f"s_cmp_eq_u32 s{sREM}, 0")
            a("s_cbranch_scc1 K2_SLAST0")
            a(f"ds_read_b32 v{GBE}, v{VE}")
            a(f"ds_read2_b32 {P(GNR)}, v{VG} offset0:0 offset1:2")
            a(f"s_cmp_lt_u32 s{sREM}, 2")
            a("s_cbranch_scc1 K2_SN1")
            idxread(a)
            a(f"ds_read_b32 v{GBA}, v{VA} offset:1024")
            a.label("K2_SN1")
        xphase(a, D0, mfma3(D1, 1))
        if j == opt("w2", -1) + 1 and j > 0:
            a(f"s_cmp_ge_u32 s{sW}, {(W2L_ + 63)//64}")
            a("s_cbranch_scc1 K2_NOW3")
            a("s_waitcnt vmcnt(1) lgkmcnt(0)")
            a("s_branch K2_NOW4")
            a.label("K2_NOW3")
        a("s_waitcnt vmcnt(0) lgkmcnt(0)")
        if j == opt("w2", -1) + 1 and j > 0: a.label("K2_NOW4")
        if STAMP and LOOPST == 2 and j == 0: stamp(a, 6, True)
        aread(a)
        nsmall = 1
        if j == K-3:
            a(f"v_readfirstlane_b32 s3, v{GNR}")
            a("s_cmp_lt_u32 s3, 4")
            a("s_cbranch_scc1 K2_NOTINIT")
            a.label("K2_INITOK")
        if j >= K-3:
            a(f"v_add_u32 v{GBA}, v{GBA}, v{CA}")
        if not last:
            a(f"ds_read_u16 v{AEXT+2}, v{SE} offset:{32*(j+1)}")
        else:
            a(f"v_add_u32 v{GBE}, v{GBE}, v{CE}")
            a(f"v_add_u32 v{FA0}, v{GNR}, v{L8}")
            a(f"v_add_u32 v{FA0+1}, v{GNR+1}, v{L8}")
            a(f"v_add_u32 v{VG}, 512, v{VG}")
            a(f"ds_read_u16 v{AEXT+2}, v{GBE}")
            bext(a, FA0)
            nsmall = 5
        def mid():
            if j >= K-2:
                a(f"s_cmp_lt_u32 s{sREM}, {j-(K-2)+1}")
                a(f"s_cbranch_scc1 K2_SND{j}")
            a(f"s_waitcnt lgkmcnt({nsmall})")
            dma4(a)
            if j == opt("w2", -1):
                a(f"s_cmp_ge_u32 s{sW}, {(W2L_ + 63)//64}")
                a("s_cbranch_scc1 K2_NOW2")
                a(f"v_lshlrev_b32 v{GBE}, 7, v0")
                a(f"s_mul_i32 s3, s{sWB}, {W2L_*128}")
                a(f"s_add_u32 s3, s3, {SPL*128}")
                a(f"buffer_load_dword v{GBE}, v{GBE}, s[{S_TABR}:{S_TABR+3}], s3 offen")
                a.label("K2_NOW2")
            if j >= K-2: a.label(f"K2_SND{j}")
        schain(a, D0, N0, P0, j == 0, [(opt("dmaq", 2), mid)])
        a("s_waitcnt lgkmcnt(0)")
        xphase(a, D1, mfma3(D0, 0))
        schain(a, D1, N1, P1, j == 0)
        if j in ((1, 3) if KS <= 7 else (1, 3, 5)):
            for r in (N0, P0, N1, P1):
                a(f"v_pk_mul_f32 {P(r)}, {P(r)}, s[{sSC}:{sSC+1}]")
    def sflush():
        for h, (Nr, Pr) in enumerate(((N0, P0), (N1, P1))):
            a(f"v_rcp_f32 v{X}, v{Pr}")
            a(f"v_rcp_f32 v{X+1}, v{Pr+1}")
            a(f"v_max3_f32 v{PM}, v{Pr}, v{Pr+1}, v{PM}")
            a(f"v_pk_mul_f32 {P(Nr)}, {P(Nr)}, {P(X)}")
            a(f"v_cvt_f64_f32 {P(X+2+4*h)}, v{Nr}")
            a(f"v_cvt_f64_f32 {P(X+4+4*h)}, v{Nr+1}")
            a(f"ds_add_f64 v{FA1}, {P(X+2+4*h)} offset:{AGG+256*h}")
            a(f"ds_add_f64 v{FA1+1}, {P(X+4+4*h)} offset:{AGG+256*h}")
        a(f"v_add_f32 v{X}, abs(v{N0}), abs(v{N0+1})")
        a(f"v_add_f32 v{X+1}, abs(v{N1}), abs(v{N1+1})")
        a(f"v_add_f32 v{X}, v{X}, v{X+1}")
        a(f"v_mul_f32 v{X}, 0, v{X}")
        a(f"v_add_f32 v{PM}, v{PM}, v{X}")
    sflush()
    a("s_branch K2_F_LOOP0")
    a.label("K2_SLAST0")
    xphase(a, D0, mfma3(D1, 1))
    schain(a, D0, N0, P0, False)
    xphase(a, D1, None)
    schain(a, D1, N1, P1, False)
    sflush()
    a("s_branch K2_LOOPDONE")

def first_addr(a):
    a("v_lshrrev_b32 v8, 4, v1")
    a(f"v_lshl_add_u32 v8, s{sW}, 2, v8")
    a(f"v_mul_u32_u24 v9, {BLK}, v8")
    a("v_lshlrev_b32 v11, 1, v1")
    a("v_and_b32 v11, 16, v11")
    a(f"v_add3_u32 v{SA}, v9, v11, s{sRECS}")
    a("v_bfe_u32 v8, v1, 4, 1")
    a("v_lshrrev_b32 v9, 5, v1")
    a("v_lshl_or_b32 v8, v9, 2, v8")
    a("v_and_b32 v9, 7, v1")
    a("v_xor_b32 v8, v8, v9")
    a(f"v_lshlrev_b32 v{RP+1}, 4, v8")
    a(f"v_xor_b32 v{RP+3}, 32, v{RP+1}")
    a(f"v_mov_b32 v{RP+5}, v{RP+1}")
    a(f"v_mov_b32 v{RP+7}, v{RP+3}")

def const_read2(a):
    a("v_lshlrev_b32 v3, 3, v1")
    a(f"v_add_u32 v3, {CONSTL + 5120}, v3")
    a(f"ds_read_b64 {P(GNR)}, v3 offset:1536")
    a(f"ds_read_b128 {v(VA,4)}, v{CADR} offset:3072")
    a(f"ds_read_b64 {P(CA)}, v3 offset:2048")
    a(f"ds_read_b128 {v(RA,4)}, v{CADR} offset:2048")
    a(f"ds_read_b128 {v(I0,4)}, v{CADR}")
    a(f"ds_read_b128 {v(I1,4)}, v{CADR} offset:1024")
    a(f"ds_read_b64 {P(AEXT)}, v3")
    a(f"ds_read_b64 {P(BX0+2)}, v3 offset:512")
    a(f"ds_read_b64 {P(BX1+2)}, v3 offset:1024")
    a(f"v_mov_b32 v{AEXT+3}, 0")

CHK = 36
NR = 12
def cnt_init(a, first):
    for r in range(4): a(f"v_mov_b32 v{4+r}, 0")
    a("v_mul_u32_u24 v3, 12, v1")
    a(f"v_mul_u32_u24 v8, {CAPN}, v1")
    a(f"v_add_u32 v8, {RECS//4}, v8")
    a("s_mov_b32 exec_lo, -1")
    a(f"s_mov_b32 exec_hi, {hex((1 << 18) - 1)}")
    a(f"ds_write2_b32 v3, v4, v8 offset0:{CNT//4} offset1:{CNT//4+1}")
    a(f"ds_write_b32 v3, v4 offset:{CNT+8}")
    if first == 1:
        a(f"ds_write_b128 v4, v[4:7] offset:{QC}")
    if first == 1:
        a(f"v_mov_b32 v3, {FLG}")
        a("ds_write_b128 v3, v[4:7]")
    a("s_mov_b64 exec, -1")

def prefill(a, first):
    a("v_subrev_u32 v2, 768, v0")
    a("v_lshlrev_b32 v2, 4, v2")
    for r in range(4): a(f"v_mov_b32 v{4+r}, 0xffff")
    for i in range(5):
        a(f"ds_write_b128 v2, v[4:7] offset:{RECS + 4096*i}") if RECS + 4096*i < 65536 else None
        if RECS + 4096*i >= 65536:
            if RECS + 4096*(i-1) < 65536:
                a(f"v_add_u32 v3, {RECS}, v2")
            a(f"ds_write_b128 v3, v[4:7] offset:{4096*i}")
    a(f"v_mov_b32 v8, {50*BLK - 5*4096}")
    a("v_cmpx_lt_u32 vcc, v2, v8")
    a(f"ds_write_b128 v3, v[4:7] offset:{4096*5}")
    a("s_mov_b64 exec, -1")
    for r in range(4): a(f"v_mov_b32 v{4+r}, 0")
    if first == 2:
        for i in range(6):
            a(f"ds_write_b128 v2, v[4:7] offset:{AGG + 4096*i}")
        a(f"v_mov_b32 v8, {50*RS - 6*4096}")
        a("v_cmpx_lt_u32 vcc, v2, v8")
        a(f"ds_write_b128 v2, v[4:7] offset:{AGG + 4096*6}")
        a("s_mov_b64 exec, -1")

def gen_k2(a):
    CURK[0] = 2
    WARM = opt("warm", 1)
    FB = 96
    a.label("k2_kernel")
    a(f"s_cmp_ge_u32 s2, {NB}")
    a("s_cbranch_scc1 K2_END")
    a("s_load_dwordx2 s[14:15], s[0:1], 64")
    a("s_load_dwordx2 s[4:5], s[0:1], 0")
    a("s_load_dwordx2 s[12:13], s[0:1], 48")
    stamp_start(a)
    stamp(a, 0)
    prio(a, 3)
    if opt("rot", 1):
        a("v_add_u32 v0, 768, v0")
        a("v_and_b32 v0, 1023, v0")
    a("v_lshrrev_b32 v2, 6, v0")
    a("v_and_b32 v1, 63, v0")
    a(f"v_readfirstlane_b32 s{sW}, v2")
    a("s_and_b32 s3, s2, 7")
    a("s_lshl_b32 s3, s3, 5")
    a(f"s_lshr_b32 s{sB}, s2, 3")
    a(f"s_add_u32 s{sB}, s{sB}, s3")
    a("v_mul_u32_u24 v12, 0x5556, v0")
    a("v_lshrrev_b32 v12, 16, v12")
    if opt("toff", 1):
        a("v_lshlrev_b32 v3, 2, v12")
        a("v_and_b32 v4, 31, v12")
        a("v_lshrrev_b32 v12, 5, v12")
        a("v_lshl_add_u32 v12, v4, 3, v12")
        a(f"s_lshl_b32 s3, s{sB}, 10")
        a(f"s_mov_b32 s{S_OFF+2}, {NB*1024}")
    else:
        a("v_lshlrev_b32 v3, 10, v12")
        a(f"s_lshl_b32 s3, s{sB}, 2")
        a(f"s_mov_b32 s{S_OFF+2}, {NP*1024}")
    a(f"s_mov_b32 s{S_OFF+3}, 0x00020000")
    a(f"s_cmp_ge_u32 s{sW}, 12")
    a(f"s_cselect_b32 s{sDYN}, 1, 0")
    a("s_cbranch_scc1 K2_HELP")
    def setup():
        srd(a, S_TABR, 14, 15, N*128, WS_TAB)
        a(f"s_mov_b32 s{S_TAB}, s{S_TABR}")
        a(f"s_or_b32 s{S_TAB+1}, s{S_TABR+1}, {128 << 16}")
        a(f"s_mov_b32 s{S_TAB+2}, {N}")
        a(f"s_mov_b32 s{S_TAB+3}, 0x00020000")
        if SRD4:
            for i in range(1, 4):
                r = 84 + 4*i
                a(f"s_sub_u32 s{r}, s{S_TAB}, {1024*i}")
                a(f"s_subb_u32 s{r+1}, s{S_TAB+1}, 0")
                a(f"s_mov_b32 s{r+2}, {N}")
                a(f"s_mov_b32 s{r+3}, 0x00020000")
        srd(a, S_OUT, 12, 13, N*128)
        srd(a, S_REC, 14, 15, NP*RSTR, WS_REC)
        a(f"s_mov_b32 s{sSC}, 0x2d800000")
        a(f"s_mov_b32 s{sSC+1}, 0x2d800000")
        a(f"s_movk_i32 s{sCAPN}, {CAPN}")
        a(f"s_mov_b32 s{sRECS}, {RECS}")
        a(f"s_mov_b32 s{sMODE}, 0")
        a(f"s_mov_b32 s{sMODE2}, 0")
        a(f"s_mov_b32 s{sCHUNK}, 0")
        a(f"s_mov_b32 s{sK}, {KS}")
        a(f"s_mov_b32 s{sM}, {MD}")
        a(f"s_mov_b32 s{sONE}, 1.0")
        a(f"s_mov_b32 s{sONE+1}, 1.0")
        a(f"s_lshl_b32 s{sSLOT}, s{sW}, 12")
        a(f"s_add_u32 s{sSLOT}, s{sSLOT}, {STG}")
        a(f"s_mul_i32 s{sNODE0}, s{sB}, {NPB}")
    def rec_prep(first):
        a("v_mul_u32_u24 v3, 0x5556, v0")
        a("v_lshrrev_b32 v4, 16, v3")
        if not first:
            if opt("toff", 1):
                a("v_and_b32 v3, 31, v4")
                a("v_lshrrev_b32 v12, 5, v4")
                a("v_lshl_add_u32 v12, v3, 3, v12")
            else:
                a("v_mov_b32 v12, v4")
        a("v_mul_u32_u24 v3, 3, v4")
        a("v_sub_u32 v3, v0, v3")
        a("v_lshlrev_b32 v3, 2, v3")
        if not first:
            a(f"v_add_u32 v3, s{sCHUNK}, v3")
        a(f"v_mul_u32_u24 v4, {RSTR//4}, v12")
        if first and opt("toff", 1):
            a(f"v_cmp_gt_u32 s[86:87], {hex(NP)}, v12") if False else None
            a(f"v_mov_b32 v6, {NP}")
            a("v_cmp_lt_u32 s[86:87], v12, v6")
    VM = lambda j: f"s[{sVAL+2*j}:{sVAL+2*j+1}]"
    def rec_masks():
        a(f"v_lshrrev_b32 v5, 16, v{OFFW}")
        a("v_sub_u32 v2, v5, v3")
        for j in (0, 4, 8):
            a(f"v_cmp_lt_i32 {VM(j)}, {12*(j>>2)+(j&3)}, v2")
    def rec_masks2():
        for j in range(NR):
            if j & 3: a(f"v_cmp_lt_i32 {VM(j)}, {12*(j>>2)+(j&3)}, v2")
    def orm(r, dst):
        a(f"s_or_b64 s[84:85], {VM(4*r)}, {VM(4*r+1)}")
        a(f"s_or_b64 s[84:85], s[84:85], {VM(4*r+2)}")
        a(f"s_or_b64 {dst}, s[84:85], {VM(4*r+3)}")
    def rec_loads(first, lab):
        a(f"v_and_b32 v6, 0xffff, v{OFFW}")
        if not first:
            a(f"v_lshrrev_b32 v5, 16, v{OFFW}")
        a("v_add_u32 v4, v6, v4")
        a("v_add_lshl_u32 v5, v4, v5, 2")
        a("v_add_lshl_u32 v4, v4, v3, 2")
        a("v_add_u32 v5, v5, v3")
        for r in range(3):
            if first: a(f"s_or_b64 exec, {VM(4*r)}, {VM(4*r)}")
            else: orm(r, "exec")
            if r == 2: a(f"s_cbranch_scc0 {lab}")
            a(f"buffer_load_dword v{44+r}, v5, s[{S_REC}:{S_REC+3}], 0 offen offset:{12*r}")
            a(f"buffer_load_dwordx4 v[{32+4*r}:{35+4*r}], v4, s[{S_REC}:{S_REC+3}], 0 offen offset:{48*r}")
        a.label(lab)
        a("s_mov_b64 exec, -1")
    def fixups(static):
        a(f"s_lshl_b32 s3, s{sW}, 5")
        if static:
            a(f"s_lshl_b32 s4, s{sM}, 9")
            a("s_add_u32 s3, s3, s4")
        for r in (VA, VE, VG):
            a(f"v_add_u32 v{r}, s3, v{r}")
        for k in range(4):
            a(f"v_add_u32 v{RA+k}, s{sSLOT}, v{RA+k}")
    def qpoll(lab, off=0):
        a(f"v_mov_b32 v5, {QC+off}")
        a.label(lab)
        a("ds_read_b32 v8, v5")
        a("s_waitcnt lgkmcnt(0)")
        a("v_readfirstlane_b32 s3, v8")
        a("s_cmp_lt_u32 s3, 4")
        a(f"s_cbranch_scc1 {lab}")
    a("s_waitcnt lgkmcnt(0)")
    a(f"s_add_u32 s{S_OFF}, s14, {WS_OFF}")
    a(f"s_addc_u32 s{S_OFF+1}, s15, 0")
    a(f"buffer_load_dword v{OFFW}, v3, s[{S_OFF}:{S_OFF+3}], s3 offen")
    if opt("b0e", 1): a("s_barrier")
    srd(a, S_REC, 14, 15, NP*RSTR, WS_REC)
    rec_prep(True)
    if not opt("b0e", 1): a("s_barrier")
    a("s_waitcnt vmcnt(0)")
    if not opt("stb2", 0): stamp(a, 2)
    if opt("toff", 1):
        a("s_nop 0")
        a(f"v_cndmask_b32 v{OFFW}, 0, v{OFFW}, s[86:87]")
    rec_masks()
    rec_loads(True, "K2_RL1")
    if LOOPST == 3: stamp(a, 1, True)
    a(f"s_mov_b32 s{sCHUNK}, 0")
    setup()
    a(f"s_lshr_b32 s{sWB}, s2, 3")
    rec_masks2()
    first_addr(a)
    a(f"v_mov_b32 v{PM}, 0")
    a(f"v_mov_b32 v{PM2}, 0")
    a(f"s_mul_i32 s3, s{sWB}, {W1L_*128}")
    a("v_lshlrev_b32 v17, 7, v0")
    a("v_add_u32 v17, s3, v17")
    a(f"v_lshrrev_b32 v16, 16, v{OFFW}")
    a(f"v_cmp_lt_u32 vcc, {CHK}, v16")
    a("s_nop 1")
    a("s_cbranch_vccz K2_PASS")
    a("s_mov_b64 exec, vcc")
    a(f"v_mov_b32 v3, {FLG}")
    a("ds_max_u32 v3, v16")
    a("s_mov_b64 exec, -1")
    a.label("K2_PASS")
    a("v_mov_b32 v2, 1")
    a("v_min_u32 v18, 48, v1")
    a("v_mul_u32_u24 v19, 12, v18")
    a(f"v_mul_u32_u24 v18, {CAPN}, v18")
    a(f"v_add_u32 v18, {RECS//4 + CAPN}, v18")
    a("v_lshlrev_b32 v3, 4, v1")
    a(f"v_add_u32 v{CADR}, {CONSTL}, v3")
    qpoll("K2_QPOLL0", 4)
    if LOOPST == 3: stamp(a, 2, True)
    const_read2(a)
    a(f"s_mul_i32 s84, s{sW}, {4*BLK}")
    a(f"s_mul_i32 s85, s{sW}, {4*RS}")
    a("s_waitcnt lgkmcnt(0)")
    a(f"v_add_u32 v{SE}, s84, v{GNR}")
    a(f"v_add_u32 v{FA1}, s85, v{GNR+1}")
    a(f"v_add_u32 v{FA1+1}, {RS}, v{FA1}")
    fixups(True)
    orm(2, "s[84:85]")
    a(f"s_cselect_b32 s{sTN}, 1, 0")
    def warm1():
        a(f"s_cmp_ge_u32 s{sW}, {(W1L_ + 63)//64}")
        a("s_cbranch_scc1 K2_NOWARM")
        a(f"buffer_load_dword v{GBE}, v17, s[{S_TABR}:{S_TABR+3}], 0 offen")
        a.label("K2_NOWARM")
    if LOOPST == 3: stamp(a, 3, True)
    a("s_waitcnt vmcnt(0)")
    if LOOPST == 3: stamp(a, 4, True)
    stamp(a, 3)
    if WARM == 2:
        warm1()
        a(f"s_cmp_lg_u32 s{sTN}, 0")
    for r in range(3):
        if r == 2:
            a(f"s_cbranch_scc0 K2_RK8")
        for j in range(4*r, 4*r+4):
            a(f"v_lshlrev_b32_sdwa v{48+j}, 2, v{44+r} dst_sel:DWORD dst_unused:UNUSED_PAD src0_sel:DWORD src1_sel:BYTE_{j&3}")
        for j in range(4*r, 4*r+4):
            a(f"s_mov_b64 exec, {VM(j)}")
            a(f"ds_add_rtn_u32 v{60+j}, v{48+j}, v2 offset:{CNT}")
        a("s_mov_b64 exec, -1")
    a.label("K2_RK8")
    if WARM == 1:
        warm1()
    a("s_waitcnt lgkmcnt(0)")
    if LOOPST == 3: stamp(a, 5, True)
    a("s_barrier")
    if LOOPST == 3: stamp(a, 6, True)
    stamp(a, 4)
    a(f"ds_read2_b32 v[8:9], v19 offset0:{CNT//4+1} offset1:{CNT//4+2}")
    for j in range(NR):
        if j == 8:
            a(f"s_cmp_eq_u32 s{sTN}, 0")
            a("s_cbranch_scc1 K2_PL0")
        if j >= 4: a(f"s_mov_b64 exec, {VM(j)}")
        a(f"ds_read_b32 v{20+j}, v{48+j} offset:{CNT-4}")
    a.label("K2_PL0")
    a("s_mov_b64 exec, -1")
    a("s_waitcnt lgkmcnt(0)")
    if LOOPST == 3: stamp(a, 7, True)
    a("v_add_u32 v8, v8, v9")
    a("v_cmp_gt_u32 vcc, v8, v18")
    a("s_nop 1")
    a("s_cbranch_vccnz K2_CAREFUL")
    for j in range(NR):
        if j == 8:
            a(f"s_cbranch_scc1 K2_PL4")
        a(f"s_mov_b64 exec, {VM(j)}")
        a(f"v_add_lshl_u32 v{48+j}, v{60+j}, v{20+j}, 2")
        a(f"ds_write_b32 v{48+j}, v{32+j}")
    a.label("K2_PL4")
    a("s_mov_b64 exec, -1")
    a("s_waitcnt lgkmcnt(0)")
    if LOOPST == 3: stamp(a, 8, True)
    if opt("stb2", 0): stamp(a, 2)
    a("s_barrier")
    stamp(a, 5)
    a(f"s_cmp_lg_u32 s{sMODE}, 0")
    a("s_cbranch_scc1 K2_SLOWHEAD")
    sidx(a, 0)
    a("s_waitcnt lgkmcnt(0)")
    dma4(a, True)
    stamp(a, 6)
    if LOOPST == 2: stamp(a, 1, True)
    sidx(a, 1)
    a(f"v_mov_b32 v2, {FLG+8}")
    a("ds_read_b64 v[4:5], v2")
    a(f"ds_read_u16 v{AEXT+2}, v{SE}")
    bext(a, FA1)
    a("s_waitcnt lgkmcnt(5)")
    a(f"v_readfirstlane_b32 s{sT}, v4")
    a(f"v_readfirstlane_b32 s{sOVF}, v5")
    count_tiles(a)
    a(f"s_mov_b32 s{sIT}, 100")
    prio(a, SP0)
    a("s_waitcnt vmcnt(0)")
    if LOOPST == 2: stamp(a, 2, True)
    stamp(a, 1)
    aread(a)
    a("s_waitcnt lgkmcnt(0)")
    static_phase(a)
    a.label("K2_HELP")
    a(f"s_sub_u32 s{sNT}, s{sW}, 12")
    a("v_lshlrev_b32 v13, 4, v1")
    a("v_lshrrev_b32 v5, 3, v1")
    a("v_and_b32 v6, 7, v1")
    a("v_xor_b32 v6, v6, v5")
    a("v_lshlrev_b32 v6, 4, v6")
    a("v_lshl_add_u32 v6, v5, 7, v6")
    a(f"s_mul_i32 s{sNODE0}, s{sB}, {NPB}")
    a(f"s_lshl_b32 s3, s{sNT}, 11")
    a(f"s_lshl_b32 s84, s{sNODE0}, 7")
    a("s_add_u32 s84, s84, s3")
    a("v_add_u32 v6, s84, v6")
    a("v_mov_b32 v12, v6")
    cnt_init(a, 1)
    a(f"s_add_u32 m0, s3, {CONSTL}")
    a("s_waitcnt lgkmcnt(0)")
    if not opt("hd", 1): a("s_barrier")
    srd(a, S_CON, 14, 15, 8192*4, WS_CONST)
    a(f"s_cmp_eq_u32 s{sNT}, 3")
    a(f"buffer_load_dwordx4 v13, s[{S_CON}:{S_CON+3}], s3 offen lds")
    a("s_cselect_b32 exec_hi, 0, -1")
    a(f"buffer_load_dwordx4 v13, s[{S_CON}:{S_CON+3}], s3 offen offset:1024 lds")
    a("s_mov_b64 exec, -1")
    a(f"s_add_u32 m0, s3, {PST + 16384}")
    srd(a, S_X, 4, 5, N*128)
    a(f"buffer_load_dwordx4 v12, s[{S_X}:{S_X+3}], 0 offen lds")
    a(f"buffer_load_dwordx4 v12, s[{S_X}:{S_X+3}], 0 offen offset:1024 lds")
    a(f"s_add_u32 m0, s3, {PST}")
    a("s_add_u32 s4, s3, 8192")
    for i in range(2):
        a(f"buffer_load_dwordx4 v13, s[{S_CON}:{S_CON+3}], s4 offen offset:{1024*i} lds")
    if opt("hd", 1): a("s_barrier")
    setup()
    if opt("pf", 1): prefill(a, 1)
    def hprep():
        first_addr(a)
        for i in range(4): a(f"v_mov_b32 v{RP+2*i}, -1")
        a("v_min_u32 v12, 48, v1")
        a("v_mul_u32_u24 v13, 12, v12")
        a("v_cmp_gt_u32 s[84:85], 48, v1")
        a(f"v_mul_u32_u24 v27, {RS}, v12")
        a(f"v_mul_u32_u24 v26, {BLK}, v12")
        a("v_lshrrev_b32 v28, 2, v26")
        a(f"v_add_u32 v28, {RECS//4}, v28")
        a("v_subrev_u32 v29, 48, v1")
        a(f"v_mov_b32 v11, s{sK}")
        a("v_cndmask_b32 v12, v29, v11, s[84:85]")
        a("v_cndmask_b32 v24, 1, 14, s[84:85]")
        a("v_lshl_add_u32 v26, v12, 5, v26")
        a(f"v_add_u32 v26, s{sRECS}, v26")
        a(f"s_lshl_b32 s60, s{sM}, 4")
        a(f"s_mul_i32 s61, s{sM}, 384")
        a(f"s_add_u32 s61, s61, {GT}")
    def tile_addrs():
        a("v_lshrrev_b32 v7, 4, v1")
        a("v_and_b32 v25, 15, v1")
        a(f"s_lshl_b32 s3, s{sNT}, 4")
        a("v_add_u32 v25, s3, v25")
        a(f"v_mul_u32_u24 v6, {RS}, v25")
        a("v_lshl_add_u32 v6, v7, 5, v6")
        a("v_mul_u32_u24 v10, 12, v25")
        a("v_cmp_gt_u32 s[86:87], 50, v25")
        a("v_lshlrev_b32 v3, 4, v1")
        a(f"v_add_u32 v{CADR}, {CONSTL}, v3")
    hprep()
    a(f"v_mov_b32 v5, {QC+4}")
    a("v_mov_b32 v8, 1")
    a("s_waitcnt vmcnt(4)")
    a("s_mov_b64 exec, 1")
    a("ds_add_u32 v5, v8")
    a("s_mov_b64 exec, -1")
    if WARM == 4:
        a(f"s_lshr_b32 s3, s2, 3")
        a(f"s_mul_i32 s3, s3, {W1L_*128}")
        a("v_subrev_u32 v30, 768, v0")
        a(f"v_min_u32 v30, {W1L_-1}, v30")
        a("v_lshlrev_b32 v30, 7, v30")
        a(f"buffer_load_dword v31, v30, s[{S_TABR}:{S_TABR+3}], s3 offen")
    if LOOPST == 3: stamp(a, 1, True)
    if not opt("pf", 1): prefill(a, 1)
    if LOOPST == 3: stamp(a, 2, True)
    tile_addrs()
    a("v_and_b32 v2, 7, v1")
    a("v_xor_b32 v2, v2, v7")
    a("v_lshlrev_b32 v2, 4, v2")
    a("v_lshl_add_u32 v2, v25, 7, v2")
    a(f"v_add_u32 v2, {PST + 16384}, v2")
    a("v_xor_b32 v4, 64, v2")
    a(f"v_add_u32 v3, {PST}, v3")
    a(f"v_mov_b32 v5, {QC}")
    a("v_mov_b32 v8, 1")
    a(f"s_waitcnt vmcnt({1 if WARM == 4 else 0})")
    if not opt("stb2", 0): stamp(a, 2)
    a("s_mov_b64 exec, 1")
    a("ds_add_u32 v5, v8")
    a("s_mov_b64 exec, -1")
    def hwarm():
        a(f"s_lshr_b32 s3, s2, 3")
        a(f"s_mul_i32 s3, s3, {W1L_*128}")
        a("v_subrev_u32 v30, 768, v0")
        a(f"v_min_u32 v30, {W1L_-1}, v30")
        a("v_lshlrev_b32 v30, 7, v30")
        a(f"buffer_load_dword v31, v30, s[{S_TABR}:{S_TABR+3}], s3 offen")
    if LOOPST == 3: stamp(a, 3, True)
    if WARM == 3: hwarm()
    qpoll("K2_QPOLL")
    if LOOPST == 3: stamp(a, 4, True)
    a("ds_read_b128 v[16:19], v2")
    a("ds_read_b128 v[20:23], v4")
    for q in range(8):
        a(f"ds_read_b128 v[{32+4*q}:{35+4*q}], v3 offset:{1024*q}")
    a(f"s_mov_b32 s84, {NLOG2E:#x}")
    a(f"s_mov_b32 s85, {NLOG2E:#x}")
    a("s_mov_b32 s3, 0x05040100")
    a("s_mov_b32 s4, 0x07060302")
    a("s_waitcnt lgkmcnt(0)")
    for ks in range(2):
        for ft in range(4):
            D = 64 + 4*ft; W = 32 + 8*ft + 4*ks
            a(f"v_mfma_f32_16x16x32_bf16 v[{D}:{D+3}], v[{W}:{W+3}], v[{16+4*ks}:{19+4*ks}], " + ("0" if ks == 0 else f"v[{D}:{D+3}]"))
    a("s_nop 4")
    for q in range(8):
        if q == 6: a("s_nop 0")
        a(f"v_pk_mul_f32 {P(64+2*q)}, {P(64+2*q)}, s[84:85]")
    NLATE = opt("late", 2)
    def split(fts):
        a("s_mov_b32 s3, 0x05040100")
        a("s_mov_b32 s4, 0x07060302")
        for ft in fts:
            for h in range(2):
                B = 64 + 4*ft + 2*h; O = 32 + 8*ft + 4*h
                a(f"v_cvt_pk_bf16_f32 v30, v{B}, v{B+1}")
                a("v_lshlrev_b32 v16, 16, v30")
                a("v_and_b32 v17, 0xffff0000, v30")
                a(f"v_pk_add_f32 v[16:17], {P(B)}, v[16:17] neg_lo:[0,1] neg_hi:[0,1]")
                a("v_cvt_pk_bf16_f32 v16, v16, v17")
                a(f"v_perm_b32 v{O}, v16, v30, s3")
                a(f"v_perm_b32 v{O+2}, v16, v30, s4")
            a("s_mov_b64 exec, s[86:87]")
            a(f"ds_write_b128 v6, v[{32+8*ft}:{35+8*ft}] offset:{BP + 128*ft}")
            a(f"ds_write_b128 v6, v[{36+8*ft}:{39+8*ft}] offset:{BP + 128*ft + 16}")
            a("s_mov_b64 exec, -1")
    split(range(4 - NLATE))
    a(f"v_mov_b32 v{PM}, 0")
    a(f"v_mov_b32 v{PM2}, 0")
    a.label("K2_HPASS")
    a.label("K2_HPASS2")
    a("s_waitcnt lgkmcnt(0)")
    stamp(a, 3)
    if LOOPST == 3: stamp(a, 5, True)
    a("s_barrier")
    if LOOPST == 3: stamp(a, 6, True)
    stamp(a, 4)
    a(f"ds_read2_b32 v[18:19], v13 offset0:{CNT//4+1} offset1:{CNT//4+2}")
    a(f"ds_read2_b32 v[22:23], v10 offset0:{CNT//4+1} offset1:{CNT//4+2}")
    a("s_waitcnt lgkmcnt(1)")
    a("v_add_u32 v8, v18, v19")
    a("v_sub_u32 v8, v8, v28")
    a(f"v_cmp_lt_u32 vcc, s{sCAPN}, v8")
    a(f"v_min_u32 v8, s{sCAPN}, v8")
    a("v_add_u32 v8, 7, v8")
    a("v_lshrrev_b32 v8, 3, v8")
    a("v_sub_u32 v8, v8, v12 clamp")
    a("v_min_u32 v8, v8, v24")
    a("v_mov_b32 v11, v8")
    a("s_cmp_lg_u64 vcc, 0")
    a(f"s_cselect_b32 s{sOVF}, 1, 0")
    scan64(a, 11)
    a(f"v_readlane_b32 s{sT}, v11, 63")
    a("v_sub_u32 v11, v11, v8")
    a(f"v_add_u32 v11, s{sNT}, v11")
    a(f"s_lshl_b32 s3, s{sNT}, 5")
    a("v_add_u32 v26, s3, v26")
    a(f"v_subrev_u32 v8, s{sNT}, v8")
    def pos():
        a("v_lshlrev_b32 v18, 3, v11")
        a("v_and_b32 v19, 0x78, v18")
        a("v_lshrrev_b32 v20, 4, v11")
        a("v_lshl_add_u32 v19, v20, 9, v19")
        a("v_cmp_gt_u32 s[84:85], s60, v11")
        a(f"v_add_u32 v19, {GT + 384}, v19")
        a("v_add_u32 v18, s61, v18")
        a("v_cndmask_b32 v18, v18, v19, s[84:85]")
    a("v_cmpx_lt_i32 vcc, 0, v8")
    a("s_nop 1")
    a("s_cbranch_execz K2_BLD1")
    a.label("K2_BLD0")
    pos()
    a("ds_write_b64 v18, v[26:27]")
    a("v_add_u32 v26, 128, v26")
    a("v_add_u32 v11, 4, v11")
    a("v_subrev_u32 v8, 4, v8")
    a("v_cmpx_lt_i32 vcc, 0, v8")
    a("s_nop 1")
    a("s_cbranch_execnz K2_BLD0")
    a.label("K2_BLD1")
    if LOOPST == 3: stamp(a, 7, True)
    a("s_mov_b64 exec, -1")
    a(f"s_add_u32 s3, s{sT}, s{sNT}")
    a("v_mov_b32 v11, s3")
    a(f"v_mov_b32 v26, {RECS + NPB*BLK}")
    a(f"v_mov_b32 v27, {NPB*RS}")
    pos()
    a("ds_write_b64 v18, v[26:27]")
    a(f"s_add_u32 s{sT}, s{sT}, 3")
    a(f"s_lshr_b32 s{sT}, s{sT}, 2")
    a(f"v_mov_b32 v18, s{sT}")
    a(f"v_mov_b32 v19, s{sOVF}")
    a(f"v_mov_b32 v20, {FLG + 8}")
    a("ds_write_b64 v20, v[18:19]")
    count_tiles(a)
    if NLATE:
        a(f"s_cmp_lg_u32 s{sMODE2}, 0")
        a("s_cbranch_scc1 K2_NOLATE")
        split(range(4 - NLATE, 4))
        a.label("K2_NOLATE")
    a("s_waitcnt lgkmcnt(0)")
    if LOOPST == 3: stamp(a, 8, True)
    if opt("stb2", 0): stamp(a, 2)
    a("s_barrier")
    stamp(a, 5)
    a.label("K2_DYNHEAD")
    def corr():
        a(f"s_cmp_eq_u32 s{sDYN}, 0")
        a("s_cbranch_scc1 K2_NOCORR")
        if opt("e1", 3): a("s_setprio 0")
        if opt("e3", 0) == 0: const_read2(a)
        a("v_add_u32 v22, v22, v23")
        a(f"v_mul_u32_u24 v23, {CAPN}, v25")
        a("v_sub_u32 v22, v22, v23")
        a("v_cmp_gt_u32 s[84:85], 48, v25")
        a(f"v_subrev_u32 v22, {RECS//4}, v22")
        a(f"s_lshl_b32 s3, s{sK}, 3")
        a("v_mov_b32 v23, s3")
        a(f"v_min_u32 v22, s{sCAPN}, v22")
        a("v_add_u32 v21, 7, v22")
        a("v_cndmask_b32 v23, 0, v23, s[84:85]")
        a("v_and_b32 v21, -8, v21")
        a("v_max_u32 v21, v21, v23")
        a("v_sub_u32 v21, v22, v21")
        a("v_cvt_f32_i32 v21, v21")
        for r in range(16):
            a(f"v_exp_f32 v{32+r}, v{64+r}")
        for q in range(8):
            a(f"v_pk_add_f32 {P(32+2*q)}, {P(32+2*q)}, s[{sONE}:{sONE+1}]")
        for r in range(16):
            a(f"v_rcp_f32 v{32+r}, v{32+r}")
        for q in range(8):
            a(f"v_pk_mul_f32 {P(64+2*q)}, {P(64+2*q)}, {P(32+2*q)}")
        a("s_mov_b64 exec, s[86:87]")
        for q in range(8):
            a(f"v_pk_mul_f32 {P(64+2*q)}, {P(64+2*q)}, v[20:21] op_sel:[0,1] op_sel_hi:[1,1]")
        for r in range(16):
            a(f"v_cvt_f64_f32 v[{32+2*r}:{33+2*r}], v{64+r}")
        if opt("e3", 0) == 1: const_read2(a)
        a(f"s_cmp_lg_u32 s{sMODE2}, 0")
        a("s_cbranch_scc1 K2_CORRADD")
        for q in range(8):
            a(f"ds_write_b128 v6, v[{32+4*q}:{35+4*q}] offset:{AGG + 128*(q>>1) + 16*(q&1)}")
        a(f"v_mov_b32 v5, {QC+8}")
        a("v_mov_b32 v8, 1")
        a("s_mov_b64 exec, 1")
        a("ds_add_u32 v5, v8")
        a.label("K2_CORRDONE")
        a("s_mov_b64 exec, -1")
        a("s_waitcnt lgkmcnt(9)")
        fixups(False)
        if opt("e1", 3): a("s_setprio %d" % opt("e1", 3))
        a.label("K2_NOCORR")
    corr()
    a(f"s_mov_b32 s{sIT}, 0")
    a(f"s_cmp_eq_u32 s{sREM}, 0")
    a("s_cbranch_scc1 K2_DYN0")
    a(f"ds_read_b32 v{GBA}, v{VA}")
    a(f"ds_read_b32 v{GBE}, v{VE}")
    a(f"ds_read2_b32 {P(GNR)}, v{VG} offset0:0 offset1:2")
    a("s_waitcnt lgkmcnt(2)")
    a(f"v_add_u32 v{GBA}, v{GBA}, v{CA}")
    idxread(a)
    a(f"ds_read_b32 v{GBA}, v{VA} offset:512")
    a("s_waitcnt lgkmcnt(1)")
    dma4(a, True)
    stamp(a, 6)
    a(f"v_add_u32 v{GBE}, v{GBE}, v{CE}")
    a(f"v_add_u32 v{FA0}, v{GNR}, v{L8}")
    a(f"v_add_u32 v{FA0+1}, v{GNR+1}, v{L8}")
    a(f"v_add_u32 v{VG}, 512, v{VG}")
    a(f"ds_read_u16 v{AEXT+2}, v{GBE}")
    bext(a, FA0)
    a("s_waitcnt lgkmcnt(5)")
    a(f"v_add_u32 v{GBA}, v{GBA}, v{CA}")
    a(f"s_cmp_lt_u32 s{sREM}, 2")
    a("s_cbranch_scc1 K2_DYN0")
    idxread(a)
    a(f"ds_read_b32 v{GBA}, v{VA} offset:1024")
    a.label("K2_DYN0")
    pass
    a(f"s_cmp_eq_u32 s{sREM}, 0")
    a("s_cbranch_scc1 K2_LOOPDONE")
    a("s_waitcnt vmcnt(0)")
    stamp(a, 1)
    aread(a)
    a("s_waitcnt lgkmcnt(0)")
    qpoll("K2_QPOLL3", 8)
    a(f"s_cmp_lt_u32 s{sREM}, 2")
    a("s_cbranch_scc1 K2_DYN1")
    dma4(a)
    a.label("K2_DYN1")
    for m in mfma3(D0, 0): a(m)
    a(f"v_add_u32 v{GBA}, v{GBA}, v{CA}")
    a(f"s_cmp_lg_u32 s{sMODE}, 0")
    a("s_nop 7")
    a("s_nop 1")
    a("s_cbranch_scc1 K2_S_LOOP0")
    dynloop(a, "F", False)
    a.label("K2_LOOPDONE")
    a("v_mov_b32 v2, 0x76800000")
    a("v_mov_b32 v3, 0x5f800000")
    a(f"v_cmp_nlt_f32 vcc, v{PM}, v2")
    a(f"v_cmp_nlt_f32 s[84:85], v{PM2}, v3")
    a("s_or_b64 vcc, vcc, s[84:85]")
    a("s_cbranch_scc0 K2_AFTER")
    a(f"v_mov_b32 v3, {FLG+4}")
    a("v_mov_b32 v2, 1")
    a("ds_write_b32 v3, v2")
    a.label("K2_AFTER")
    stamp(a, 7)
    if STAMP and LOOPST == 1:
        a(f"s_cmp_eq_u32 s{sDYN}, 0")
        a("s_cbranch_scc1 K2_LSX")
        stamp(a, 7, True)
        a.label("K2_LSX")
    a(f"v_mov_b32 v3, {FLG}")
    a(f"s_cmp_eq_u32 s{sDYN}, 0")
    a("s_cbranch_scc1 K2_B4")
    a("v_lshrrev_b32 v7, 4, v1")
    a(f"s_lshl_b32 s3, s{sNT}, 4")
    a("v_and_b32 v9, 15, v1")
    a("v_add_u32 v9, s3, v9")
    a(f"v_add_u32 v6, s{sNODE0}, v9")
    a("v_lshlrev_b32 v6, 7, v6")
    a("v_lshl_add_u32 v4, v7, 4, v6")
    a(f"buffer_load_dwordx4 v[16:19], v4, s[{S_X}:{S_X+3}], 0 offen")
    a(f"buffer_load_dwordx4 v[20:23], v4, s[{S_X}:{S_X+3}], 0 offen offset:64")
    a("v_lshlrev_b32 v4, 4, v1")
    for hq in range(4):
        a(f"s_mov_b32 s3, {16384 + 4096*hq}")
        for q in range(4):
            r = (96 if hq < 2 else 48) + 16*(hq & 1) + 4*q if hq >= 2 else (24 + 0)
            r = [96, 112 - 80, 48, 64][hq] + 4*q
            a(f"buffer_load_dwordx4 v[{r}:{r+3}], v4, s[{S_CON}:{S_CON+3}], s3 offen offset:{1024*q}")
    a(f"v_mul_u32_u24 v8, {RS}, v9")
    a("v_lshl_add_u32 v8, v7, 6, v8")
    a("v_lshl_add_u32 v6, v7, 5, v6")
    a("s_mov_b32 s86, 0xbfb8aa3b")
    a("s_mov_b32 s87, 0xbfb8aa3b")
    if LOOPST == 4: stamp(a, 1, True)
    a("s_waitcnt vmcnt(8)")
    if LOOPST == 4: stamp(a, 2, True)
    for ks in range(2):
        for ft in range(4):
            W = [96, 104, 32, 40][ft] + 4*ks
            a(f"v_mfma_f32_16x16x32_bf16 v[{80+4*ft}:{83+4*ft}], v[{W}:{W+3}], v[{16+4*ks}:{19+4*ks}], " + ("0" if ks == 0 else f"v[{80+4*ft}:{83+4*ft}]"))
    a("s_nop 4")
    for q in range(8):
        if q == 6: a("s_nop 0")
        a(f"v_pk_mul_f32 {P(80+2*q)}, {P(80+2*q)}, s[86:87]")
    a("s_waitcnt vmcnt(0)")
    if LOOPST == 4: stamp(a, 3, True)
    a.label("K2_B4")
    a("s_waitcnt lgkmcnt(0)")
    a("s_barrier")
    stamp(a, 8)
    a("ds_read_b64 v[12:13], v3")
    a(f"s_cmp_eq_u32 s{sDYN}, 0")
    a("s_cbranch_scc1 K2_NOAGG")
    for ks in range(2):
        for h in range(4):
            r = 16 + 16*ks + 4*h
            a(f"ds_read_b128 v[{r}:{r+3}], v8 offset:{AGG + 256*ks + 16*h}")
    a("s_mov_b32 s86, 0xbfb8aa3b")
    a("s_mov_b32 s87, 0xbfb8aa3b")
    a(f"s_mov_b32 s4, {NLN2:#x}")
    a(f"s_mov_b32 s5, {NLN2:#x}")
    for r in range(16):
        if r % 2 == 0: a(f"s_waitcnt lgkmcnt({7 - r//2})")
        a(f"v_cvt_f32_f64 v{96+r}, v[{16+2*r}:{17+2*r}]")
        if r % 2 == 1:
            a(f"v_pk_mul_f32 {P(95+r)}, {P(95+r)}, s[4:5]")
            a(f"v_cvt_pk_bf16_f32 v{112+r//2}, v{95+r}, v{96+r}")
    if LOOPST == 4: stamp(a, 5, True)
    a("s_branch K2_FL")
    a.label("K2_NOAGG")
    a("s_waitcnt lgkmcnt(0)")
    a.label("K2_FL")
    a("v_readfirstlane_b32 s84, v12")
    a("v_readfirstlane_b32 s85, v13")
    a(f"s_cmp_lg_u32 s{sOVF}, 0")
    a("s_cbranch_scc1 K2_RETRY")
    a(f"s_add_u32 s3, s{sCHUNK}, {CHK}")
    a("s_cmp_gt_u32 s84, s3")
    a("s_cbranch_scc1 K2_NEXTCHUNK")
    a(f"s_andn2_b32 s85, s85, s{sMODE}")
    a("s_cbranch_scc1 K2_GOSLOW")
    a(f"s_cmp_eq_u32 s{sDYN}, 0")
    a("s_cbranch_scc1 K2_FIN")
    a(f"v_cmp_gt_u32 vcc, {NPB}, v9")
    a("v_mov_b32 v12, s86")
    a("v_mov_b32 v13, s86")
    for ks in range(2):
        for ft in range(4):
            a(f"v_mfma_f32_16x16x32_bf16 v[{16+4*ft}:{19+4*ft}], v[{48+8*ft+4*ks}:{51+8*ft+4*ks}], v[{112+4*ks}:{115+4*ks}], " + ("0" if ks == 0 else f"v[{16+4*ft}:{19+4*ft}]"))
    a("s_nop 4")
    for q in range(8):
        if q == 6: a("s_nop 0")
        a(f"v_pk_fma_f32 {P(80+2*q)}, {P(16+2*q)}, s[86:87], {P(80+2*q)}")
    if LOOPST == 4: stamp(a, 6, True)
    for r in range(16):
        a(f"v_exp_f32 v{16+r}, v{80+r}")
    for q in range(8):
        a(f"v_pk_fma_f32 {P(16+2*q)}, {P(16+2*q)}, s[86:87], v[12:13]")
    for r in range(16):
        a(f"v_rcp_f32 v{16+r}, v{16+r}")
    for q in range(8):
        a(f"v_pk_mul_f32 {P(16+2*q)}, {P(16+2*q)}, {P(80+2*q)}")
    for q in range(8):
        a(f"v_cvt_pk_bf16_f32 v{32+q}, v{16+2*q}, v{17+2*q}")
    a("s_mov_b64 exec, vcc")
    so = ["", " sc1", " nt", " sc0 sc1", " sc1 nt"][opt("osc", 0)]
    a(f"buffer_store_dwordx4 v[32:35], v6, s[{S_OUT}:{S_OUT+3}], 0 offen" + so)
    a(f"buffer_store_dwordx4 v[36:39], v6, s[{S_OUT}:{S_OUT+3}], 0 offen offset:16" + so)
    if LOOPST == 4: stamp(a, 7, True)
    a.label("K2_FIN")
    stamp_flush(a, 1, 14, 15, sW, sT)
    a.label("K2_END")
    a("s_endpgm")
    dynloop(a, "S", True)
    a.label("K2_CORRADD")
    for r in range(16):
        a(f"ds_add_f64 v6, v[{32+2*r}:{33+2*r}] offset:{AGG + 128*(r>>2) + 8*(r&3)}")
    a("s_waitcnt lgkmcnt(0)")
    a("s_branch K2_CORRDONE")
    a.label("K2_NOTINIT")
    a(f"ds_read_b32 v{GNR}, v{GBE}")
    a("s_waitcnt lgkmcnt(0)")
    a(f"v_readfirstlane_b32 s3, v{GNR}")
    a("s_cmp_lt_u32 s3, 4")
    a("s_cbranch_scc1 K2_NOTINIT")
    a("s_branch K2_INITOK")
    a.label("K2_SLOWHEAD")
    for i in range(4): a(f"v_mov_b32 v{RP+2*i}, -1")
    a(f"v_mov_b32 v2, {FLG+8}")
    a("ds_read_b64 v[4:5], v2")
    a("s_waitcnt lgkmcnt(0)")
    a(f"v_readfirstlane_b32 s{sT}, v4")
    a(f"v_readfirstlane_b32 s{sOVF}, v5")
    count_tiles(a)
    a("s_branch K2_DYNHEAD")
    a.label("K2_CAREFUL")
    for j in range(NR):
        a(f"s_mov_b64 exec, {VM(j)}")
        a(f"v_mul_u32_u24 v{48+j}, 0x5556, v{48+j}")
        a(f"v_lshrrev_b32 v{48+j}, 18, v{48+j}")
        a(f"v_mul_u32_u24 v{48+j}, {CAPN}, v{48+j}")
        a(f"v_add_u32 v{48+j}, {RECS//4 + CAPN}, v{48+j}")
        a(f"v_add_u32 v{60+j}, v{60+j}, v{20+j}")
        a(f"v_cmpx_lt_u32 vcc, v{60+j}, v{48+j}")
        a(f"v_lshlrev_b32 v{60+j}, 2, v{60+j}")
        a(f"s_andn2_b64 {VM(j)}, {VM(j)}, vcc")
        a(f"ds_write_b32 v{60+j}, v{32+j}")
    a("s_branch K2_PL4")
    a.label("K2_GOSLOW")
    a(f"s_mov_b32 s{sMODE}, 1")
    a(f"s_mov_b32 s{sCHUNK}, {-CHK}")
    a(f"s_mov_b32 s{sK}, 0")
    a(f"s_mov_b32 s{sM}, 0")
    a("s_waitcnt lgkmcnt(0)")
    a("s_barrier")
    a(f"s_cmp_eq_u32 s{sDYN}, 0")
    a("s_cbranch_scc1 K2_NEXTCHUNK")
    prefill(a, 2)
    cnt_init(a, 2)
    a("s_branch K2_HAGAIN")
    a.label("K2_NEXTCHUNK")
    a(f"s_add_u32 s{sCHUNK}, s{sCHUNK}, {CHK}")
    a(f"s_cmp_lg_u32 s{sDYN}, 0")
    a("s_cbranch_scc1 K2_RETRY")
    rec_prep(False)
    rec_masks()
    rec_masks2()
    a.label("K2_RETRY")
    a(f"s_mov_b32 s{sMODE2}, 1")
    a("s_waitcnt lgkmcnt(0)")
    a(f"s_cmp_lg_u32 s{sDYN}, 0")
    a("s_cbranch_scc1 K2_HRETRY")
    rec_prep(False)
    rec_loads(False, "K2_RL2")
    first_addr(a)
    a("v_bfrev_b32 v17, 1")
    a("s_barrier")
    a("s_branch K2_PASS")
    a.label("K2_HAGAIN")
    a(f"s_mov_b32 s{sMODE2}, 1")
    a(f"s_add_u32 s{sCHUNK}, s{sCHUNK}, {CHK}")
    a("s_branch K2_HR2")
    a.label("K2_HRETRY")
    prefill(a, 0)
    cnt_init(a, 0)
    a.label("K2_HR2")
    hprep()
    tile_addrs()
    a(f"v_add_u32 v2, {BP}, v6")
    for q in range(8):
        a(f"ds_read2_b32 v[{32+2*q}:{33+2*q}], v2 offset0:{32*(q>>1)+4*(q&1)} offset1:{32*(q>>1)+4*(q&1)+2}")
    a("s_waitcnt lgkmcnt(0)")
    a("s_barrier")
    for r in range(16):
        a(f"v_lshlrev_b32 v{64+r}, 16, v{32+r}")
        a(f"v_and_b32 v{32+r}, 0xffff0000, v{32+r}")
        a(f"v_add_f32 v{64+r}, v{64+r}, v{32+r}")
    a("s_branch K2_HPASS2")

HEAD = open("standalone__mpnn_edge_mlp__graph.s.ref").read().split("; Override launch")[0]

def main(out):
    a = Asm()
    a.lines.append(HEAD.rstrip())
    a.lines.append(f"; @launch kernel=k1_kernel grid=({NP+NX},1,1) block=({K1W*64},1,1) lds={opt('k1lds', 90112)}")
    a.lines.append(f"; @launch kernel=k2_kernel grid=({NB},1,1) block=(1024,1,1) lds={K2_LDS}")
    a('.amdgcn_target "amdgcn-amd-amdhsa--gfx950"')
    a(".text")
    for k, g in (("k1_kernel", gen_k1), ("k2_kernel", gen_k2)):
        a(f".globl {k}")
        a(".p2align 8")
        a(f".type {k},@function")
        g(a)
    a('.section .rodata,"a"')
    a(".p2align 6")
    a.lines.append(desc("k1_kernel", max(128, 48 + 36*opt("u", 2) + 4), 102).rstrip())
    a(".p2align 6")
    a.lines.append(desc("k2_kernel", 128, 102).rstrip())
    open(out, "w").write(a.text())

if __name__ == "__main__":
    main(sys.argv[1] if len(sys.argv) > 1 else "standalone__mpnn_edge_mlp__graph.s")
```

```python
import sys, os
sys.path.insert(0, os.path.dirname(__file__))
from asmlib import *

CURK = [1]
STK2 = [88, 90, 92, 94, 96, 98, 0, 80, 36, 38] if not os.environ.get('LOOPST') else [88, 90, 92, 94, 96, 98, 0, 82, 36, 38]
STAMP = int(os.environ.get("STAMP", "0"))
OPT = dict(kv.split("=") for kv in os.environ.get("OPT", "").split(",") if kv)
def opt(k, d): return int(OPT.get(k, d))

N = 12500; E = 800000
NP = 250; CH = 3200
NPB = 49; NB = 256
TROWS = 50
WS_TAB = 4096; WS_OFF = 0x200000; WS_REC = 0x400000
WS_STAMP = 0x1000000
NLOG2E = 0xbfb8aa3b
NLN2 = 0xbf317218

LOOPST = int(os.environ.get("LOOPST", "0"))
SEEN = set()
def stamp(a, idx, loop=False):
    if not STAMP: return
    if opt("stb0", 0) and CURK[0] == 2:
        if idx in SEEN: return
        SEEN.add(idx)
    if LOOPST == 4 and CURK[0] == 2:
        if not loop and idx not in (7, 8, 9): return
        if not loop and idx == 7: idx = 0
    elif LOOPST == 3 and CURK[0] == 2:
        if not loop and idx not in (0, 9): return
    elif LOOPST and CURK[0] == 2 and not loop and idx not in (8, 9) and not (idx == 5): return
    if LOOPST in (1, 2) and CURK[0] == 2 and not loop and idx == 5: idx = 0
    assert idx < 10
    if CURK[0] == 2:
        a("s_memtime s[88:89]")
        a("s_waitcnt lgkmcnt(0)") if False else None
        a(f"s_memtime s[{STK2[idx]}:{STK2[idx]+1}]") if False else None
        a.lines.pop() if False else None
        a.lines.pop()
        a(f"s_memtime s[{STK2[idx]}:{STK2[idx]+1}]")
        return
    a(f"s_memtime s[{80+2*idx}:{81+2*idx}]")
def stamp_start(a):
    if not STAMP: return
    a("s_memrealtime s[100:101]")
    for i in range(10): a(f"s_mov_b32 s{80+2*i}, 0") if False else None
def stamp_flush(a, kern, wsl, wsh, wave, extra=None):
    if not STAMP: return
    a("s_waitcnt vmcnt(0)")
    stamp(a, 9)
    a(f"s_memrealtime s[76:77]")
    if STAMP == 2:
        lab = f"DBG_{kern}_{len(a.lines)}"
        a("s_load_dwordx2 s[72:73], s[0:1], 56")
        a(f"s_waitcnt lgkmcnt(0)")
        a(f"s_mov_b64 exec, 1")
        if kern == 0:
            a("s_add_u32 s72, s72, 512")
            a("s_addc_u32 s73, s73, 0")
        a("v_mov_b32 v2, 0")
        a("s_cmp_lg_u32 s2, 5")
        a(f"s_cbranch_scc1 {lab}")
        a(f"s_cmp_lg_u32 s{wave}, 0")
        a(f"s_cbranch_scc1 {lab}")
        a("v_mov_b32 v3, s100")
        a(f"global_store_dword v2, v3, s[72:73] offset:{32*kern}")
        a("v_mov_b32 v3, s76")
        a(f"global_store_dword v2, v3, s[72:73] offset:{32*kern+4}")
        idx = (3, 4, 5, 6, 7, 9) if kern == 0 else (2, 4, 6, 7, 8, 9)
        for i, k in enumerate(idx):
            a(f"s_sub_u32 s3, s{80+2*k}, s80")
            a("v_mov_b32 v3, s3")
            a(f"global_store_dword v2, v3, s[72:73] offset:{32*kern+8+4*i}")
        a.label(lab)
        a("s_waitcnt vmcnt(0)")
        return
    a(f"s_lshl_b32 s78, s2, 4")
    a(f"s_add_u32 s78, s78, s{wave}")
    a(f"s_lshl_b32 s78, s78, 6")
    a(f"s_add_u32 s78, s78, {WS_STAMP + kern*0x100000}")
    a(f"s_waitcnt lgkmcnt(0)")
    a(f"s_mov_b64 exec, 1")
    a(f"v_mov_b32 v2, s78")
    srcs = ([80+2*i for i in range(10)] if kern == 0 else STK2) + [100, extra if extra is not None else 100, 100, 100, 100, 76]
    for i in range(16):
        a(f"v_mov_b32 v3, s{srcs[i]}")
        a(f"global_store_dword v2, v3, s[{wsl}:{wsh}] offset:{4*i}")
    a("s_waitcnt vmcnt(0)")
def prio(a, p):
    if opt("prio", 1): a(f"s_setprio {p}")

KS = opt("K", 7); MD = opt("M", 6)
PV = opt("pv", 0)
def _pp(t): return [tuple(int(c) for c in x) for x in t.split("-")]
SP0 = 3
SPRIO = dict(_pp(OPT.get("sprio", "22-41-60")))
DPRIO = tuple(_pp(OPT.get("dprio", "12-21-40")))
SPL = opt("spl", 4200)
W1L_ = (SPL + 31)//32; W2L_ = (N - SPL + 31)//32
RS = 528; CAPN = 112; BLK = CAPN*4
RSTR = 16896
CNT = 16; FLG = 624; QC = 0; AGG = 640; BP = AGG + 50*RS; RECS = BP + 50*RS; GT = RECS + 50*BLK
CONSTL = GT + 5632; STG = (CONSTL + 7680 + 127)//128*128
K2_LDS = STG + 65536
PST = STG
assert K2_LDS <= 163840
D0 = 16; D1 = 32; X = 48; A = 64; AEXT = 80; BX0 = 84; BX1 = 88; I0 = 92; I1 = 96
RA = 100; RP = 104; VA = 112; VE = 113; VG = 114; L8 = 115; CA = 116; CE = 117
FA0 = 118; FA1 = 120; GNR = 122; GBA = 124; GBE = 125; PM = 126; OFFW = 127
NN = 2; PA = 4; PB = 6; RR = 8; OUT = 10; CADR = 14; PM2 = 15
N0 = 2; P0 = 4; N1 = 8; P1 = 10; PT = 6; SA = 12; SE = 13
S_X = 16; S_OUT = 28; S_TAB = 32; S_OFF = 36; S_REC = 40; S_CON = 8; S_TABR = 20
sB = 44; sNODE0 = 45; sW = 46; sSLOT = 47; sREM = 48; sIT = 49; sCHUNK = 50; sMODE = 51; sOVF = 52; sNT = 53; sFT = 54
sMODE2 = 55; sTN = 56; sTMP = 57; sONE = 58
sVAL = 60
sCAPN = 6; sRECS = 7; sK = 24; sM = 25; sT = 26; sDYN = 27; sSC = 12; sWB = 54

K1W = 1 + (CH//4//opt('u', 2) + 63)//64
NX = opt('nx', 2)
WS_CONST = 0x280000; WS_FRAG = WS_CONST + 8192
def gen_k1(a):
    HIST = 0; OFFS = 1024; RECS1 = 3072; W1L = RECS1 + RSTR; XL = W1L + 8192
    assert XL % 128 == 0
    st = ["", " sc1", " nt", " sc0 sc1", " sc1 nt"][opt("k1sc", 0)]
    stt = ["", " sc1", " nt", " sc0 sc1", " sc1 nt"][opt("tabsc", 0)]
    nt = " nt" if opt("k1nt", 1) else ""
    a.label("k1_kernel")
    a(f"s_cmp_ge_u32 s2, {NP}")
    a("s_cbranch_scc1 K1_EXTRA")
    a("s_load_dwordx8 s[4:11], s[0:1], 0")
    a("s_load_dwordx2 s[12:13], s[0:1], 32")
    a("s_load_dwordx2 s[14:15], s[0:1], 64")
    stamp_start(a)
    stamp(a, 0)
    a("v_lshrrev_b32 v2, 6, v0")
    a("v_and_b32 v1, 63, v0")
    a("v_readfirstlane_b32 s16, v2")
    U = opt("u", 2)
    NT = CH // 4 // U
    a("v_subrev_u32 v40, 64, v0")
    a(f"v_mov_b32 v41, {NT}")
    a("v_cmp_lt_u32 vcc, v40, v41")
    a(f"s_mul_i32 s17, s2, {CH*4}")
    a("v_lshlrev_b32 v3, 4, v40")
    a("v_add_u32 v2, s17, v3")
    a("s_cmp_eq_u32 s16, 0")
    a("s_cbranch_scc1 K1_TABLE")
    a("s_mov_b64 exec, vcc")
    DST = lambda u, j: 48 + 36*u + j
    SRC = lambda u, j: 52 + 36*u + j
    EE = lambda u: 56 + 36*u
    BK = lambda u, j: 58 + 36*u + j
    HA = lambda u, j: 62 + 36*u + j
    RK = lambda u, j: 66 + 36*u + j
    DL = lambda u, j: 70 + 36*u + j
    OF = lambda u, j: 74 + 36*u + 2*j
    for u in range(U):
        a(f"v_add_u32 v{4+u}, {u*NT*16}, v2")
        a(f"v_lshrrev_b32 v{8+u}, 1, v{4+u}")
    a("v_mov_b32 v35, 1")
    a(f"s_movk_i32 s3, {-NPB*3}")
    a("s_waitcnt lgkmcnt(0)")
    if not opt("k1dbg",0): stamp(a, 1)
    for u in range(U):
        a(f"global_load_dwordx4 v[{DST(u,0)}:{DST(u,3)}], v{4+u}, s[10:11]" + nt)
    a(f"s_mul_i32 s18, s2, {RSTR}")
    a(f"s_add_u32 s18, s18, {WS_REC}")
    if not opt("k1dbg",0): stamp(a, 2)
    a("s_barrier")
    for u in range(U):
        a(f"global_load_dwordx4 v[{SRC(u,0)}:{SRC(u,3)}], v{4+u}, s[8:9]" + nt)
    for u in range(U):
        a(f"global_load_dwordx2 v[{EE(u)}:{EE(u)+1}], v{8+u}, s[6:7]" + nt)
    stamp(a, 3)
    for u in range(U):
        a(f"s_waitcnt vmcnt({2*U + U-1-u})")
        if u == U-1: stamp(a, 4)
        for j in range(4):
            a(f"v_mul_u32_u24 v{BK(u,j)}, 5350, v{DST(u,j)}")
            a(f"v_lshrrev_b32 v{BK(u,j)}, 18, v{BK(u,j)}")
            a(f"v_lshlrev_b32 v{HA(u,j)}, 2, v{BK(u,j)}")
            a(f"ds_add_rtn_u32 v{RK(u,j)}, v{HA(u,j)}, v35 offset:{HIST}")
    a("s_waitcnt lgkmcnt(0)")
    a("s_barrier")
    stamp(a, 5)
    for u in range(U):
        for j in range(4):
            a(f"v_mad_u32_u24 v{DST(u,j)}, v{DST(u,j)}, 3, 1")
            a(f"v_mad_i32_i24 v{DL(u,j)}, v{BK(u,j)}, s3, v{DST(u,j)}")
            a(f"v_lshlrev_b32 v{HA(u,j)}, 1, v{HA(u,j)}")
    a("s_barrier")
    stamp(a, 6)
    for u in range(U):
        for j in range(4):
            a(f"ds_read_b64 v[{OF(u,j)}:{OF(u,j)+1}], v{HA(u,j)} offset:{OFFS}")
    a("s_mov_b32 s3, 0xffff0000")
    a("s_waitcnt lgkmcnt(0)")
    for u in range(U):
        for j in range(4):
            a(f"v_add_u32 v{OF(u,j)+1}, v{OF(u,j)+1}, v{RK(u,j)}")
            a(f"v_lshl_add_u32 v{OF(u,j)}, v{RK(u,j)}, 2, v{OF(u,j)}")
    for u in range(U):
        a(f"s_waitcnt vmcnt({U + U-1-u})")
        for j in range(4):
            a(f"v_add_u32 v{DST(u,j)}, {16384 - SPL}, v{SRC(u,j)}")
            a(f"v_lshrrev_b32 v{DST(u,j)}, 14, v{DST(u,j)}")
            a(f"v_add_u32 v{DL(u,j)}, v{DL(u,j)}, v{DST(u,j)}")
            a(f"ds_write_b8 v{OF(u,j)+1}, v{DL(u,j)} offset:{RECS1}")
    for u in range(U):
        a(f"s_waitcnt vmcnt({U-1-u})")
        if u == U-1 and opt("k1dbg",0): stamp(a, 1)
        a(f"v_lshl_or_b32 v{SRC(u,0)}, v{EE(u)}, 16, v{SRC(u,0)}")
        a(f"v_and_or_b32 v{SRC(u,1)}, v{EE(u)}, s3, v{SRC(u,1)}")
        a(f"v_lshl_or_b32 v{SRC(u,2)}, v{EE(u)+1}, 16, v{SRC(u,2)}")
        a(f"v_and_or_b32 v{SRC(u,3)}, v{EE(u)+1}, s3, v{SRC(u,3)}")
        for j in range(4):
            a(f"ds_write_b32 v{OF(u,j)}, v{SRC(u,j)} offset:{RECS1}")
    a("s_mov_b64 exec, -1")
    NW = K1W - 1
    NCP = (16768//16 + NW*64 - 1) // (NW*64)
    a("v_add_u32 v41, s18, v3")
    a(f"v_mov_b32 v42, {16768//16 - (NCP-1)*NW*64}")
    a("v_cmp_lt_u32 vcc, v40, v42")
    a("s_waitcnt lgkmcnt(0)")
    if opt("k1dbg",0): stamp(a, 2)
    a("s_barrier")
    stamp(a, 7)
    for c in range(NCP):
        a(f"ds_read_b128 v[{4+4*c}:{7+4*c}], v3 offset:{RECS1 + c*NW*1024}")
    for c in range(NCP):
        a(f"s_waitcnt lgkmcnt({NCP-1-c})")
        if c == NCP-1:
            a("s_cbranch_vccz K1_FIN")
            a("s_mov_b64 exec, vcc")
        a(f"global_store_dwordx4 v41, v[{4+4*c}:{7+4*c}], s[14:15]" + st)
        if c < NCP-1: a(f"v_add_u32 v41, {NW*1024}, v41")
    a.label("K1_FIN")
    if opt("wb", 0):
        a("s_cmp_lg_u32 s16, 1")
        a("s_cbranch_scc1 K1_NOWB")
        a(f"s_cmp_ge_u32 s2, {8*opt('wb', 0)}")
        a("s_cbranch_scc1 K1_NOWB")
        a("s_waitcnt vmcnt(0)")
        a("buffer_wbl2 sc1")
        a.label("K1_NOWB")
    stamp(a, 8)
    stamp_flush(a, 0, 14, 15, 16)
    a("s_endpgm")
    a.label("K1_TABLE")
    a("v_lshlrev_b32 v4, 4, v1")
    for r in range(4): a(f"v_mov_b32 v{36+r}, 0")
    a(f"ds_write_b128 v4, v[36:39] offset:{HIST}")
    a("v_lshrrev_b32 v5, 3, v1")
    a("v_and_b32 v6, 7, v1")
    a("v_xor_b32 v6, v6, v5")
    a("v_lshlrev_b32 v6, 4, v6")
    a("v_lshl_add_u32 v6, v5, 7, v6")
    a(f"s_mul_i32 s23, s2, {TROWS*128}")
    a("v_add_u32 v6, s23, v6")
    a("v_add_u32 v14, 4096, v6")
    a(f"s_mov_b32 m0, {XL}")
    a("s_waitcnt lgkmcnt(0)")
    stamp(a, 1)
    TF = opt("tfirst", 0)
    XE = opt("xearly", 1) or TF
    if not XE:
        a("s_barrier")
        stamp(a, 3)
    srd(a, 24, 4, 5, N*128)
    xp = " nt" if opt("k1xnt", 0) else ""
    for i in range(4):
        a(f"buffer_load_dwordx4 v6, s[24:27], 0 offen offset:{1024*i}" + xp + " lds")
    a(f"s_mov_b32 m0, {XL + 4096}")
    srd(a, 28, 12, 13, 129*128)
    for i in range(3):
        a(f"buffer_load_dwordx4 v14, s[24:27], 0 offen offset:{1024*i}" + xp + " lds")
    a(f"s_mov_b32 m0, {W1L}")
    a("s_movk_i32 s3, 0x1000")
    for i in range(4):
        a(f"buffer_load_dwordx4 v4, s[28:31], 0 offen offset:{1024*i} lds")
    a(f"s_mov_b32 m0, {W1L + 4096}")
    a("s_nop 0")
    for i in range(4):
        a(f"buffer_load_dwordx4 v4, s[28:31], s3 offen offset:{1024*i} lds")
    stamp(a, 2)
    if XE:
        a("s_barrier")
        stamp(a, 3)
    srd(a, 32, 14, 15, N*128, WS_TAB)
    a("v_lshrrev_b32 v7, 4, v1")
    a("v_bfe_u32 v8, v1, 2, 2")
    a("v_and_b32 v9, 3, v1")
    a("v_lshl_add_u32 v8, v7, 3, v8")
    a("v_lshlrev_b32 v8, 7, v8")
    a("v_lshl_add_u32 v8, v9, 5, v8")
    a("v_and_b32 v10, 15, v1")
    a("v_and_b32 v11, 7, v1")
    a("v_xor_b32 v11, v11, v7")
    a("v_lshlrev_b32 v11, 4, v11")
    a("v_lshl_add_u32 v11, v10, 7, v11")
    a("v_xor_b32 v12, 64, v11")
    a("v_lshlrev_b32 v13, 7, v10")
    a("v_lshl_add_u32 v13, v7, 5, v13")
    a("v_add_u32 v13, s23, v13")
    a("v_add_u32 v15, 4096, v13")
    a(f"s_mov_b32 s40, {NLOG2E:#x}")
    a(f"s_mov_b32 s41, {NLOG2E:#x}")
    a("v_cmp_gt_u32 s[42:43], 2, v10")
    if opt("toff", 1):
        a("s_and_b32 s3, s2, 7")
        a("s_lshl_b32 s3, s3, 5")
        a("s_lshr_b32 s44, s2, 3")
        a("s_add_u32 s3, s3, s44")
        a("s_lshl_b32 s3, s3, 2")
        a(f"s_add_u32 s3, s3, {WS_OFF}")
        a("v_lshlrev_b32 v3, 12, v1")
        a("v_add_u32 v3, s3, v3")
    else:
        a("s_lshl_b32 s3, s2, 10")
        a(f"s_add_u32 s3, s3, {WS_OFF}")
        a("v_add_u32 v3, s3, v4")
    def table():
        for nti in range(4):
            a(f"ds_read_b128 v[{80+8*nti}:{83+8*nti}], v11 offset:{XL + 2048*nti}")
            a(f"ds_read_b128 v[{84+8*nti}:{87+8*nti}], v12 offset:{XL + 2048*nti}")
        for ft in range(4):
            for ks in range(2):
                for h in range(2):
                    r = 16 + 8*ft + 4*ks + 2*h
                    a(f"ds_read_b64_tr_b16 v[{r}:{r+1}], v8 offset:{W1L + (32*ks+4*h)*128 + 8*ft}")
        a("s_waitcnt lgkmcnt(0)")
        def mm(nti):
            D = 48 + 16*(nti & 1); xa = 80 + 8*nti
            for ft in range(4):
                a(f"v_mfma_f32_16x16x32_bf16 v[{D+4*ft}:{D+3+4*ft}], v[{16+8*ft}:{19+8*ft}], v[{xa}:{xa+3}], 0")
            for ft in range(4):
                a(f"v_mfma_f32_16x16x32_bf16 v[{D+4*ft}:{D+3+4*ft}], v[{20+8*ft}:{23+8*ft}], v[{xa+4}:{xa+7}], v[{D+4*ft}:{D+3+4*ft}]")
        def fin(nti):
            D = 48 + 16*(nti & 1); o = 80 + 8*nti
            for q in range(8):
                a(f"v_pk_mul_f32 v[{D+2*q}:{D+1+2*q}], v[{D+2*q}:{D+1+2*q}], s[40:41]")
            for q in range(8):
                a(f"v_cvt_pk_bf16_f32 v{o+q}, v{D+2*q}, v{D+1+2*q}")
            if nti == 3: a("s_mov_b64 exec, s[42:43]")
            ar = 13 if nti < 2 else 15
            a(f"buffer_store_dwordx4 v[{o}:{o+3}], v{ar}, s[32:35], 0 offen offset:{2048*(nti&1)}" + stt)
            a(f"buffer_store_dwordx4 v[{o+4}:{o+7}], v{ar}, s[32:35], 0 offen offset:{2048*(nti&1)+16}" + stt)
            if nti == 3: a("s_mov_b64 exec, -1")
        TB = opt("tb", 4)
        def b3(k):
            if TB == k and not TF:
                a("s_barrier")
                stamp(a, 7)
        b3(0); mm(0); mm(1); fin(0); mm(2); b3(1); fin(1); mm(3); b3(2); fin(2); a("s_nop 7"); b3(3); fin(3); b3(4)
    a("s_setprio 3")
    if TF:
        a("s_waitcnt vmcnt(0)")
        stamp(a, 4)
        table()
    a("s_barrier")
    stamp(a, 5)
    a(f"ds_read_b128 v[56:59], v4 offset:{HIST}")
    a("s_waitcnt lgkmcnt(0)")
    for j in range(4):
        a(f"v_add_u32 v{60+j}, 3, v{56+j}")
        a(f"v_lshrrev_b32 v{60+j}, 2, v{60+j}")
        a(f"v_add_u32 v{60+j}, v{60+j}, v{56+j}")
    a("v_add_u32 v66, v60, v61")
    a("v_add_u32 v67, v66, v62")
    a("v_add_u32 v68, v67, v63")
    a("v_mov_b32 v69, v68")
    a("s_nop 1")
    scan64(a, 69)
    a("v_sub_u32 v72, v69, v68")
    a("v_add_u32 v73, v72, v60")
    a("v_add_u32 v74, v72, v66")
    a("v_add_u32 v75, v72, v67")
    for j in range(4):
        a(f"v_lshlrev_b32 v{60+2*j}, 2, v{72+j}")
        a(f"v_add_lshl_u32 v{61+2*j}, v{72+j}, v{56+j}, 2")
    a("v_lshlrev_b32 v5, 5, v1")
    a(f"ds_write_b128 v5, v[60:63] offset:{OFFS}")
    a(f"ds_write_b128 v5, v[64:67] offset:{OFFS+16}")
    a("s_waitcnt lgkmcnt(0)")
    a("s_barrier")
    stamp(a, 6)
    for j in range(4):
        a(f"v_lshl_or_b32 v{76+j}, v{56+j}, 16, v{72+j}")
    if not TF:
        a("s_waitcnt vmcnt(0)")
        stamp(a, 4)
    if opt("toff", 1):
        for j in range(4):
            a(f"global_store_dword v3, v{76+j}, s[14:15] offset:{1024*j}" + st)
    else:
        a("global_store_dwordx4 v3, v[76:79], s[14:15]" + st)
    if not TF: table()
    stamp(a, 8)
    stamp_flush(a, 0, 14, 15, 16)
    a("s_endpgm")
    a.label("K1_EXTRA")
    a(f"s_cmp_ge_u32 s2, {NP + NX}")
    a("s_cbranch_scc1 K1_END")
    a("s_load_dwordx4 s[8:11], s[0:1], 32")
    a("s_load_dwordx2 s[14:15], s[0:1], 64")
    a("v_lshrrev_b32 v2, 6, v0")
    a("v_and_b32 v1, 63, v0")
    a("v_readfirstlane_b32 s16, v2")
    a("s_waitcnt lgkmcnt(0)")
    srd(a, 20, 8, 9, 129*128)
    srd(a, 24, 10, 11, 128*128)
    a(f"s_sub_u32 s3, s2, {NP}")
    a(f"s_mul_i32 s3, s3, {K1W}")
    a("s_add_u32 s16, s16, s3")
    a("s_cmp_eq_u32 s16, 0")
    a("s_cbranch_scc1 K1_CONST")
    a("s_sub_u32 s17, s16, 1")
    a.label("K1_FRAG")
    a("s_cmp_gt_u32 s17, 11")
    a("s_cbranch_scc1 K1_END")
    a("s_lshr_b32 s18, s17, 2")
    a("s_and_b32 s19, s17, 3")
    a("v_and_b32 v3, 15, v1")
    a("v_lshrrev_b32 v4, 4, v1")
    a("v_lshlrev_b32 v4, 10, v4")
    a("s_lshl_b32 s3, s19, 4")
    a("v_add_u32 v5, s3, v3")
    a("v_lshrrev_b32 v6, 2, v3")
    a("v_and_b32 v7, 3, v3")
    a("v_lshl_add_u32 v6, v6, 4, v7")
    a("s_lshl_b32 s3, s19, 2")
    a("v_add_u32 v6, s3, v6")
    a("s_cmp_ge_u32 s18, 1")
    a("s_cselect_b64 s[30:31], -1, 0")
    a("v_cndmask_b32 v5, v5, v6, s[30:31]")
    a("v_lshl_add_u32 v4, v5, 1, v4")
    a("s_cmp_eq_u32 s18, 0")
    a("s_cselect_b32 s28, s8, s10")
    a("s_cselect_b32 s29, s9, s11")
    a("s_movk_i32 s30, 0x4000")
    a("s_mov_b32 s31, 0x00020000")
    a("s_cmp_eq_u32 s18, 1")
    a("s_cselect_b32 s3, 0, 0x2000")
    a("s_add_u32 s4, s3, 0x1000")
    for ks in range(2):
        for j in range(8):
            a(f"buffer_load_ushort v{16+8*ks+j}, v4, s[28:31], s{3+ks} offen offset:{128*j}")
    srd(a, 32, 14, 15, 3*8192, WS_FRAG)
    a("s_lshl_b32 s3, s17, 11")
    a("v_lshlrev_b32 v2, 4, v1")
    a("s_waitcnt vmcnt(0)")
    for q in range(8):
        a(f"v_lshl_or_b32 v{8+q}, v{17+2*q}, 16, v{16+2*q}")
    a("buffer_store_dwordx4 v[8:11], v2, s[32:35], s3 offen")
    a("buffer_store_dwordx4 v[12:15], v2, s[32:35], s3 offen offset:1024")
    a(f"s_add_u32 s17, s17, {NX*K1W-1}")
    a("s_branch K1_FRAG")
    a.label("K1_CONST")
    a("v_and_b32 v8, 31, v1")
    a("v_lshlrev_b32 v9, 1, v8")
    a("s_movk_i32 s3, 0x4000")
    a("buffer_load_ushort v24, v9, s[20:23], s3 offen")
    a("buffer_load_ushort v25, v9, s[20:23], s3 offen offset:64")
    a("v_lshrrev_b32 v11, 5, v1")
    a("v_lshlrev_b32 v47, 3, v8")
    a("v_lshlrev_b32 v12, 3, v11")
    a("v_sub_u32 v12, v8, v12")
    a("v_and_b32 v13, 1, v12")
    a("v_lshlrev_b32 v13, 4, v13")
    a("v_mov_b32 v14, 0x3f80")
    a("v_lshlrev_b32 v13, v13, v14")
    a("v_ashrrev_i32 v12, 1, v12")
    for i in range(4):
        a(f"v_cmp_eq_u32 s[{60+4*i}:{61+4*i}], {i}, v12")
        a(f"v_cmp_eq_u32 s[{62+4*i}:{63+4*i}], {8+i}, v12")
    for i in range(4):
        a(f"v_cndmask_b32 v{32+i}, 0, v13, s[{60+4*i}:{61+4*i}]")
        a(f"v_cndmask_b32 v{36+i}, 0, v13, s[{62+4*i}:{63+4*i}]")
    a("v_bfe_u32 v12, v8, 2, 1")
    a("v_and_b32 v13, 1, v8")
    a("v_lshl_or_b32 v14, v12, 1, v13")
    a("v_lshlrev_b32 v15, 1, v11")
    a("v_sub_u32 v15, v14, v15")
    a("v_cmp_eq_u32 s[60:61], 0, v15")
    a("v_cmp_eq_u32 s[62:63], 1, v15")
    a("v_mov_b32 v26, 0x3f803f80")
    a("s_nop 0")
    a("v_cndmask_b32 v56, 0, v26, s[60:61]")
    a("v_cndmask_b32 v57, 0, v26, s[62:63]")
    a("v_bfe_u32 v15, v8, 1, 1")
    a("v_lshrrev_b32 v26, 3, v8")
    a("v_lshl_or_b32 v27, v26, 1, v15")
    a("v_lshl_or_b32 v49, v27, 2, 2")
    a("v_lshl_or_b32 v27, v14, 3, v27")
    a("v_and_b32 v28, 3, v27")
    a("v_lshrrev_b32 v27, 2, v27")
    a("v_lshl_or_b32 v27, v28, 3, v27")
    a("v_and_b32 v28, 7, v8")
    a("v_xor_b32 v28, v28, v11")
    a("v_lshlrev_b32 v28, 4, v28")
    a("v_lshl_add_u32 v40, v27, 7, v28")
    for k in range(1, 4):
        a(f"v_xor_b32 v{40+k}, {32*k}, v40")
    a("v_lshlrev_b32 v48, 1, v1")
    a("v_and_b32 v48, 16, v48")
    a("v_lshrrev_b32 v7, 4, v1")
    a(f"s_mov_b32 s3, {GT}")
    a("v_lshl_add_u32 v44, v7, 3, s3")
    a("v_lshl_add_u32 v45, v14, 3, s3")
    a(f"s_mov_b32 s3, {GT + 4}")
    a("v_lshl_add_u32 v46, v11, 4, s3")
    a("v_and_b32 v5, 15, v1")
    a("v_and_b32 v2, 7, v1")
    a("v_xor_b32 v2, v2, v7")
    a("v_lshlrev_b32 v2, 4, v2")
    a("v_lshl_add_u32 v2, v5, 7, v2")
    a(f"v_add_u32 v52, {PST + 16384}, v2")
    a("v_lshlrev_b32 v3, 4, v1")
    a(f"v_add_u32 v53, {PST}, v3")
    a(f"v_mul_u32_u24 v54, {RS}, v5")
    a("v_lshl_add_u32 v54, v7, 5, v54")
    a("v_mul_u32_u24 v55, 12, v5")
    a(f"v_mul_u32_u24 v62, {BLK}, v14")
    a(f"s_mov_b32 s3, {RECS}")
    a("v_add3_u32 v62, v62, v49, s3")
    a(f"v_mul_u32_u24 v63, {2*RS}, v11")
    a("v_add_u32 v63, v63, v47")
    a(f"s_mov_b32 s3, {NLOG2E:#x}")
    a("v_cmp_gt_u32 s[60:61], 32, v1")
    a("v_mov_b32 v59, 0")
    a("v_mov_b32 v61, 0")
    a("s_waitcnt vmcnt(0)")
    for j in range(2):
        a(f"v_lshlrev_b32 v{24+j}, 16, v{24+j}")
        a(f"v_mul_f32 v{24+j}, s3, v{24+j}")
        a(f"v_cvt_pk_bf16_f32 v26, v{24+j}, v{24+j}")
        a("v_and_b32 v27, 0xffff0000, v26")
        a(f"v_sub_f32 v27, v{24+j}, v27")
        a("v_cvt_pk_bf16_f32 v27, v27, v27")
        a(f"v_cndmask_b32 v26, v27, v26, s[60:61]")
        a(f"v_and_b32 v{58+2*j}, 0xffff, v26")
    srd(a, 28, 14, 15, 8192, WS_CONST)
    a("v_lshlrev_b32 v2, 4, v1")
    a("v_lshlrev_b32 v3, 3, v1")
    a("s_movk_i32 s3, 0x1000")
    for i in range(4):
        a(f"buffer_store_dwordx4 v[{32+4*i}:{35+4*i}], v2, s[28:31], 0 offen offset:{1024*i}")
    a("buffer_store_dwordx4 v[52:55], v2, s[28:31], s3 offen")
    for i in range(4):
        a(f"buffer_store_dwordx2 v[{56+2*i}:{57+2*i}], v3, s[28:31], s3 offen offset:{1024+512*i}")
    a("buffer_store_dwordx2 v[48:49], v3, s[28:31], s3 offen offset:3072")
    a.label("K1_END")
    a("s_endpgm")

def P(r): return f"v[{r}:{r+1}]"

def mfma3(Dn, j):
    bx = BX0 if j == 0 else BX1
    return [f"v_mfma_f32_32x32x16_bf16 {v(Dn,16)}, {v(AEXT,4)}, {v(bx,4)}, 0",
            f"v_mfma_f32_32x32x16_bf16 {v(Dn,16)}, {v(A+8*j,4)}, {v(I0,4)}, {v(Dn,16)}",
            f"v_mfma_f32_32x32x16_bf16 {v(Dn,16)}, {v(A+8*j+4,4)}, {v(I1,4)}, {v(Dn,16)}"]

def xphase(a, Dc, mf):
    ex = [f"v_exp_f32 v{X+r}, v{Dc+r}" for r in range(16)]
    seq = [mf[0]] + ex[0:4] + [mf[1]] + ex[4:8] + [mf[2]] + ex[8:16] if mf else ex
    for l in seq: a(l)

def fphase(a, Dc, off, slow, fa, mids=()):
    mids = dict(mids)
    if not slow:
        a(f"v_pk_add_f32 {P(PA)}, {P(X)}, s[{sONE}:{sONE+1}]")
        cur, nxt = PA, PB
        for q in range(1, 8):
            src = Dc if q == 1 else NN
            a(f"v_pk_fma_f32 {P(NN)}, {P(src)}, {P(X+2*q)}, {P(src)}")
            a(f"v_pk_fma_f32 {P(nxt)}, {P(cur)}, {P(X+2*q)}, {P(cur)}")
            a(f"v_pk_fma_f32 {P(NN)}, {P(Dc+2*q)}, {P(cur)}, {P(NN)}")
            cur, nxt = nxt, cur
            if q in mids: mids[q]()
        a(f"v_rcp_f32 v{RR}, v{cur}")
        a(f"v_rcp_f32 v{RR+1}, v{cur+1}")
        a(f"v_max3_f32 v{PM2}, v{cur}, v{cur+1}, v{PM2}")
        a(f"v_pk_mul_f32 {P(OUT)}, {P(NN)}, {P(RR)}")
    else:
        for q in range(8):
            a(f"v_pk_add_f32 {P(X+2*q)}, {P(X+2*q)}, s[{sONE}:{sONE+1}]")
        for q in sorted(mids): mids[q]()
        for r in range(16):
            a(f"v_rcp_f32 v{X+r}, v{X+r}")
        a("s_nop 0")
        a(f"v_pk_mul_f32 {P(OUT)}, {P(Dc)}, {P(X)}")
        for q in range(1, 8):
            a(f"v_pk_fma_f32 {P(OUT)}, {P(Dc+2*q)}, {P(X+2*q)}, {P(OUT)}")
    a(f"v_cvt_f64_f32 {P(OUT+2)}, v{OUT+1}")
    a(f"v_cvt_f64_f32 {P(OUT)}, v{OUT}")
    a(f"ds_add_f64 v{fa+1}, {P(OUT+2)} offset:{AGG+off}")
    a(f"ds_add_f64 v{fa}, {P(OUT)} offset:{AGG+off}")

SRD4 = opt("srd4", 0) and not STAMP
def dma4(a, first=False):
    if SRD4:
        if first:
            a(f"s_mov_b32 m0, s{sSLOT}")
            a("s_nop 0")
        for i in range(4):
            r = S_TAB if i == 0 else 84 + 4*i
            a(f"buffer_load_dwordx4 {P(RP+2*i)}, s[{r}:{r+3}], 0 idxen offen offset:{1024*i} lds")
        return
    for i in range(4):
        a(f"s_add_u32 m0, s{sSLOT}, {i*1024}" if i else f"s_mov_b32 m0, s{sSLOT}")
        a("s_nop 0")
        a(f"buffer_load_dwordx4 {P(RP+2*i)}, s[{S_TAB}:{S_TAB+3}], 0 idxen offen" + ["", " sc1", " sc0", " sc0 sc1", " nt"][opt("dmod", 0)] + " lds")

def idxread(a):
    for i in range(4):
        a(f"ds_read_u16 v{RP+2*i}, v{GBA} offset:{4*i}")

def aread(a):
    for k in range(4):
        a(f"ds_read_b128 {v(A+4*k,4)}, v{RA+k}")

def bext(a, fa):
    a(f"ds_read_b32 v{BX0}, v{fa} offset:{BP}")
    a(f"ds_read_b32 v{BX0+1}, v{fa+1} offset:{BP}")
    a(f"ds_read_b32 v{BX1}, v{fa} offset:{BP+256}")
    a(f"ds_read_b32 v{BX1+1}, v{fa+1} offset:{BP+256}")

def dynloop(a, tag, slow):
    L = lambda x: f"K2_{tag}_{x}"
    for par in range(2):
        fa, fan = (FA0, FA1) if par == 0 else (FA1, FA0)
        o = 512*par
        a.label(L(f'LOOP{par}'))
        if STAMP and LOOPST == 1 and not slow:
            for it in range(par, 6, 2):
                a(f"s_cmp_lg_u32 s{sIT}, {it}")
                a(f"s_cbranch_scc1 K2_LS{it}")
                stamp(a, 1+it, True)
                a.label(f"K2_LS{it}")
        a(f"s_sub_u32 s{sREM}, s{sREM}, 1")
        a(f"s_cmp_eq_u32 s{sREM}, 0")
        a(f"s_cbranch_scc1 {L(f'TAIL{par}')}")
        if not slow and opt("lprio", 1):
            a(f"s_add_u32 s{sIT}, s{sIT}, 1")
            for it, p in DPRIO:
                a(f"s_cmp_lg_u32 s{sIT}, {it}")
                a(f"s_cbranch_scc1 {L(f'PR{par}{it}')}")
                a(f"s_setprio {p}")
                a.label(L(f'PR{par}{it}'))
        a(f"ds_read_b32 v{GBE}, v{VE} offset:{o+512}")
        a(f"ds_read2_b32 {P(GNR)}, v{VG} offset0:{o//4} offset1:{o//4+2}")
        a(f"s_cmp_lt_u32 s{sREM}, 2")
        a(f"s_cbranch_scc1 {L(f'NOI{par}')}")
        idxread(a)
        a(f"ds_read_b32 v{GBA}, v{VA} offset:{o+1536}")
        a.label(L(f'NOI{par}'))
        xphase(a, D0, mfma3(D1, 1))
        a("s_waitcnt vmcnt(0) lgkmcnt(0)")
        aread(a)
        a(f"v_add_u32 v{GBE}, v{GBE}, v{CE}")
        a(f"v_add_u32 v{fan}, v{GNR}, v{L8}")
        a(f"v_add_u32 v{fan+1}, v{GNR+1}, v{L8}")
        a(f"v_add_u32 v{GBA}, v{GBA}, v{CA}")
        a(f"ds_read_u16 v{AEXT+2}, v{GBE}")
        bext(a, fan)
        def mid():
            a(f"s_cmp_lt_u32 s{sREM}, 2")
            a(f"s_cbranch_scc1 {L(f'NOD{par}')}")
            a("s_waitcnt lgkmcnt(5)")
            dma4(a)
            a.label(L(f'NOD{par}'))
        fphase(a, D0, 0, slow, fa, [(opt("dmaq", 2), mid)])
        a("s_waitcnt lgkmcnt(2)")
        xphase(a, D1, mfma3(D0, 0))
        if par == 1:
            for r in (VA, VE, VG):
                a(f"v_add_u32 v{r}, 1024, v{r}")
        fphase(a, D1, 256, slow, fa)
        if par == 1:
            a(f"s_branch {L('LOOP0')}")
    for par in range(2):
        fa = FA0 if par == 0 else FA1
        a.label(L(f'TAIL{par}'))
        xphase(a, D0, mfma3(D1, 1))
        fphase(a, D0, 0, slow, fa)
        xphase(a, D1, None)
        fphase(a, D1, 256, slow, fa)
        a("s_branch K2_LOOPDONE")

def count_tiles(a):
    a(f"s_lshl_b32 s3, s{sM}, 2")
    a(f"s_add_u32 s3, s3, s{sW}")
    a(f"s_sub_i32 s{sREM}, s{sT}, s3")
    a(f"s_add_i32 s{sREM}, s{sREM}, 15")
    a(f"s_max_i32 s{sREM}, s{sREM}, 0")
    a(f"s_lshr_b32 s{sREM}, s{sREM}, 4")
    a(f"s_sub_i32 s3, s{sT}, s{sW}")
    a("s_add_i32 s3, s3, 15")
    a("s_max_i32 s3, s3, 0")
    a("s_lshr_b32 s3, s3, 2")
    a(f"s_min_u32 s3, s3, s{sM}")
    a(f"s_mul_i32 s3, s3, s{sDYN}")
    a(f"s_add_u32 s{sREM}, s{sREM}, s3")

def schain(a, Dc, Nr, Pr, first, mids=()):
    mids = dict(mids)
    if first:
        a(f"v_pk_add_f32 {P(PT)}, {P(X)}, s[{sONE}:{sONE+1}]")
        cur, nxt = PT, Pr
        q0 = 1
    else:
        cur, nxt = Pr, PT
        q0 = 0
    for q in range(q0, 8):
        src = Dc if (first and q == 1) else Nr
        a(f"v_pk_fma_f32 {P(Nr)}, {P(src)}, {P(X+2*q)}, {P(src)}")
        a(f"v_pk_fma_f32 {P(nxt)}, {P(cur)}, {P(X+2*q)}, {P(cur)}")
        a(f"v_pk_fma_f32 {P(Nr)}, {P(Dc+2*q)}, {P(cur)}, {P(Nr)}")
        cur, nxt = nxt, cur
        if q in mids: mids[q]()
    assert cur == Pr

def sidx(a, j):
    for i in range(4):
        a(f"ds_read_u16 v{RP+2*i}, v{SA} offset:{32*j + 4*i}")

def static_phase(a):
    K = KS
    if LOOPST == 2: stamp(a, 3, True)
    E2 = opt("e2", 0)
    if E2 == 0:
        dma4(a)
        if LOOPST == 2: stamp(a, 4, True)
        for m in mfma3(D0, 0): a(m)
        a("s_nop 7")
        a("s_nop 3")
    else:
        for m in mfma3(D0, 0): a(m)
        dma4(a)
        if LOOPST == 2: stamp(a, 4, True)
    for j in range(K):
        last = j == K-1
        if opt("lprio", 1) and j in SPRIO:
            a(f"s_setprio {SPRIO[j]}")
        if STAMP and LOOPST == 1 and j < 7: stamp(a, 1+j, True)
        if STAMP and LOOPST == 2 and j < 2: stamp(a, 5+2*j, True)
        if j+2 < K:
            sidx(a, j+2)
        if j == K-3:
            a(f"ds_read_b32 v{GBA}, v{VA}")
            a(f"v_mov_b32 v{GBE}, {QC+8}")
            a(f"ds_read_b32 v{GNR}, v{GBE}")
        if j == K-2:
            a(f"s_cmp_eq_u32 s{sREM}, 0")
            a("s_cbranch_scc1 K2_SN0")
            idxread(a)
            a(f"ds_read_b32 v{GBA}, v{VA} offset:512")
            a.label("K2_SN0")
        if last:
            a(f"s_cmp_eq_u32 s{sREM}, 0")
            a("s_cbranch_scc1 K2_SLAST0")
            a(f"ds_read_b32 v{GBE}, v{VE}")
            a(f"ds_read2_b32 {P(GNR)}, v{VG} offset0:0 offset1:2")
            a(f"s_cmp_lt_u32 s{sREM}, 2")
            a("s_cbranch_scc1 K2_SN1")
            idxread(a)
            a(f"ds_read_b32 v{GBA}, v{VA} offset:1024")
            a.label("K2_SN1")
        xphase(a, D0, mfma3(D1, 1))
        if j == opt("w2", -1) + 1 and j > 0:
            a(f"s_cmp_ge_u32 s{sW}, {(W2L_ + 63)//64}")
            a("s_cbranch_scc1 K2_NOW3")
            a("s_waitcnt vmcnt(1) lgkmcnt(0)")
            a("s_branch K2_NOW4")
            a.label("K2_NOW3")
        a("s_waitcnt vmcnt(0) lgkmcnt(0)")
        if j == opt("w2", -1) + 1 and j > 0: a.label("K2_NOW4")
        if STAMP and LOOPST == 2 and j == 0: stamp(a, 6, True)
        aread(a)
        nsmall = 1
        if j == K-3:
            a(f"v_readfirstlane_b32 s3, v{GNR}")
            a("s_cmp_lt_u32 s3, 4")
            a("s_cbranch_scc1 K2_NOTINIT")
            a.label("K2_INITOK")
        if j >= K-3:
            a(f"v_add_u32 v{GBA}, v{GBA}, v{CA}")
        if not last:
            a(f"ds_read_u16 v{AEXT+2}, v{SE} offset:{32*(j+1)}")
        else:
            a(f"v_add_u32 v{GBE}, v{GBE}, v{CE}")
            a(f"v_add_u32 v{FA0}, v{GNR}, v{L8}")
            a(f"v_add_u32 v{FA0+1}, v{GNR+1}, v{L8}")
            a(f"v_add_u32 v{VG}, 512, v{VG}")
            a(f"ds_read_u16 v{AEXT+2}, v{GBE}")
            bext(a, FA0)
            nsmall = 5
        def mid():
            if j >= K-2:
                a(f"s_cmp_lt_u32 s{sREM}, {j-(K-2)+1}")
                a(f"s_cbranch_scc1 K2_SND{j}")
            a(f"s_waitcnt lgkmcnt({nsmall})")
            dma4(a)
            if j == opt("w2", -1):
                a(f"s_cmp_ge_u32 s{sW}, {(W2L_ + 63)//64}")
                a("s_cbranch_scc1 K2_NOW2")
                a(f"v_lshlrev_b32 v{GBE}, 7, v0")
                a(f"s_mul_i32 s3, s{sWB}, {W2L_*128}")
                a(f"s_add_u32 s3, s3, {SPL*128}")
                a(f"buffer_load_dword v{GBE}, v{GBE}, s[{S_TABR}:{S_TABR+3}], s3 offen")
                a.label("K2_NOW2")
            if j >= K-2: a.label(f"K2_SND{j}")
        schain(a, D0, N0, P0, j == 0, [(opt("dmaq", 2), mid)])
        a("s_waitcnt lgkmcnt(0)")
        xphase(a, D1, mfma3(D0, 0))
        schain(a, D1, N1, P1, j == 0)
        if j in ((1, 3) if KS <= 7 else (1, 3, 5)):
            for r in (N0, P0, N1, P1):
                a(f"v_pk_mul_f32 {P(r)}, {P(r)}, s[{sSC}:{sSC+1}]")
    def sflush():
        for h, (Nr, Pr) in enumerate(((N0, P0), (N1, P1))):
            a(f"v_rcp_f32 v{X}, v{Pr}")
            a(f"v_rcp_f32 v{X+1}, v{Pr+1}")
            a(f"v_max3_f32 v{PM}, v{Pr}, v{Pr+1}, v{PM}")
            a(f"v_pk_mul_f32 {P(Nr)}, {P(Nr)}, {P(X)}")
            a(f"v_cvt_f64_f32 {P(X+2+4*h)}, v{Nr}")
            a(f"v_cvt_f64_f32 {P(X+4+4*h)}, v{Nr+1}")
            a(f"ds_add_f64 v{FA1}, {P(X+2+4*h)} offset:{AGG+256*h}")
            a(f"ds_add_f64 v{FA1+1}, {P(X+4+4*h)} offset:{AGG+256*h}")
        a(f"v_add_f32 v{X}, abs(v{N0}), abs(v{N0+1})")
        a(f"v_add_f32 v{X+1}, abs(v{N1}), abs(v{N1+1})")
        a(f"v_add_f32 v{X}, v{X}, v{X+1}")
        a(f"v_mul_f32 v{X}, 0, v{X}")
        a(f"v_add_f32 v{PM}, v{PM}, v{X}")
    sflush()
    a("s_branch K2_F_LOOP0")
    a.label("K2_SLAST0")
    xphase(a, D0, mfma3(D1, 1))
    schain(a, D0, N0, P0, False)
    xphase(a, D1, None)
    schain(a, D1, N1, P1, False)
    sflush()
    a("s_branch K2_LOOPDONE")

def first_addr(a):
    a("v_lshrrev_b32 v8, 4, v1")
    a(f"v_lshl_add_u32 v8, s{sW}, 2, v8")
    a(f"v_mul_u32_u24 v9, {BLK}, v8")
    a("v_lshlrev_b32 v11, 1, v1")
    a("v_and_b32 v11, 16, v11")
    a(f"v_add3_u32 v{SA}, v9, v11, s{sRECS}")
    a("v_bfe_u32 v8, v1, 4, 1")
    a("v_lshrrev_b32 v9, 5, v1")
    a("v_lshl_or_b32 v8, v9, 2, v8")
    a("v_and_b32 v9, 7, v1")
    a("v_xor_b32 v8, v8, v9")
    a(f"v_lshlrev_b32 v{RP+1}, 4, v8")
    a(f"v_xor_b32 v{RP+3}, 32, v{RP+1}")
    a(f"v_mov_b32 v{RP+5}, v{RP+1}")
    a(f"v_mov_b32 v{RP+7}, v{RP+3}")

def const_read2(a):
    a("v_lshlrev_b32 v3, 3, v1")
    a(f"v_add_u32 v3, {CONSTL + 5120}, v3")
    a(f"ds_read_b64 {P(GNR)}, v3 offset:1536")
    a(f"ds_read_b128 {v(VA,4)}, v{CADR} offset:3072")
    a(f"ds_read_b64 {P(CA)}, v3 offset:2048")
    a(f"ds_read_b128 {v(RA,4)}, v{CADR} offset:2048")
    a(f"ds_read_b128 {v(I0,4)}, v{CADR}")
    a(f"ds_read_b128 {v(I1,4)}, v{CADR} offset:1024")
    a(f"ds_read_b64 {P(AEXT)}, v3")
    a(f"ds_read_b64 {P(BX0+2)}, v3 offset:512")
    a(f"ds_read_b64 {P(BX1+2)}, v3 offset:1024")
    a(f"v_mov_b32 v{AEXT+3}, 0")

CHK = 36
NR = 12
def cnt_init(a, first):
    for r in range(4): a(f"v_mov_b32 v{4+r}, 0")
    a("v_mul_u32_u24 v3, 12, v1")
    a(f"v_mul_u32_u24 v8, {CAPN}, v1")
    a(f"v_add_u32 v8, {RECS//4}, v8")
    a("s_mov_b32 exec_lo, -1")
    a(f"s_mov_b32 exec_hi, {hex((1 << 18) - 1)}")
    a(f"ds_write2_b32 v3, v4, v8 offset0:{CNT//4} offset1:{CNT//4+1}")
    a(f"ds_write_b32 v3, v4 offset:{CNT+8}")
    if first == 1:
        a(f"ds_write_b128 v4, v[4:7] offset:{QC}")
    if first == 1:
        a(f"v_mov_b32 v3, {FLG}")
        a("ds_write_b128 v3, v[4:7]")
    a("s_mov_b64 exec, -1")

def prefill(a, first):
    a("v_subrev_u32 v2, 768, v0")
    a("v_lshlrev_b32 v2, 4, v2")
    for r in range(4): a(f"v_mov_b32 v{4+r}, 0xffff")
    for i in range(5):
        a(f"ds_write_b128 v2, v[4:7] offset:{RECS + 4096*i}") if RECS + 4096*i < 65536 else None
        if RECS + 4096*i >= 65536:
            if RECS + 4096*(i-1) < 65536:
                a(f"v_add_u32 v3, {RECS}, v2")
            a(f"ds_write_b128 v3, v[4:7] offset:{4096*i}")
    a(f"v_mov_b32 v8, {50*BLK - 5*4096}")
    a("v_cmpx_lt_u32 vcc, v2, v8")
    a(f"ds_write_b128 v3, v[4:7] offset:{4096*5}")
    a("s_mov_b64 exec, -1")
    for r in range(4): a(f"v_mov_b32 v{4+r}, 0")
    if first == 2:
        for i in range(6):
            a(f"ds_write_b128 v2, v[4:7] offset:{AGG + 4096*i}")
        a(f"v_mov_b32 v8, {50*RS - 6*4096}")
        a("v_cmpx_lt_u32 vcc, v2, v8")
        a(f"ds_write_b128 v2, v[4:7] offset:{AGG + 4096*6}")
        a("s_mov_b64 exec, -1")

def gen_k2(a):
    CURK[0] = 2
    WARM = opt("warm", 1)
    FB = 96
    a.label("k2_kernel")
    a(f"s_cmp_ge_u32 s2, {NB}")
    a("s_cbranch_scc1 K2_END")
    a("s_load_dwordx2 s[14:15], s[0:1], 64")
    a("s_load_dwordx2 s[4:5], s[0:1], 0")
    a("s_load_dwordx2 s[12:13], s[0:1], 48")
    stamp_start(a)
    stamp(a, 0)
    prio(a, 3)
    if opt("rot", 1):
        a("v_add_u32 v0, 768, v0")
        a("v_and_b32 v0, 1023, v0")
    a("v_lshrrev_b32 v2, 6, v0")
    a("v_and_b32 v1, 63, v0")
    a(f"v_readfirstlane_b32 s{sW}, v2")
    a("s_and_b32 s3, s2, 7")
    a("s_lshl_b32 s3, s3, 5")
    a(f"s_lshr_b32 s{sB}, s2, 3")
    a(f"s_add_u32 s{sB}, s{sB}, s3")
    a("v_mul_u32_u24 v12, 0x5556, v0")
    a("v_lshrrev_b32 v12, 16, v12")
    if opt("toff", 1):
        a("v_lshlrev_b32 v3, 2, v12")
        a("v_and_b32 v4, 31, v12")
        a("v_lshrrev_b32 v12, 5, v12")
        a("v_lshl_add_u32 v12, v4, 3, v12")
        a(f"s_lshl_b32 s3, s{sB}, 10")
        a(f"s_mov_b32 s{S_OFF+2}, {NB*1024}")
    else:
        a("v_lshlrev_b32 v3, 10, v12")
        a(f"s_lshl_b32 s3, s{sB}, 2")
        a(f"s_mov_b32 s{S_OFF+2}, {NP*1024}")
    a(f"s_mov_b32 s{S_OFF+3}, 0x00020000")
    a(f"s_cmp_ge_u32 s{sW}, 12")
    a(f"s_cselect_b32 s{sDYN}, 1, 0")
    a("s_cbranch_scc1 K2_HELP")
    def setup():
        srd(a, S_TABR, 14, 15, N*128, WS_TAB)
        a(f"s_mov_b32 s{S_TAB}, s{S_TABR}")
        a(f"s_or_b32 s{S_TAB+1}, s{S_TABR+1}, {128 << 16}")
        a(f"s_mov_b32 s{S_TAB+2}, {N}")
        a(f"s_mov_b32 s{S_TAB+3}, 0x00020000")
        if SRD4:
            for i in range(1, 4):
                r = 84 + 4*i
                a(f"s_sub_u32 s{r}, s{S_TAB}, {1024*i}")
                a(f"s_subb_u32 s{r+1}, s{S_TAB+1}, 0")
                a(f"s_mov_b32 s{r+2}, {N}")
                a(f"s_mov_b32 s{r+3}, 0x00020000")
        srd(a, S_OUT, 12, 13, N*128)
        srd(a, S_REC, 14, 15, NP*RSTR, WS_REC)
        a(f"s_mov_b32 s{sSC}, 0x2d800000")
        a(f"s_mov_b32 s{sSC+1}, 0x2d800000")
        a(f"s_movk_i32 s{sCAPN}, {CAPN}")
        a(f"s_mov_b32 s{sRECS}, {RECS}")
        a(f"s_mov_b32 s{sMODE}, 0")
        a(f"s_mov_b32 s{sMODE2}, 0")
        a(f"s_mov_b32 s{sCHUNK}, 0")
        a(f"s_mov_b32 s{sK}, {KS}")
        a(f"s_mov_b32 s{sM}, {MD}")
        a(f"s_mov_b32 s{sONE}, 1.0")
        a(f"s_mov_b32 s{sONE+1}, 1.0")
        a(f"s_lshl_b32 s{sSLOT}, s{sW}, 12")
        a(f"s_add_u32 s{sSLOT}, s{sSLOT}, {STG}")
        a(f"s_mul_i32 s{sNODE0}, s{sB}, {NPB}")
    def rec_prep(first):
        a("v_mul_u32_u24 v3, 0x5556, v0")
        a("v_lshrrev_b32 v4, 16, v3")
        if not first:
            if opt("toff", 1):
                a("v_and_b32 v3, 31, v4")
                a("v_lshrrev_b32 v12, 5, v4")
                a("v_lshl_add_u32 v12, v3, 3, v12")
            else:
                a("v_mov_b32 v12, v4")
        a("v_mul_u32_u24 v3, 3, v4")
        a("v_sub_u32 v3, v0, v3")
        a("v_lshlrev_b32 v3, 2, v3")
        if not first:
            a(f"v_add_u32 v3, s{sCHUNK}, v3")
        a(f"v_mul_u32_u24 v4, {RSTR//4}, v12")
        if first and opt("toff", 1):
            a(f"v_cmp_gt_u32 s[86:87], {hex(NP)}, v12") if False else None
            a(f"v_mov_b32 v6, {NP}")
            a("v_cmp_lt_u32 s[86:87], v12, v6")
    VM = lambda j: f"s[{sVAL+2*j}:{sVAL+2*j+1}]"
    def rec_masks():
        a(f"v_lshrrev_b32 v5, 16, v{OFFW}")
        a("v_sub_u32 v2, v5, v3")
        for j in (0, 4, 8):
            a(f"v_cmp_lt_i32 {VM(j)}, {12*(j>>2)+(j&3)}, v2")
    def rec_masks2():
        for j in range(NR):
            if j & 3: a(f"v_cmp_lt_i32 {VM(j)}, {12*(j>>2)+(j&3)}, v2")
    def orm(r, dst):
        a(f"s_or_b64 s[84:85], {VM(4*r)}, {VM(4*r+1)}")
        a(f"s_or_b64 s[84:85], s[84:85], {VM(4*r+2)}")
        a(f"s_or_b64 {dst}, s[84:85], {VM(4*r+3)}")
    def rec_loads(first, lab):
        a(f"v_and_b32 v6, 0xffff, v{OFFW}")
        if not first:
            a(f"v_lshrrev_b32 v5, 16, v{OFFW}")
        a("v_add_u32 v4, v6, v4")
        a("v_add_lshl_u32 v5, v4, v5, 2")
        a("v_add_lshl_u32 v4, v4, v3, 2")
        a("v_add_u32 v5, v5, v3")
        for r in range(3):
            if first: a(f"s_or_b64 exec, {VM(4*r)}, {VM(4*r)}")
            else: orm(r, "exec")
            if r == 2: a(f"s_cbranch_scc0 {lab}")
            a(f"buffer_load_dword v{44+r}, v5, s[{S_REC}:{S_REC+3}], 0 offen offset:{12*r}")
            a(f"buffer_load_dwordx4 v[{32+4*r}:{35+4*r}], v4, s[{S_REC}:{S_REC+3}], 0 offen offset:{48*r}")
        a.label(lab)
        a("s_mov_b64 exec, -1")
    def fixups(static):
        a(f"s_lshl_b32 s3, s{sW}, 5")
        if static:
            a(f"s_lshl_b32 s4, s{sM}, 9")
            a("s_add_u32 s3, s3, s4")
        for r in (VA, VE, VG):
            a(f"v_add_u32 v{r}, s3, v{r}")
        for k in range(4):
            a(f"v_add_u32 v{RA+k}, s{sSLOT}, v{RA+k}")
    def qpoll(lab, off=0):
        a(f"v_mov_b32 v5, {QC+off}")
        a.label(lab)
        a("ds_read_b32 v8, v5")
        a("s_waitcnt lgkmcnt(0)")
        a("v_readfirstlane_b32 s3, v8")
        a("s_cmp_lt_u32 s3, 4")
        a(f"s_cbranch_scc1 {lab}")
    a("s_waitcnt lgkmcnt(0)")
    a(f"s_add_u32 s{S_OFF}, s14, {WS_OFF}")
    a(f"s_addc_u32 s{S_OFF+1}, s15, 0")
    a(f"buffer_load_dword v{OFFW}, v3, s[{S_OFF}:{S_OFF+3}], s3 offen")
    if opt("b0e", 1): a("s_barrier")
    srd(a, S_REC, 14, 15, NP*RSTR, WS_REC)
    RP0 = opt("rp", -1)
    if RP0 >= 0:
        NL = opt("rl", 24)
        a(f"s_sub_u32 s3, s{sW}, {RP0}")
        a(f"s_cmp_ge_u32 s3, {(8*NL + 63)//64}")
        a("s_cbranch_scc1 K2_NORP")
        a(f"v_subrev_u32 v5, {64*RP0}, v0")
        a(f"v_mul_u32_u24 v6, {65536//NL + 1}, v5")
        a("v_lshrrev_b32 v6, 16, v6")
        a(f"v_mul_u32_u24 v7, {NL}, v6")
        a("v_sub_u32 v5, v5, v7")
        a("s_and_b32 s3, s2, -8")
        a("v_add_u32 v6, s3, v6")
        a(f"v_mul_u32_u24 v6, {RSTR}, v6")
        a("v_lshl_add_u32 v6, v5, 7, v6")
        a("s_and_b32 s3, s2, 7")
        a("s_mul_i32 s3, s3, 2054")
        a(f"s_sub_i32 s3, s3, {(NL*128 - 2054)//2}")
        a("s_max_i32 s3, s3, 0")
        a("s_and_b32 s3, s3, -128")
        a("v_add_u32 v6, s3, v6")
        a(f"buffer_load_dword v{GBA}, v6, s[{S_REC}:{S_REC+3}], 0 offen")
        rec_prep(True)
        a("s_waitcnt vmcnt(1)")
        a("s_branch K2_RPD")
        a.label("K2_NORP")
    rec_prep(True)
    ES = opt("es", 0)
    def early():
        a(f"s_mov_b32 s{sCHUNK}, 0")
        setup()
        a(f"s_lshr_b32 s{sWB}, s2, 3")
        first_addr(a)
        a(f"v_mov_b32 v{PM}, 0")
        a(f"v_mov_b32 v{PM2}, 0")
        a(f"s_mul_i32 s3, s{sWB}, {W1L_*128}")
        a("v_lshlrev_b32 v17, 7, v0")
        a("v_add_u32 v17, s3, v17")
    if ES: early()
    if not opt("b0e", 1): a("s_barrier")
    a("s_waitcnt vmcnt(0)")
    if RP0 >= 0: a.label("K2_RPD")
    if not opt("stb2", 0): stamp(a, 2)
    if opt("toff", 1):
        a("s_nop 0")
        a(f"v_cndmask_b32 v{OFFW}, 0, v{OFFW}, s[86:87]")
    rec_masks()
    rec_loads(True, "K2_RL1")
    if LOOPST == 3: stamp(a, 1, True)
    rec_masks2()
    if not ES: early()
    a(f"v_lshrrev_b32 v16, 16, v{OFFW}")
    a(f"v_cmp_lt_u32 vcc, {CHK}, v16")
    a("s_nop 1")
    a("s_cbranch_vccz K2_PASS")
    a("s_mov_b64 exec, vcc")
    a(f"v_mov_b32 v3, {FLG}")
    a("ds_max_u32 v3, v16")
    a("s_mov_b64 exec, -1")
    a.label("K2_PASS")
    a("v_mov_b32 v2, 1")
    a("v_min_u32 v18, 48, v1")
    a("v_mul_u32_u24 v19, 12, v18")
    a(f"v_mul_u32_u24 v18, {CAPN}, v18")
    a(f"v_add_u32 v18, {RECS//4 + CAPN}, v18")
    a("v_lshlrev_b32 v3, 4, v1")
    a(f"v_add_u32 v{CADR}, {CONSTL}, v3")
    CP = opt("cpos", 0)
    def cphase():
        qpoll("K2_QPOLL0", 4)
        if LOOPST == 3: stamp(a, 2, True)
        const_read2(a)
        a(f"s_mul_i32 s84, s{sW}, {4*BLK}")
        a(f"s_mul_i32 s85, s{sW}, {4*RS}")
        a("s_waitcnt lgkmcnt(0)")
        a(f"v_add_u32 v{SE}, s84, v{GNR}")
        a(f"v_add_u32 v{FA1}, s85, v{GNR+1}")
        a(f"v_add_u32 v{FA1+1}, {RS}, v{FA1}")
        fixups(True)
    if CP == 0: cphase()
    orm(2, "s[84:85]")
    a(f"s_cselect_b32 s{sTN}, 1, 0")
    def warm1():
        a(f"s_cmp_ge_u32 s{sW}, {(W1L_ + 63)//64}")
        a("s_cbranch_scc1 K2_NOWARM")
        a(f"buffer_load_dword v{GBE}, v17, s[{S_TABR}:{S_TABR+3}], 0 offen")
        a.label("K2_NOWARM")
    if LOOPST == 3: stamp(a, 3, True)
    a("s_waitcnt vmcnt(0)")
    if LOOPST == 3: stamp(a, 4, True)
    stamp(a, 3)
    if WARM == 2:
        warm1()
        a(f"s_cmp_lg_u32 s{sTN}, 0")
    for r in range(3):
        if r == 2:
            a(f"s_cbranch_scc0 K2_RK8")
        for j in range(4*r, 4*r+4):
            a(f"v_lshlrev_b32_sdwa v{48+j}, 2, v{44+r} dst_sel:DWORD dst_unused:UNUSED_PAD src0_sel:DWORD src1_sel:BYTE_{j&3}")
        for j in range(4*r, 4*r+4):
            a(f"s_mov_b64 exec, {VM(j)}")
            a(f"ds_add_rtn_u32 v{60+j}, v{48+j}, v2 offset:{CNT}")
        a("s_mov_b64 exec, -1")
    a.label("K2_RK8")
    if CP == 1: cphase()
    if WARM == 1:
        warm1()
    a("s_waitcnt lgkmcnt(0)")
    if LOOPST == 3: stamp(a, 5, True)
    a("s_barrier")
    if LOOPST == 3: stamp(a, 6, True)
    stamp(a, 4)
    a(f"ds_read2_b32 v[8:9], v19 offset0:{CNT//4+1} offset1:{CNT//4+2}")
    for j in range(NR):
        if j == 8:
            a(f"s_cmp_eq_u32 s{sTN}, 0")
            a("s_cbranch_scc1 K2_PL0")
        if j >= 4: a(f"s_mov_b64 exec, {VM(j)}")
        a(f"ds_read_b32 v{20+j}, v{48+j} offset:{CNT-4}")
    a.label("K2_PL0")
    a("s_mov_b64 exec, -1")
    a("s_waitcnt lgkmcnt(0)")
    if LOOPST == 3: stamp(a, 7, True)
    a("v_add_u32 v8, v8, v9")
    a("v_cmp_gt_u32 vcc, v8, v18")
    a("s_nop 1")
    a("s_cbranch_vccnz K2_CAREFUL")
    for j in range(NR):
        if j == 8:
            a(f"s_cbranch_scc1 K2_PL4")
        a(f"s_mov_b64 exec, {VM(j)}")
        a(f"v_add_lshl_u32 v{48+j}, v{60+j}, v{20+j}, 2")
        a(f"ds_write_b32 v{48+j}, v{32+j}")
    a.label("K2_PL4")
    a("s_mov_b64 exec, -1")
    if CP == 2: cphase()
    a("s_waitcnt lgkmcnt(0)")
    if LOOPST == 3: stamp(a, 8, True)
    if opt("stb2", 0): stamp(a, 2)
    a("s_barrier")
    stamp(a, 5)
    a(f"s_cmp_lg_u32 s{sMODE}, 0")
    a("s_cbranch_scc1 K2_SLOWHEAD")
    sidx(a, 0)
    a("s_waitcnt lgkmcnt(0)")
    dma4(a, True)
    stamp(a, 6)
    if LOOPST == 2: stamp(a, 1, True)
    sidx(a, 1)
    a(f"v_mov_b32 v2, {FLG+8}")
    a("ds_read_b64 v[4:5], v2")
    a(f"ds_read_u16 v{AEXT+2}, v{SE}")
    bext(a, FA1)
    a("s_waitcnt lgkmcnt(5)")
    a(f"v_readfirstlane_b32 s{sT}, v4")
    a(f"v_readfirstlane_b32 s{sOVF}, v5")
    count_tiles(a)
    a(f"s_mov_b32 s{sIT}, 100")
    prio(a, SP0)
    a("s_waitcnt vmcnt(0)")
    if LOOPST == 2: stamp(a, 2, True)
    stamp(a, 1)
    aread(a)
    a("s_waitcnt lgkmcnt(0)")
    static_phase(a)
    a.label("K2_HELP")
    a(f"s_sub_u32 s{sNT}, s{sW}, 12")
    a("v_lshlrev_b32 v13, 4, v1")
    a("v_lshrrev_b32 v5, 3, v1")
    a("v_and_b32 v6, 7, v1")
    a("v_xor_b32 v6, v6, v5")
    a("v_lshlrev_b32 v6, 4, v6")
    a("v_lshl_add_u32 v6, v5, 7, v6")
    a(f"s_mul_i32 s{sNODE0}, s{sB}, {NPB}")
    a(f"s_lshl_b32 s3, s{sNT}, 11")
    a(f"s_lshl_b32 s84, s{sNODE0}, 7")
    a("s_add_u32 s84, s84, s3")
    a("v_add_u32 v6, s84, v6")
    a("v_mov_b32 v12, v6")
    cnt_init(a, 1)
    a(f"s_add_u32 m0, s3, {CONSTL}")
    a("s_waitcnt lgkmcnt(0)")
    if not opt("hd", 1): a("s_barrier")
    srd(a, S_CON, 14, 15, 8192*4, WS_CONST)
    a(f"s_cmp_eq_u32 s{sNT}, 3")
    a(f"buffer_load_dwordx4 v13, s[{S_CON}:{S_CON+3}], s3 offen lds")
    a("s_cselect_b32 exec_hi, 0, -1")
    a(f"buffer_load_dwordx4 v13, s[{S_CON}:{S_CON+3}], s3 offen offset:1024 lds")
    a("s_mov_b64 exec, -1")
    a(f"s_add_u32 m0, s3, {PST + 16384}")
    srd(a, S_X, 4, 5, N*128)
    a(f"buffer_load_dwordx4 v12, s[{S_X}:{S_X+3}], 0 offen lds")
    a(f"buffer_load_dwordx4 v12, s[{S_X}:{S_X+3}], 0 offen offset:1024 lds")
    a(f"s_add_u32 m0, s3, {PST}")
    a("s_add_u32 s4, s3, 8192")
    for i in range(2):
        a(f"buffer_load_dwordx4 v13, s[{S_CON}:{S_CON+3}], s4 offen offset:{1024*i} lds")
    if opt("hd", 1): a("s_barrier")
    setup()
    if opt("pf", 1): prefill(a, 1)
    def hprep():
        first_addr(a)
        for i in range(4): a(f"v_mov_b32 v{RP+2*i}, -1")
        a("v_min_u32 v12, 48, v1")
        a("v_mul_u32_u24 v13, 12, v12")
        a("v_cmp_gt_u32 s[84:85], 48, v1")
        a(f"v_mul_u32_u24 v27, {RS}, v12")
        a(f"v_mul_u32_u24 v26, {BLK}, v12")
        a("v_lshrrev_b32 v28, 2, v26")
        a(f"v_add_u32 v28, {RECS//4}, v28")
        a("v_subrev_u32 v29, 48, v1")
        a(f"v_mov_b32 v11, s{sK}")
        a("v_cndmask_b32 v12, v29, v11, s[84:85]")
        a("v_cndmask_b32 v24, 1, 14, s[84:85]")
        a("v_lshl_add_u32 v26, v12, 5, v26")
        a(f"v_add_u32 v26, s{sRECS}, v26")
        a(f"s_lshl_b32 s60, s{sM}, 4")
        a(f"s_mul_i32 s61, s{sM}, 384")
        a(f"s_add_u32 s61, s61, {GT}")
    def tile_addrs():
        a("v_lshrrev_b32 v7, 4, v1")
        a("v_and_b32 v25, 15, v1")
        a(f"s_lshl_b32 s3, s{sNT}, 4")
        a("v_add_u32 v25, s3, v25")
        a(f"v_mul_u32_u24 v6, {RS}, v25")
        a("v_lshl_add_u32 v6, v7, 5, v6")
        a("v_mul_u32_u24 v10, 12, v25")
        a("v_cmp_gt_u32 s[86:87], 50, v25")
        a("v_lshlrev_b32 v3, 4, v1")
        a(f"v_add_u32 v{CADR}, {CONSTL}, v3")
    hprep()
    a(f"v_mov_b32 v5, {QC+4}")
    a("v_mov_b32 v8, 1")
    a("s_waitcnt vmcnt(4)")
    a("s_mov_b64 exec, 1")
    a("ds_add_u32 v5, v8")
    a("s_mov_b64 exec, -1")
    if WARM == 4:
        a(f"s_lshr_b32 s3, s2, 3")
        a(f"s_mul_i32 s3, s3, {W1L_*128}")
        a("v_subrev_u32 v30, 768, v0")
        a(f"v_min_u32 v30, {W1L_-1}, v30")
        a("v_lshlrev_b32 v30, 7, v30")
        a(f"buffer_load_dword v31, v30, s[{S_TABR}:{S_TABR+3}], s3 offen")
    if LOOPST == 3: stamp(a, 1, True)
    if not opt("pf", 1): prefill(a, 1)
    if LOOPST == 3: stamp(a, 2, True)
    tile_addrs()
    a("v_and_b32 v2, 7, v1")
    a("v_xor_b32 v2, v2, v7")
    a("v_lshlrev_b32 v2, 4, v2")
    a("v_lshl_add_u32 v2, v25, 7, v2")
    a(f"v_add_u32 v2, {PST + 16384}, v2")
    a("v_xor_b32 v4, 64, v2")
    a(f"v_add_u32 v3, {PST}, v3")
    a(f"v_mov_b32 v5, {QC}")
    a("v_mov_b32 v8, 1")
    a(f"s_waitcnt vmcnt({1 if WARM == 4 else 0})")
    if not opt("stb2", 0): stamp(a, 2)
    a("s_mov_b64 exec, 1")
    a("ds_add_u32 v5, v8")
    a("s_mov_b64 exec, -1")
    def hwarm():
        a(f"s_lshr_b32 s3, s2, 3")
        a(f"s_mul_i32 s3, s3, {W1L_*128}")
        a("v_subrev_u32 v30, 768, v0")
        a(f"v_min_u32 v30, {W1L_-1}, v30")
        a("v_lshlrev_b32 v30, 7, v30")
        a(f"buffer_load_dword v31, v30, s[{S_TABR}:{S_TABR+3}], s3 offen")
    if LOOPST == 3: stamp(a, 3, True)
    if WARM == 3: hwarm()
    qpoll("K2_QPOLL")
    if LOOPST == 3: stamp(a, 4, True)
    a("ds_read_b128 v[16:19], v2")
    a("ds_read_b128 v[20:23], v4")
    for q in range(8):
        a(f"ds_read_b128 v[{32+4*q}:{35+4*q}], v3 offset:{1024*q}")
    a(f"s_mov_b32 s84, {NLOG2E:#x}")
    a(f"s_mov_b32 s85, {NLOG2E:#x}")
    a("s_mov_b32 s3, 0x05040100")
    a("s_mov_b32 s4, 0x07060302")
    a("s_waitcnt lgkmcnt(0)")
    for ks in range(2):
        for ft in range(4):
            D = 64 + 4*ft; W = 32 + 8*ft + 4*ks
            a(f"v_mfma_f32_16x16x32_bf16 v[{D}:{D+3}], v[{W}:{W+3}], v[{16+4*ks}:{19+4*ks}], " + ("0" if ks == 0 else f"v[{D}:{D+3}]"))
    a("s_nop 4")
    for q in range(8):
        if q == 6: a("s_nop 0")
        a(f"v_pk_mul_f32 {P(64+2*q)}, {P(64+2*q)}, s[84:85]")
    NLATE = opt("late", 2)
    def split(fts):
        a("s_mov_b32 s3, 0x05040100")
        a("s_mov_b32 s4, 0x07060302")
        for ft in fts:
            for h in range(2):
                B = 64 + 4*ft + 2*h; O = 32 + 8*ft + 4*h
                a(f"v_cvt_pk_bf16_f32 v30, v{B}, v{B+1}")
                a("v_lshlrev_b32 v16, 16, v30")
                a("v_and_b32 v17, 0xffff0000, v30")
                a(f"v_pk_add_f32 v[16:17], {P(B)}, v[16:17] neg_lo:[0,1] neg_hi:[0,1]")
                a("v_cvt_pk_bf16_f32 v16, v16, v17")
                a(f"v_perm_b32 v{O}, v16, v30, s3")
                a(f"v_perm_b32 v{O+2}, v16, v30, s4")
            a("s_mov_b64 exec, s[86:87]")
            a(f"ds_write_b128 v6, v[{32+8*ft}:{35+8*ft}] offset:{BP + 128*ft}")
            a(f"ds_write_b128 v6, v[{36+8*ft}:{39+8*ft}] offset:{BP + 128*ft + 16}")
            a("s_mov_b64 exec, -1")
    split(range(4 - NLATE))
    a(f"v_mov_b32 v{PM}, 0")
    a(f"v_mov_b32 v{PM2}, 0")
    a.label("K2_HPASS")
    a.label("K2_HPASS2")
    a("s_waitcnt lgkmcnt(0)")
    stamp(a, 3)
    if LOOPST == 3: stamp(a, 5, True)
    a("s_barrier")
    if LOOPST == 3: stamp(a, 6, True)
    stamp(a, 4)
    a(f"ds_read2_b32 v[18:19], v13 offset0:{CNT//4+1} offset1:{CNT//4+2}")
    a(f"ds_read2_b32 v[22:23], v10 offset0:{CNT//4+1} offset1:{CNT//4+2}")
    a("s_waitcnt lgkmcnt(1)")
    a("v_add_u32 v8, v18, v19")
    a("v_sub_u32 v8, v8, v28")
    a(f"v_cmp_lt_u32 vcc, s{sCAPN}, v8")
    a(f"v_min_u32 v8, s{sCAPN}, v8")
    a("v_add_u32 v8, 7, v8")
    a("v_lshrrev_b32 v8, 3, v8")
    a("v_sub_u32 v8, v8, v12 clamp")
    a("v_min_u32 v8, v8, v24")
    a("v_mov_b32 v11, v8")
    a("s_cmp_lg_u64 vcc, 0")
    a(f"s_cselect_b32 s{sOVF}, 1, 0")
    scan64(a, 11)
    a(f"v_readlane_b32 s{sT}, v11, 63")
    a("v_sub_u32 v11, v11, v8")
    a(f"v_add_u32 v11, s{sNT}, v11")
    a(f"s_lshl_b32 s3, s{sNT}, 5")
    a("v_add_u32 v26, s3, v26")
    a(f"v_subrev_u32 v8, s{sNT}, v8")
    def pos():
        a("v_lshlrev_b32 v18, 3, v11")
        a("v_and_b32 v19, 0x78, v18")
        a("v_lshrrev_b32 v20, 4, v11")
        a("v_lshl_add_u32 v19, v20, 9, v19")
        a("v_cmp_gt_u32 s[84:85], s60, v11")
        a(f"v_add_u32 v19, {GT + 384}, v19")
        a("v_add_u32 v18, s61, v18")
        a("v_cndmask_b32 v18, v18, v19, s[84:85]")
    a("v_cmpx_lt_i32 vcc, 0, v8")
    a("s_nop 1")
    a("s_cbranch_execz K2_BLD1")
    a.label("K2_BLD0")
    pos()
    a("ds_write_b64 v18, v[26:27]")
    a("v_add_u32 v26, 128, v26")
    a("v_add_u32 v11, 4, v11")
    a("v_subrev_u32 v8, 4, v8")
    a("v_cmpx_lt_i32 vcc, 0, v8")
    a("s_nop 1")
    a("s_cbranch_execnz K2_BLD0")
    a.label("K2_BLD1")
    if LOOPST == 3: stamp(a, 7, True)
    a("s_mov_b64 exec, -1")
    a(f"s_add_u32 s3, s{sT}, s{sNT}")
    a("v_mov_b32 v11, s3")
    a(f"v_mov_b32 v26, {RECS + NPB*BLK}")
    a(f"v_mov_b32 v27, {NPB*RS}")
    pos()
    a("ds_write_b64 v18, v[26:27]")
    a(f"s_add_u32 s{sT}, s{sT}, 3")
    a(f"s_lshr_b32 s{sT}, s{sT}, 2")
    a(f"v_mov_b32 v18, s{sT}")
    a(f"v_mov_b32 v19, s{sOVF}")
    a(f"v_mov_b32 v20, {FLG + 8}")
    a("ds_write_b64 v20, v[18:19]")
    count_tiles(a)
    if NLATE:
        a(f"s_cmp_lg_u32 s{sMODE2}, 0")
        a("s_cbranch_scc1 K2_NOLATE")
        split(range(4 - NLATE, 4))
        a.label("K2_NOLATE")
    a("s_waitcnt lgkmcnt(0)")
    if LOOPST == 3: stamp(a, 8, True)
    if opt("stb2", 0): stamp(a, 2)
    a("s_barrier")
    stamp(a, 5)
    a.label("K2_DYNHEAD")
    def corr():
        a(f"s_cmp_eq_u32 s{sDYN}, 0")
        a("s_cbranch_scc1 K2_NOCORR")
        if opt("e1", 3): a("s_setprio 0")
        if opt("e3", 0) == 0: const_read2(a)
        a("v_add_u32 v22, v22, v23")
        a(f"v_mul_u32_u24 v23, {CAPN}, v25")
        a("v_sub_u32 v22, v22, v23")
        a("v_cmp_gt_u32 s[84:85], 48, v25")
        a(f"v_subrev_u32 v22, {RECS//4}, v22")
        a(f"s_lshl_b32 s3, s{sK}, 3")
        a("v_mov_b32 v23, s3")
        a(f"v_min_u32 v22, s{sCAPN}, v22")
        a("v_add_u32 v21, 7, v22")
        a("v_cndmask_b32 v23, 0, v23, s[84:85]")
        a("v_and_b32 v21, -8, v21")
        a("v_max_u32 v21, v21, v23")
        a("v_sub_u32 v21, v22, v21")
        a("v_cvt_f32_i32 v21, v21")
        for r in range(16):
            a(f"v_exp_f32 v{32+r}, v{64+r}")
        for q in range(8):
            a(f"v_pk_add_f32 {P(32+2*q)}, {P(32+2*q)}, s[{sONE}:{sONE+1}]")
        for r in range(16):
            a(f"v_rcp_f32 v{32+r}, v{32+r}")
        for q in range(8):
            a(f"v_pk_mul_f32 {P(64+2*q)}, {P(64+2*q)}, {P(32+2*q)}")
        a("s_mov_b64 exec, s[86:87]")
        for q in range(8):
            a(f"v_pk_mul_f32 {P(64+2*q)}, {P(64+2*q)}, v[20:21] op_sel:[0,1] op_sel_hi:[1,1]")
        for r in range(16):
            a(f"v_cvt_f64_f32 v[{32+2*r}:{33+2*r}], v{64+r}")
        if opt("e3", 0) == 1: const_read2(a)
        a(f"s_cmp_lg_u32 s{sMODE2}, 0")
        a("s_cbranch_scc1 K2_CORRADD")
        for q in range(8):
            a(f"ds_write_b128 v6, v[{32+4*q}:{35+4*q}] offset:{AGG + 128*(q>>1) + 16*(q&1)}")
        a(f"v_mov_b32 v5, {QC+8}")
        a("v_mov_b32 v8, 1")
        a("s_mov_b64 exec, 1")
        a("ds_add_u32 v5, v8")
        a.label("K2_CORRDONE")
        a("s_mov_b64 exec, -1")
        a("s_waitcnt lgkmcnt(9)")
        fixups(False)
        if opt("e1", 3): a("s_setprio %d" % opt("e1", 3))
        a.label("K2_NOCORR")
    corr()
    a(f"s_mov_b32 s{sIT}, 0")
    a(f"s_cmp_eq_u32 s{sREM}, 0")
    a("s_cbranch_scc1 K2_DYN0")
    a(f"ds_read_b32 v{GBA}, v{VA}")
    a(f"ds_read_b32 v{GBE}, v{VE}")
    a(f"ds_read2_b32 {P(GNR)}, v{VG} offset0:0 offset1:2")
    a("s_waitcnt lgkmcnt(2)")
    a(f"v_add_u32 v{GBA}, v{GBA}, v{CA}")
    idxread(a)
    a(f"ds_read_b32 v{GBA}, v{VA} offset:512")
    a("s_waitcnt lgkmcnt(1)")
    dma4(a, True)
    stamp(a, 6)
    a(f"v_add_u32 v{GBE}, v{GBE}, v{CE}")
    a(f"v_add_u32 v{FA0}, v{GNR}, v{L8}")
    a(f"v_add_u32 v{FA0+1}, v{GNR+1}, v{L8}")
    a(f"v_add_u32 v{VG}, 512, v{VG}")
    a(f"ds_read_u16 v{AEXT+2}, v{GBE}")
    bext(a, FA0)
    a("s_waitcnt lgkmcnt(5)")
    a(f"v_add_u32 v{GBA}, v{GBA}, v{CA}")
    a(f"s_cmp_lt_u32 s{sREM}, 2")
    a("s_cbranch_scc1 K2_DYN0")
    idxread(a)
    a(f"ds_read_b32 v{GBA}, v{VA} offset:1024")
    a.label("K2_DYN0")
    pass
    a(f"s_cmp_eq_u32 s{sREM}, 0")
    a("s_cbranch_scc1 K2_LOOPDONE")
    a("s_waitcnt vmcnt(0)")
    stamp(a, 1)
    aread(a)
    a("s_waitcnt lgkmcnt(0)")
    qpoll("K2_QPOLL3", 8)
    a(f"s_cmp_lt_u32 s{sREM}, 2")
    a("s_cbranch_scc1 K2_DYN1")
    dma4(a)
    a.label("K2_DYN1")
    for m in mfma3(D0, 0): a(m)
    a(f"v_add_u32 v{GBA}, v{GBA}, v{CA}")
    a(f"s_cmp_lg_u32 s{sMODE}, 0")
    a("s_nop 7")
    a("s_nop 1")
    a("s_cbranch_scc1 K2_S_LOOP0")
    dynloop(a, "F", False)
    a.label("K2_LOOPDONE")
    a("v_mov_b32 v2, 0x76800000")
    a("v_mov_b32 v3, 0x5f800000")
    a(f"v_cmp_nlt_f32 vcc, v{PM}, v2")
    a(f"v_cmp_nlt_f32 s[84:85], v{PM2}, v3")
    a("s_or_b64 vcc, vcc, s[84:85]")
    a("s_cbranch_scc0 K2_AFTER")
    a(f"v_mov_b32 v3, {FLG+4}")
    a("v_mov_b32 v2, 1")
    a("ds_write_b32 v3, v2")
    a.label("K2_AFTER")
    stamp(a, 7)
    if STAMP and LOOPST == 1:
        a(f"s_cmp_eq_u32 s{sDYN}, 0")
        a("s_cbranch_scc1 K2_LSX")
        stamp(a, 7, True)
        a.label("K2_LSX")
    a(f"v_mov_b32 v3, {FLG}")
    a(f"s_cmp_eq_u32 s{sDYN}, 0")
    a("s_cbranch_scc1 K2_B4")
    a("v_lshrrev_b32 v7, 4, v1")
    a(f"s_lshl_b32 s3, s{sNT}, 4")
    a("v_and_b32 v9, 15, v1")
    a("v_add_u32 v9, s3, v9")
    a(f"v_add_u32 v6, s{sNODE0}, v9")
    a("v_lshlrev_b32 v6, 7, v6")
    a("v_lshl_add_u32 v4, v7, 4, v6")
    a(f"buffer_load_dwordx4 v[16:19], v4, s[{S_X}:{S_X+3}], 0 offen")
    a(f"buffer_load_dwordx4 v[20:23], v4, s[{S_X}:{S_X+3}], 0 offen offset:64")
    a("v_lshlrev_b32 v4, 4, v1")
    for hq in range(4):
        a(f"s_mov_b32 s3, {16384 + 4096*hq}")
        for q in range(4):
            r = (96 if hq < 2 else 48) + 16*(hq & 1) + 4*q if hq >= 2 else (24 + 0)
            r = [96, 112 - 80, 48, 64][hq] + 4*q
            a(f"buffer_load_dwordx4 v[{r}:{r+3}], v4, s[{S_CON}:{S_CON+3}], s3 offen offset:{1024*q}")
    a(f"v_mul_u32_u24 v8, {RS}, v9")
    a("v_lshl_add_u32 v8, v7, 6, v8")
    a("v_lshl_add_u32 v6, v7, 5, v6")
    a("s_mov_b32 s86, 0xbfb8aa3b")
    a("s_mov_b32 s87, 0xbfb8aa3b")
    if LOOPST == 4: stamp(a, 1, True)
    a("s_waitcnt vmcnt(8)")
    if LOOPST == 4: stamp(a, 2, True)
    for ks in range(2):
        for ft in range(4):
            W = [96, 104, 32, 40][ft] + 4*ks
            a(f"v_mfma_f32_16x16x32_bf16 v[{80+4*ft}:{83+4*ft}], v[{W}:{W+3}], v[{16+4*ks}:{19+4*ks}], " + ("0" if ks == 0 else f"v[{80+4*ft}:{83+4*ft}]"))
    a("s_nop 4")
    for q in range(8):
        if q == 6: a("s_nop 0")
        a(f"v_pk_mul_f32 {P(80+2*q)}, {P(80+2*q)}, s[86:87]")
    a("s_waitcnt vmcnt(0)")
    if LOOPST == 4: stamp(a, 3, True)
    a.label("K2_B4")
    a("s_waitcnt lgkmcnt(0)")
    a("s_barrier")
    stamp(a, 8)
    a("ds_read_b64 v[12:13], v3")
    a(f"s_cmp_eq_u32 s{sDYN}, 0")
    a("s_cbranch_scc1 K2_NOAGG")
    for ks in range(2):
        for h in range(4):
            r = 16 + 16*ks + 4*h
            a(f"ds_read_b128 v[{r}:{r+3}], v8 offset:{AGG + 256*ks + 16*h}")
    a("s_mov_b32 s86, 0xbfb8aa3b")
    a("s_mov_b32 s87, 0xbfb8aa3b")
    a(f"s_mov_b32 s4, {NLN2:#x}")
    a(f"s_mov_b32 s5, {NLN2:#x}")
    for r in range(16):
        if r % 2 == 0: a(f"s_waitcnt lgkmcnt({7 - r//2})")
        a(f"v_cvt_f32_f64 v{96+r}, v[{16+2*r}:{17+2*r}]")
        if r % 2 == 1:
            a(f"v_pk_mul_f32 {P(95+r)}, {P(95+r)}, s[4:5]")
            a(f"v_cvt_pk_bf16_f32 v{112+r//2}, v{95+r}, v{96+r}")
    if LOOPST == 4: stamp(a, 5, True)
    a("s_branch K2_FL")
    a.label("K2_NOAGG")
    a("s_waitcnt lgkmcnt(0)")
    a.label("K2_FL")
    a("v_readfirstlane_b32 s84, v12")
    a("v_readfirstlane_b32 s85, v13")
    a(f"s_cmp_lg_u32 s{sOVF}, 0")
    a("s_cbranch_scc1 K2_RETRY")
    a(f"s_add_u32 s3, s{sCHUNK}, {CHK}")
    a("s_cmp_gt_u32 s84, s3")
    a("s_cbranch_scc1 K2_NEXTCHUNK")
    a(f"s_andn2_b32 s85, s85, s{sMODE}")
    a("s_cbranch_scc1 K2_GOSLOW")
    a(f"s_cmp_eq_u32 s{sDYN}, 0")
    a("s_cbranch_scc1 K2_FIN")
    a(f"v_cmp_gt_u32 vcc, {NPB}, v9")
    a("v_mov_b32 v12, s86")
    a("v_mov_b32 v13, s86")
    for ks in range(2):
        for ft in range(4):
            a(f"v_mfma_f32_16x16x32_bf16 v[{16+4*ft}:{19+4*ft}], v[{48+8*ft+4*ks}:{51+8*ft+4*ks}], v[{112+4*ks}:{115+4*ks}], " + ("0" if ks == 0 else f"v[{16+4*ft}:{19+4*ft}]"))
    a("s_nop 4")
    for q in range(8):
        if q == 6: a("s_nop 0")
        a(f"v_pk_fma_f32 {P(80+2*q)}, {P(16+2*q)}, s[86:87], {P(80+2*q)}")
    if LOOPST == 4: stamp(a, 6, True)
    for r in range(16):
        a(f"v_exp_f32 v{16+r}, v{80+r}")
    for q in range(8):
        a(f"v_pk_fma_f32 {P(16+2*q)}, {P(16+2*q)}, s[86:87], v[12:13]")
    for r in range(16):
        a(f"v_rcp_f32 v{16+r}, v{16+r}")
    for q in range(8):
        a(f"v_pk_mul_f32 {P(16+2*q)}, {P(16+2*q)}, {P(80+2*q)}")
    for q in range(8):
        a(f"v_cvt_pk_bf16_f32 v{32+q}, v{16+2*q}, v{17+2*q}")
    a("s_mov_b64 exec, vcc")
    so = ["", " sc1", " nt", " sc0 sc1", " sc1 nt"][opt("osc", 0)]
    a(f"buffer_store_dwordx4 v[32:35], v6, s[{S_OUT}:{S_OUT+3}], 0 offen" + so)
    a(f"buffer_store_dwordx4 v[36:39], v6, s[{S_OUT}:{S_OUT+3}], 0 offen offset:16" + so)
    if LOOPST == 4: stamp(a, 7, True)
    a.label("K2_FIN")
    stamp_flush(a, 1, 14, 15, sW, sT)
    a.label("K2_END")
    a("s_endpgm")
    dynloop(a, "S", True)
    a.label("K2_CORRADD")
    for r in range(16):
        a(f"ds_add_f64 v6, v[{32+2*r}:{33+2*r}] offset:{AGG + 128*(r>>2) + 8*(r&3)}")
    a("s_waitcnt lgkmcnt(0)")
    a("s_branch K2_CORRDONE")
    a.label("K2_NOTINIT")
    a(f"ds_read_b32 v{GNR}, v{GBE}")
    a("s_waitcnt lgkmcnt(0)")
    a(f"v_readfirstlane_b32 s3, v{GNR}")
    a("s_cmp_lt_u32 s3, 4")
    a("s_cbranch_scc1 K2_NOTINIT")
    a("s_branch K2_INITOK")
    a.label("K2_SLOWHEAD")
    for i in range(4): a(f"v_mov_b32 v{RP+2*i}, -1")
    a(f"v_mov_b32 v2, {FLG+8}")
    a("ds_read_b64 v[4:5], v2")
    a("s_waitcnt lgkmcnt(0)")
    a(f"v_readfirstlane_b32 s{sT}, v4")
    a(f"v_readfirstlane_b32 s{sOVF}, v5")
    count_tiles(a)
    a("s_branch K2_DYNHEAD")
    a.label("K2_CAREFUL")
    for j in range(NR):
        a(f"s_mov_b64 exec, {VM(j)}")
        a(f"v_mul_u32_u24 v{48+j}, 0x5556, v{48+j}")
        a(f"v_lshrrev_b32 v{48+j}, 18, v{48+j}")
        a(f"v_mul_u32_u24 v{48+j}, {CAPN}, v{48+j}")
        a(f"v_add_u32 v{48+j}, {RECS//4 + CAPN}, v{48+j}")
        a(f"v_add_u32 v{60+j}, v{60+j}, v{20+j}")
        a(f"v_cmpx_lt_u32 vcc, v{60+j}, v{48+j}")
        a(f"v_lshlrev_b32 v{60+j}, 2, v{60+j}")
        a(f"s_andn2_b64 {VM(j)}, {VM(j)}, vcc")
        a(f"ds_write_b32 v{60+j}, v{32+j}")
    a("s_branch K2_PL4")
    a.label("K2_GOSLOW")
    a(f"s_mov_b32 s{sMODE}, 1")
    a(f"s_mov_b32 s{sCHUNK}, {-CHK}")
    a(f"s_mov_b32 s{sK}, 0")
    a(f"s_mov_b32 s{sM}, 0")
    a("s_waitcnt lgkmcnt(0)")
    a("s_barrier")
    a(f"s_cmp_eq_u32 s{sDYN}, 0")
    a("s_cbranch_scc1 K2_NEXTCHUNK")
    prefill(a, 2)
    cnt_init(a, 2)
    a("s_branch K2_HAGAIN")
    a.label("K2_NEXTCHUNK")
    a(f"s_add_u32 s{sCHUNK}, s{sCHUNK}, {CHK}")
    a(f"s_cmp_lg_u32 s{sDYN}, 0")
    a("s_cbranch_scc1 K2_RETRY")
    rec_prep(False)
    rec_masks()
    rec_masks2()
    a.label("K2_RETRY")
    a(f"s_mov_b32 s{sMODE2}, 1")
    a("s_waitcnt lgkmcnt(0)")
    a(f"s_cmp_lg_u32 s{sDYN}, 0")
    a("s_cbranch_scc1 K2_HRETRY")
    rec_prep(False)
    rec_loads(False, "K2_RL2")
    first_addr(a)
    a("v_bfrev_b32 v17, 1")
    a("s_barrier")
    a("s_branch K2_PASS")
    a.label("K2_HAGAIN")
    a(f"s_mov_b32 s{sMODE2}, 1")
    a(f"s_add_u32 s{sCHUNK}, s{sCHUNK}, {CHK}")
    a("s_branch K2_HR2")
    a.label("K2_HRETRY")
    prefill(a, 0)
    cnt_init(a, 0)
    a.label("K2_HR2")
    hprep()
    tile_addrs()
    a(f"v_add_u32 v2, {BP}, v6")
    for q in range(8):
        a(f"ds_read2_b32 v[{32+2*q}:{33+2*q}], v2 offset0:{32*(q>>1)+4*(q&1)} offset1:{32*(q>>1)+4*(q&1)+2}")
    a("s_waitcnt lgkmcnt(0)")
    a("s_barrier")
    for r in range(16):
        a(f"v_lshlrev_b32 v{64+r}, 16, v{32+r}")
        a(f"v_and_b32 v{32+r}, 0xffff0000, v{32+r}")
        a(f"v_add_f32 v{64+r}, v{64+r}, v{32+r}")
    a("s_branch K2_HPASS2")

HEAD = open("standalone__mpnn_edge_mlp__graph.s.ref").read().split("; Override launch")[0]

def main(out):
    a = Asm()
    a.lines.append(HEAD.rstrip())
    a.lines.append(f"; @launch kernel=k1_kernel grid=({NP+NX},1,1) block=({K1W*64},1,1) lds={opt('k1lds', 90112)}")
    a.lines.append(f"; @launch kernel=k2_kernel grid=({NB},1,1) block=(1024,1,1) lds={K2_LDS}")
    a('.amdgcn_target "amdgcn-amd-amdhsa--gfx950"')
    a(".text")
    for k, g in (("k1_kernel", gen_k1), ("k2_kernel", gen_k2)):
        a(f".globl {k}")
        a(".p2align 8")
        a(f".type {k},@function")
        g(a)
    a('.section .rodata,"a"')
    a(".p2align 6")
    a.lines.append(desc("k1_kernel", max(128, 48 + 36*opt("u", 2) + 4), 102).rstrip())
    a(".p2align 6")
    a.lines.append(desc("k2_kernel", 128, 102).rstrip())
    open(out, "w").write(a.text())

if __name__ == "__main__":
    main(sys.argv[1] if len(sys.argv) > 1 else "standalone__mpnn_edge_mlp__graph.s")
```
